```python
import torch

def _softmax(x, axis=-1):
    return torch.softmax(x, dim=axis)
def _gelu(x):
    return torch.nn.functional.gelu(x, approximate="tanh")
def _silu(x):
    return torch.nn.functional.silu(x)
def _sigmoid(x):
    return torch.sigmoid(x)
def _layernorm(x, axis=-1, eps=1e-5):
    m = x.mean(dim=axis, keepdim=True)
    v = x.var(dim=axis, keepdim=True, unbiased=False)
    return (x - m) / torch.sqrt(v + eps)
def _scatter_add(tgt, idx, src, axis=0):
    return tgt.clone().index_add_(axis, idx, src)
def _segment_sum(src, seg, n):
    out = torch.zeros((n,) + src.shape[1:], dtype=src.dtype)
    return out.index_add_(0, seg, src)
def _pad(x, pw):
    flat = tuple(v for pair in reversed(pw) for v in pair)
    return torch.nn.functional.pad(x, flat)

kernel_name = 'interleave_layers__sliding_block__glu_gated_reglu__prompt'

def setup_inputs():

    _w = (lambda a: (lambda t: t.to(torch.bfloat16) if t.is_floating_point() else t)(torch.as_tensor(a)))
    def _A_setup():
        B, S, D = 1, 2048, 512
        return {
            "x": _w((lambda *s: torch.randn(*s, dtype=torch.bfloat16) * 0.05)(B, S, D)),
            "wqkv": _w((lambda *s: torch.randn(*s, dtype=torch.bfloat16) * 0.05)(D, 3 * D)),
            "wo": _w((lambda *s: torch.randn(*s, dtype=torch.bfloat16) * 0.05)(D, D)),
        }
    _A_in = _A_setup()

    def _B_setup():
        B, S, D, F = 1, 2048, 512, 1792
        return {
            "x": _w((lambda *s: torch.randn(*s, dtype=torch.bfloat16) * 0.05)(B, S, D)),
            "W_gate": _w((lambda *s: torch.randn(*s, dtype=torch.bfloat16) * 0.8)(D, F) * (2.0 / D) ** 0.5),
            "W_up": _w((lambda *s: torch.randn(*s, dtype=torch.bfloat16) * 0.8)(D, F) * (2.0 / D) ** 0.5),
            "W_down": _w((lambda *s: torch.randn(*s, dtype=torch.bfloat16) * 0.8)(F, D) * (1.0 / F) ** 0.5),
        }
    _B_in = _B_setup()

    return {
        "A_x": _A_in["x"],
        "A_wqkv": _A_in["wqkv"],
        "A_wo": _A_in["wo"],
        "B_x": _B_in["x"],
        "B_W_gate": _B_in["W_gate"],
        "B_W_up": _B_in["W_up"],
        "B_W_down": _B_in["W_down"],
    }

def reference(A_x, A_wqkv, A_wo, B_x, B_W_gate, B_W_up, B_W_down):
    def _A_ref(x, wqkv, wo):
        B, S, D = x.shape
        H = 32; Dh = D // H; W = 256
        qkv = (lambda x, *d: x.permute(*d))((x @ wqkv).reshape(B, S, 3, H, Dh), 2, 0, 3, 1, 4)
        q, k, v = qkv[0], qkv[1], qkv[2]
        scores = torch.einsum("bhqd,bhkd->bhqk", q, k) * (Dh ** -0.5)
        idx = torch.arange(S)
        mask = (idx[:, None] - idx[None, :] >= 0) & (idx[:, None] - idx[None, :] < W)
        scores = torch.where(mask[None, None], scores, -1e9)
        p = _softmax(scores, axis=-1)
        o = torch.einsum("bhqk,bhkd->bhqd", p, v)
        return (lambda x, *d: x.permute(*d))(o, 0, 2, 1, 3).reshape(B, S, D) @ wo

    def _B_ref(x, W_gate, W_up, W_down):
        gate = torch.einsum("bsd,df->bsf", x, W_gate)
        up = torch.einsum("bsd,df->bsf", x, W_up)
        gate = gate * (lambda x, dt: x.to(dt))(gate > 0, gate.dtype)
        h = gate * up
        return torch.einsum("bsf,fd->bsd", h, W_down)

    x = A_x
    x = x + _A_ref(_layernorm(x, axis=-1), A_wqkv, A_wo)
    x = x + _B_ref(_layernorm(x, axis=-1), B_W_gate, B_W_up, B_W_down)
    x = x + _A_ref(_layernorm(x, axis=-1), A_wqkv, A_wo)
    x = x + _B_ref(_layernorm(x, axis=-1), B_W_gate, B_W_up, B_W_down)
    return x
```

```python
import re
def v(i,n=1): return f"v{i}" if n==1 else f"v[{i}:{i+n-1}]"
def a(i,n=1): return f"a{i}" if n==1 else f"a[{i}:{i+n-1}]"
def s(i,n=1): return f"s{i}" if n==1 else f"s[{i}:{i+n-1}]"

_R1=re.compile(r'^([vas])(\d+)$'); _R2=re.compile(r'^([vas])\[(\d+):(\d+)\]$')
def regs(tok):
    tok=tok.strip()
    neg=tok.startswith('-')
    if neg: tok=tok[1:]
    if tok.startswith('|') and tok.endswith('|'): tok=tok[1:-1]
    m=_R1.match(tok)
    if m: return [(m.group(1),int(m.group(2)))]
    m=_R2.match(tok)
    if m: return [(m.group(1),i) for i in range(int(m.group(2)),int(m.group(3))+1)]
    if tok=='vcc': return [('s',106),('s',107)]
    if tok=='vcc_lo': return [('s',106)]
    if tok=='vcc_hi': return [('s',107)]
    if tok=='exec': return [('s',126),('s',127)]
    if tok=='exec_lo': return [('s',126)]
    if tok=='exec_hi': return [('s',127)]
    if tok=='m0': return [('s',124)]
    return []
TRANS=('v_exp_f32','v_log_f32','v_rcp_f32','v_rsq_f32','v_sqrt_f32','v_sin_f32','v_cos_f32')
class Ins:
    __slots__=('text','op','dst','src','kind','states','region','srcc','wide','sdst','dpp','lds')
def parse(text):
    t=text.split(';')[0].strip()
    I=Ins(); I.text=text; I.states=1; I.srcc=[]; I.wide=False; I.dpp=False; I.lds=False
    parts=t.split(None,1); op=parts[0]; I.op=op
    rest=parts[1] if len(parts)>1 else ''
    ops=[x.strip() for x in rest.split(',')] if rest else []
    mods=[]
    if ops:
        l=ops[-1].split()
        ops[-1]=l[0] if l else ''
        mods=l[1:]
    R=[regs(o) for o in ops]
    I.dst=[];I.src=[]
    base=re.sub(r'_(e32|e64|dpp|sdwa)$','',op)
    if op.startswith('v_mfma'):
        I.kind='mfma'; I.dst=R[0]; I.src=R[1]+R[2]+R[3]; I.srcc=R[3]
    elif op.startswith('v_'):
        I.kind='valu'
        if base in TRANS: I.kind='trans'
        if base.startswith('v_dot'): I.kind='dot'
        if any(m.startswith(('row_','quad_perm','wave_','bank_mask')) for m in mods): I.dpp=True
        if base.startswith('v_cmp'):
            I.dst=R[0]; I.src=sum(R[1:],[])
        elif base.startswith('v_permlane') and 'swap' in base:
            I.dst=R[0]+R[1]; I.src=R[0]+R[1]
        elif base in ('v_add_co_u32','v_sub_co_u32','v_addc_co_u32','v_subb_co_u32'):
            I.dst=R[0]+R[1]; I.src=sum(R[2:],[])
        else:
            I.dst=R[0]; I.src=sum(R[1:],[])
            if base.startswith(('v_fmac','v_mac','v_dot2c','v_dot4c','v_pk_fmac')) or I.dpp: I.src=I.src+R[0]
            if base=='v_cndmask_b32' and len(ops)==3: I.src+=regs('vcc')
            if base=='v_writelane_b32': I.src+=R[0]
    elif op.startswith('ds_'):
        I.kind='ds'
        if op.startswith(('ds_read','ds_bpermute','ds_permute','ds_swizzle')):
            I.dst=R[0]; I.src=sum(R[1:],[])
        else: I.src=sum(R,[])
    elif op.startswith('buffer_') or op.startswith('global_'):
        I.kind='vm'
        if op in ('buffer_wbl2','buffer_inv'): pass
        elif 'load' in op:
            if 'lds' in mods:
                I.lds=True; I.src=sum(R,[])+regs('m0')
            else:
                I.dst=R[0]; I.src=sum(R[1:],[])
        else:
            I.src=sum(R,[]); I.wide = op.endswith(('x3','x4')); I.sdst=R[0]
    elif op.startswith(('s_load','s_buffer_load','s_memtime','s_memrealtime')):
        I.kind='smem'; I.dst=R[0]; I.src=sum(R[1:],[])
    elif op.startswith('s_'):
        I.kind='salu'
        if op=='s_nop': I.states=int(ops[0],0)+1
        elif op.startswith(('s_cmp','s_bitcmp','s_cbranch','s_branch','s_waitcnt','s_barrier','s_endpgm','s_sleep','s_setprio','s_setreg')):
            I.src=sum(R,[])
            if op in('s_cbranch_vccz','s_cbranch_vccnz'): I.src+=regs('vcc')
        else:
            I.dst=R[0]; I.src=sum(R[1:],[])
            if 'saveexec' in op: I.dst=I.dst+regs('exec')
    else: raise ValueError("unknown op "+text)
    return I
VALUK=('valu','trans','dot')
class Asm:
    def __init__(self):
        self.L=[]; self.H=[]; self._n=0
        self.region=0; self._rid=0; self.rstack=[]
        self.vmq=[]
        self.lgq=[]
        self._id=0
        self.nops=0; self.auto=True
        self.tail=[]
    def cond_begin(self):
        self.rstack.append(self.region); self._rid+=1; self.region=self._rid
    def cond_end(self): self.region=self.rstack.pop()
    def _open(self,r): return r==self.region or r in self.rstack
    def _dist(self,idx):
        pr=self.H[idx].region; d=0
        for J in self.H[idx+1:]:
            if J.region==pr or self._open(J.region): d+=J.states
        return d
    def _need(self,I):
        need=0
        sset=set(I.src); dset=set(I.dst); rw=sset|dset
        n=len(self.H)
        for idx in range(n-1,max(-1,n-40),-1):
            P=self.H[idx]; req=0
            pd=set(P.dst)
            if P.kind=='mfma':
                if I.kind=='mfma':
                    if set(I.srcc)&pd: req=max(req,0 if I.srcc==P.dst else 10)
                    ab=set(I.src[:len(I.src)-len(I.srcc)])
                    if ab&pd: req=max(req,12)
                    if (dset&pd) and I.dst!=P.dst: req=max(req,12)
                    if I.dst==P.dst and I.srcc!=P.dst: req=max(req,12)
                elif I.kind in VALUK or I.kind in('ds','vm'):
                    if rw&pd: req=max(req,12)
                    if I.kind in VALUK and dset&set(P.srcc): req=max(req,7)
                    if I.kind in('ds','vm') and dset&set(P.srcc): req=max(req,7)
            elif P.kind in VALUK:
                pv={r for r in pd if r[0]!='s'}; ps={r for r in pd if r[0]=='s'}
                if I.kind=='mfma' and sset&pv: req=max(req,3 if P.kind=='dot' else 2)
                if I.kind in VALUK:
                    if P.kind=='trans' and I.kind!='trans' and sset&pv: req=max(req,1)
                    if P.kind=='trans' and I.kind=='trans' and sset&pv: req=max(req,1)
                    if P.kind=='dot' and rw&pv:
                        same=(I.kind=='dot' and I.op==P.op and I.dst==P.dst and not (set(I.src[:-len(I.dst)])&pv))
                        if not same: req=max(req,3)
                    if I.dpp and sset&pv: req=max(req,2)
                    if I.op.startswith('v_permlane') and sset&pv: req=max(req,2)
                    if I.op.startswith(('v_readlane','v_readfirstlane')) and sset&pv: req=max(req,1)
                    if sset&ps: req=max(req,4 if I.op.startswith(('v_readlane','v_writelane')) else 2)
                if I.kind in('ds','vm') and P.kind=='dot' and sset&pv: req=max(req,3)
                if I.kind in('ds','vm') and P.kind=='trans' and sset&pv: req=max(req,1)
                if I.kind=='vm' and sset&ps: req=max(req,5)
                if I.kind in('salu','smem') and sset&ps: req=max(req,2)
            elif P.kind=='salu':
                if ('s',124) in pd and I.kind=='vm' and I.lds: req=max(req,1)
                if (pd&set(regs('exec'))) and I.kind in VALUK and (I.dpp or I.op.startswith('v_permlane')): req=max(req,2)
            elif P.kind=='vm' and P.wide:
                if dset&set(P.sdst): req=max(req,2)
            if req:
                d=self._dist(idx)
                if req-d>need: need=req-d
        return need
    def _cnt(self,q,k):
        r=q[k][2]; return sum(1 for e in q[k+1:] if e[2]==r or self._open(e[2]))
    def _waits(self,I):
        rw=set(I.src)|set(I.dst); vm=None; lg=None
        for k in range(len(self.vmq)-1,-1,-1):
            e=self.vmq[k]
            hit = e[1]&(set(I.src) if (I.kind=='vm' and not I.lds) else rw)
            if hit: vm=k; break
        for k in range(len(self.lgq)-1,-1,-1):
            e=self.lgq[k]
            hit = e[1]&(set(I.src) if (I.kind=='ds' and not e[3]) else rw)
            if hit: lg=k; break
        self._emit_wait(vm,lg)
    def _emit_wait(self,vm,lg):
        w=[]
        if vm is not None:
            n=min(63,self._cnt(self.vmq,vm)); w.append(f"vmcnt({n})"); self._pop(self.vmq,vm)
        if lg is not None:
            if any(e[3] for e in self.lgq): n=0; self.lgq=[]
            else: n=min(15,self._cnt(self.lgq,lg)); self._pop(self.lgq,lg)
            w.append(f"lgkmcnt({n})")
        if w: self._raw_ins("s_waitcnt "+" ".join(w))
    def _pop(self,q,k):
        if self.region==0: del q[:k+1]
        else:
            keep=[e for e in q[:k+1] if e[2]!=self.region]
            q[:k+1]=keep
    def _manual(self,q,n):
        k=len(q)-1; c=0
        while k>=0 and c<n:
            if q[k][2]==0: c+=1
            k-=1
        del q[:k+1]
    def _raw_ins(self,text):
        I=parse(text); I.region=self.region; self.H.append(I); self.L.append("    "+text)
        if len(self.H)>200: del self.H[:100]
        return I
    def ins(self,text):
        I=parse(text)
        if I.op=='s_waitcnt':
            m=re.search(r'vmcnt\((\d+)\)',text)
            if m and self.region==0:
                n=int(m.group(1)); self._manual(self.vmq,n)
            m=re.search(r'lgkmcnt\((\d+)\)',text)
            if m and self.region==0:
                n=int(m.group(1))
                if n==0 or not any(e[3] for e in self.lgq): self._manual(self.lgq,n)
            self._raw_ins(text); return
        if self.auto:
            self._waits(I)
            nd=self._need(I)
            while nd>0:
                k=min(nd,16); self._raw_ins(f"s_nop {k-1}"); self.nops+=k; nd-=k
        I=self._raw_ins(text)
        self._id+=1
        if I.kind=='vm':
            d=set(I.dst)
            for e in self.vmq: e[1]-=d
            self.vmq.append([self._id,d,self.region])
        elif I.kind=='ds':
            d=set(I.dst)
            for e in self.lgq: e[1]-=d
            self.lgq.append([self._id,d,self.region,False])
        elif I.kind=='smem': self.lgq.append([self._id,set(I.dst),self.region,True])
        return self._id
    def __call__(self,t):
        r=None
        for line in t.split("\n"):
            line=line.strip()
            if not line or line.startswith(';'): continue
            r=self.ins(line)
        return r
    def wait_vm(self,tag):
        for k,e in enumerate(self.vmq):
            if e[0]==tag: self._emit_wait(k,None); return
    def wait_lg(self,tag):
        for k,e in enumerate(self.lgq):
            if e[0]==tag: self._emit_wait(None,k); return
    def forget(self):
        self.vmq=[]; self.lgq=[]
    def flush_hz(self):
        need=0;n=len(self.H)
        for idx in range(n-1,max(-1,n-40),-1):
            P=self.H[idx]
            req={'mfma':12,'valu':5,'trans':5,'dot':5,'salu':2,'vm':2}.get(P.kind,0)
            d=self._dist(idx)
            need=max(need,req-d)
        if need>0: self._raw_ins(f"s_nop {need-1}")
    def label(self,l): self.L.append(l+":")
    def comment(self,c): self.L.append("    ; "+c)
    def raw(self,t): self.L.append(t)
    def newlabel(self,p="L"):
        self._n+=1; return f"{p}_{self._n}"
    def text(self): return "\n".join(self.L)+"\n"
```

```python
import numpy as np
FLAGS=0x0; HFLAGS=0x1000; STAMPS=0x10000
WGU=0x100000; WDT=0x500000; WOT=0x700000; WQI=0x800000
LB0=0x1000000; LBS=0x2000000
XF=0x000000; QF=0x200000; KF=0x400000; VF=0x600000; KH=0x800000; VH=0xA00000; OF=0xC00000; X1F=0xE00000
HF=0x1000000; STX=0x1800000; ST1=0x1840000
WS_USED=LB0+2*LBS
def f32(u): return (u.astype(np.uint32)<<16).view(np.float32)
NAT=np.array([[8*h+j for j in range(8)] for h in range(2)])
PER=np.array([[(j>>2)*8+4*h+(j&3) for j in range(8)] for h in range(2)])
def frags(w,off,n):
    return f32(w[off:off+n*1024].view(np.uint16)).reshape(n,2,32,8)
def unfrag(F,m):
    sh=F.shape[:-3]; out=np.zeros(sh+(F.shape[-2],16),np.float32)
    for h in range(2):
        for j in range(8): out[...,m[h][j]]=F[...,h,:,j]
    return out
def decode(w,n,L,I):
    lb=LB0+L*LBS; R=[]
    if n=='qkv':
        qkv=I[f'qkv{L}'].float().numpy()
        for nm,off,c0,sc in (('Q',QF,0,0.25*1.4426950408889634),('K',KF,512,1),('KH',KH,512,1)):
            F=unfrag(frags(w,lb+off,2048).reshape(8,32,8,2,32,8),PER)
            M=F.transpose(0,2,3,1,4).reshape(2048,512)
            R.append((nm,M,qkv[:,c0:c0+512]*sc))
        for nm,off in (('V',VF),('VH',VH)):
            F=f32(w[lb+off:lb+off+2048*1024].view(np.uint16)).reshape(8,32,8,2,2,16,8)
            U=unfrag(F,PER)
            M=U.transpose(0,2,3,5,1,4).reshape(2048,512)
            R.append((nm,M,qkv[:,1024:]))
    elif n=='o':
        F=unfrag(frags(w,lb+OF,2048).reshape(64,32,2,32,8),PER)
        R.append(('O',F.transpose(0,2,1,3).reshape(2048,512),I[f'o{L}']))
    elif n in('x1','x'):
        off,so=(X1F,ST1) if n=='x1' else (XF,STX)
        F=unfrag(frags(w,lb+off,2048).reshape(64,32,2,32,8),NAT)
        M=F.transpose(0,2,1,3).reshape(2048,512)
        R.append((n,M,I[f'{n}{L}']))
        st=w[lb+so:lb+so+2048*64].view(np.float32).reshape(2048,2,8).sum(-1)
        R.append(('stats',st,np.stack([M.sum(1),(M*M).sum(1)],1)))
    elif n=='h':
        F=unfrag(frags(w,lb+HF,64*112).reshape(64,112,2,32,8),PER)
        M=F.transpose(0,2,1,3).reshape(2048,1792)
        r=I[f'r1{L}'].numpy()
        R.append(('H',M*(r*r)[:,None],I[f'h{L}']))
    return R
def check_weights(w,W):
    R=[]
    F=unfrag(frags(w,WGU,16*33*7).reshape(16,33,7,2,32,8),NAT)
    G=F[:,:32,:,:16,:].transpose(1,4,0,2,3).reshape(512,1792); U=F[:,:32,:,16:,:].transpose(1,4,0,2,3).reshape(512,1792)
    R.append(('Wg',G,W['B_W_gate'])); R.append(('Wu',U,W['B_W_up']))
    cs=F[:,32].sum(-1)
    R.append(('csg',cs[:,:,:16].reshape(1,1792),W['B_W_gate'].sum(0)[None])); R.append(('csu',cs[:,:,16:].reshape(1,1792),W['B_W_up'].sum(0)[None]))
    F=unfrag(frags(w,WDT,8*112*2).reshape(8,112,2,2,32,8),PER)
    R.append(('Wd',F.transpose(1,4,0,2,3).reshape(1792,512),W['B_W_down']))
    F=unfrag(frags(w,WOT,8*32*2).reshape(8,32,2,2,32,8),PER)
    R.append(('Wo',F.transpose(1,4,0,2,3).reshape(512,512),W['A_wo']))
    Q=f32(w[WQI:WQI+16*98304].view(np.uint16)).reshape(16,512,3,32).transpose(1,2,0,3).reshape(512,1536)
    R.append(('WQI',Q,W['A_wqkv']))
    return R
def stamps(w,names):
    names=names.split(',')
    S=w[STAMPS:STAMPS+256*4*64*4].view(np.uint32).reshape(256,4,64).astype(np.int64)
    t0=S[:,:,0].min()
    print('stamps (us, relative to the earliest start): min / median / max over waves')
    prev=None
    for i,nm in enumerate(names):
        if nm=='-': continue
        x=(S[:,:,i]-t0)*0.01
        d='' if prev is None else f'   dur med {np.median(x-prev):.2f} max {np.max(x-prev):.2f}'
        print(f'  {nm:10s} {x.min():7.2f} {np.median(x):7.2f} {x.max():7.2f}{d}')
        prev=x
```

```python
import sys
sys.path.insert(0,'gen')
from asm2 import *
import layout as LY
NAME='interleave_layers__sliding_block__glu_gated_reglu__prompt'
MF='v_mfma_f32_32x32x16_bf16'
SX,SWQ,SWS,SOUT,SDBG,SWO,SWG,SWU,SWD=8,12,16,20,24,28,32,36,40
sTEAM,sSLOT,sW,sTH,sC,sTQ,sCW,sMODE,sLB,sFB,sMYF,sTF,sTO,sONE,sXCC,sTB,sTBA,sTBB,sLAYER,sSTI=range(44,64)
T0=84
sST=100
vL,vL16,RES,vTR,vSTMP,vVST,vRRD,vRWR,vXST,vROW,vSST,vSLD,vDSL,vP0,vP1,vT0,vT1=0,1,2,10,11,12,13,14,15,16,17,18,19,20,21,22,23
SLOTB=7168; XS=98304; PP=131072; SCR=114688; AK=100352; AV=AK+16384; AO=AV+16384; AUG=159744; RB=AUG+3072; GAUG=SCR
F_QKV,F_ATT,F_WOA,F_WOB,F_GU,F_DNA,F_DNB=1,2,3,4,5,6,7
def srd(i): return s(i,4)
WS=srd(SWS)

class G:
    def __init__(self,stop=None,stamps=False,force_mixed=False):
        self.A=Asm(); self.stop=stop; self.stamps=stamps; self.force_mixed=force_mixed; self.tail=[]; self.nst=0; self.stn=[]
    def stamp(self,name):
        if not self.stamps: return
        A=self.A
        A(f"s_waitcnt lgkmcnt(0)\ns_mov_b32 m0, s{sSTI}\nv_writelane_b32 v{vSTMP}, s{sST}, m0\ns_add_u32 s{sSTI}, s{sSTI}, 1\ns_memrealtime {s(sST,2)}")
        self.stn.append(name)
    def end(self):
        A=self.A
        if self.stamps:
            self.stamp('end-')
            A(f"""s_lshl_b32 s{T0}, s2, 2
            s_add_u32 s{T0}, s{T0}, s{sW}
            s_lshl_b32 s{T0}, s{T0}, 8
            s_add_u32 s{T0}, s{T0}, {LY.STAMPS}
            v_lshlrev_b32 v{vT0}, 2, v{vL}
            buffer_store_dword v{vSTMP}, v{vT0}, {WS}, s{T0} offen""")
        A("s_endpgm")
    def maybe_stop(self,name):
        if self.stop and self.stop[:-1]==name:
            A=self.A; l=A.newlabel('L_go')
            A(f"s_cmp_lg_u32 s{sLAYER}, {self.stop[-1]}\ns_cbranch_scc1 {l}")
            A.cond_begin(); n=len(self.stn); self.end(); del self.stn[n:]; A.cond_end(); A.label(l)
    def poll(self,srd_,soff,target,cmpop='gt',mask=None):
        A=self.A; l=A.newlabel('L_poll'); d=A.newlabel('L_ok')
        A.flush_hz(); A.label(l)
        A(f"buffer_load_dword v{vP1}, v{vP0}, {srd_}, {soff} offen sc1\ns_waitcnt vmcnt(0)")
        if mask is not None:
            A(f"v_and_b32 v{vP1}, {mask}, v{vP1}\nv_cmp_ne_u32 vcc, {mask}, v{vP1}")
        else:
            A(f"v_cmp_gt_u32 vcc, {target}, v{vP1}")
        A(f"s_cbranch_vccz {d}\ns_sub_u32 s{sTO}, s{sTO}, 1\ns_cbranch_scc0 {l}\ns_endpgm")
        A.label(d)
    def acquire(self):
        A=self.A; b=A.newlabel('L_acq'); r=A.newlabel('L_acr')
        A(f"s_cmp_lg_u32 s{sMODE}, 0\ns_cbranch_scc1 {b}"); A.label(r)
        self.tail.append(f"{b}:\n    buffer_inv sc1\n    s_waitcnt vmcnt(0)\n    s_branch {r}")
    def publish(self,val,tag):
        A=self.A; b=A.newlabel('L_pub'); r=A.newlabel('L_pur')
        A(f"s_add_u32 s{T0+15}, s{sFB}, {val}\nv_mov_b32 v{vP1}, s{T0+15}")
        A.wait_vm(tag)
        A(f"s_mov_b64 exec, 1\ns_cmp_lg_u32 s{sMODE}, 0\ns_cbranch_scc1 {b}")
        A(f"buffer_store_dword v{vP1}, off, {WS}, s{sMYF}"); A.label(r)
        A("s_mov_b64 exec, -1")
        self.tail.append(f"{b}:\n    buffer_wbl2 sc1\n    s_waitcnt vmcnt(0)\n    buffer_store_dword v{vP1}, off, {WS}, s{sMYF} sc1\n    s_branch {r}")
    def ln_scalars(self,vs,vq,vm,vr,t):
        A=self.A
        A(f"""v_mul_f32 v{vs}, 0x3b000000, v{vs}
        v_mul_f32 v{vq}, 0x3b000000, v{vq}
        v_fma_f32 v{vq}, -v{vs}, v{vs}, v{vq}
        v_max_f32 v{vq}, 0, v{vq}""")
        if vm is not None: A(f"v_cvt_pk_bf16_f32 v{vm}, -v{vs}, -v{vs}")
        if vr is not None:
            A(f"""v_cvt_pk_bf16_f32 v{t}, v{vq}, v{vq}
            v_and_b32 v{t}, 0xffff0000, v{t}
            v_add_f32 v{t}, 0x3727c5ac, v{t}
            v_cvt_pk_bf16_f32 v{t}, v{t}, v{t}
            v_and_b32 v{t}, 0xffff0000, v{t}
            v_sqrt_f32 v{t}, v{t}
            v_cvt_pk_bf16_f32 v{t}, v{t}, v{t}
            v_and_b32 v{t}, 0xffff0000, v{t}
            v_rcp_f32 v{vr}, v{t}""")
    def sum8(self,b):
        A=self.A
        A(f"""v_add_f32 v{b}, v{b}, v{b+1}
        v_add_f32 v{b+2}, v{b+2}, v{b+3}
        v_add_f32 v{b+4}, v{b+4}, v{b+5}
        v_add_f32 v{b+6}, v{b+6}, v{b+7}
        v_add_f32 v{b}, v{b}, v{b+2}
        v_add_f32 v{b+4}, v{b+4}, v{b+6}
        v_add_f32 v{b}, v{b}, v{b+4}""")
    def dma(self,voff,srd_,soff,ldsbase,off=0,sc1=True,m0set=True):
        A=self.A
        if m0set: A(f"s_mov_b32 m0, {ldsbase}" if isinstance(ldsbase,int) else f"s_mov_b32 m0, {ldsbase}")
        return A(f"buffer_load_dwordx4 v{voff}, {srd_}, {soff} offen"+(f" offset:{off}" if off else "")+(" sc1" if sc1 else "")+" lds")
    def prologue(self):
        A=self.A
        A(f"""s_cmp_ge_u32 s2, 256
        s_cbranch_scc1 L_exit
        s_load_dwordx16 s[64:79], s[0:1], 0
        s_load_dwordx4 s[80:83], s[0:1], 64""")
        if self.stamps: A(f"s_memrealtime {s(sST,2)}\ns_mov_b32 s{sSTI}, 0\nv_mov_b32 v{vSTMP}, 0"); self.stn.append('start')
        A(f"""v_lshrrev_b32 v2, 6, v0
        v_and_b32 v0, 63, v0
        v_readfirstlane_b32 s{sW}, v2
        v_lshlrev_b32 v{vL16}, 4, v0
        s_and_b32 s{sTEAM}, s2, 7
        s_lshr_b32 s{sSLOT}, s2, 3
        s_and_b32 s{sTH}, s{sSLOT}, 1
        s_lshr_b32 s{sC}, s{sSLOT}, 1
        s_and_b32 s{sTQ}, s{sSLOT}, 3
        s_lshr_b32 s{sCW}, s{sSLOT}, 2
        s_mov_b32 s{sLB}, {LY.LB0}
        s_mov_b32 s{sFB}, 0
        s_mov_b32 s{sLAYER}, 0
        s_mov_b32 s{sTO}, 400000
        s_mov_b32 s{sONE}, 0x3f803f80
        s_getreg_b32 s{sXCC}, hwreg(HW_REG_XCC_ID)
        s_and_b32 s{sXCC}, s{sXCC}, 15
        s_lshl_b32 s{sTF}, s{sTEAM}, 9
        s_lshl_b32 s{T0}, s{sSLOT}, 4
        s_add_u32 s{T0+1}, s{sTF}, s{T0}
        s_lshl_b32 s{T0}, s{sW}, 2
        s_add_u32 s{sMYF}, s{T0+1}, s{T0}
        s_lshl_b32 s{T0}, s{sTEAM}, 3
        s_lshl_b32 s{T0+2}, s{sTH}, 2
        s_add_u32 s{sTB}, s{T0}, s{T0+2}
        s_add_u32 s{sTB}, s{sTB}, s{sW}
        s_add_u32 s{sTBA}, s{T0}, s{sTQ}
        s_sub_u32 s{sTBB}, s{T0}, s{sTQ}
        s_add_u32 s{sTBB}, s{sTBB}, 7
        s_waitcnt lgkmcnt(0)""")
        for sr,p,sz in ((SX,64,2097152),(SWQ,66,1572864),(SWS,82,LY.WS_USED),(SOUT,78,2097152),(SDBG,80,256),(SWO,68,524288),(SWG,72,1835008),(SWU,74,1835008),(SWD,76,1835008)):
            A(f"s_mov_b32 s{sr}, s{p}\ns_mov_b32 s{sr+1}, s{p+1}\ns_mov_b32 s{sr+2}, {sz}\ns_mov_b32 s{sr+3}, 0x20000")
        A(f"v_mov_b32 v24, 0\nv_mov_b32 v25, 0\nv_mov_b32 v26, 0\nv_mov_b32 v27, 0\ns_cmp_lg_u32 s{sW}, 0\ns_cbranch_scc1 L_nz")
        A.cond_begin()
        A(f"""s_mov_b64 exec, 1
        buffer_store_dwordx4 v[24:27], off, {WS}, s{T0+1} sc1
        s_add_u32 s{T0+2}, s{T0+1}, {LY.HFLAGS}
        buffer_store_dwordx4 v[24:27], off, {WS}, s{T0+2} sc1
        s_mov_b64 exec, -1""")
        A.cond_end(); A.label('L_nz')
        XR=24
        A(f"""v_lshrrev_b32 v2, 4, v0
        v_and_b32 v3, 15, v0
        v_lshlrev_b32 v4, 10, v2
        v_lshl_add_u32 v4, v3, 4, v4
        s_lshl_b32 s{T0+2}, s{sTB}, 15""")
        for i in range(8): A(f"s_add_u32 s{T0+4+i}, s{T0+2}, {i*4096}")
        for qd in range(4):
            for i in range(8): A(f"buffer_load_dwordx4 {v(XR+qd*32+i*4,4)}, v4, {srd(SX)}, s{T0+4+i} offen offset:{qd*256}")
        for j in range(3):
            A(f"""v_add_u32 v5, {64*j}, v0
            v_mul_u32_u24 v6, 5462, v5
            v_lshrrev_b32 v6, 16, v6
            v_mul_u32_u24 v7, 12, v6
            v_sub_u32 v7, v5, v7
            v_mul_u32_u24 v6, 3072, v6
            v_lshrrev_b32 v5, 2, v7
            v_lshl_add_u32 v6, v5, 10, v6
            v_and_b32 v7, 3, v7
            v_lshl_add_u32 v6, v7, 4, v6
            v_subrev_u32 v{224+j}, {1024*j}, v6""")
        A(f"""s_mul_i32 s{T0+2}, s{sW}, 49152
        s_lshl_b32 s{T0+3}, s{sC}, 6
        s_add_u32 s{T0+2}, s{T0+2}, s{T0+3}
        s_mul_i32 s{T0+3}, s{sW}, 3072""")
        for n in range(8):
            A(f"s_add_u32 s{T0+4}, s{T0+2}, {n*4*49152}\ns_add_u32 m0, s{T0+3}, {n*4*3072}")
            for j in range(3): self.dma(224+j,srd(SWQ),f"s{T0+4}",0,off=1024*j,sc1=False,m0set=False)
        A(f"s_cmp_lg_u32 s{sW}, 0\ns_cbranch_scc1 L_nr")
        A.cond_begin()
        A(f"""s_or_b32 s{T0+4}, s{sXCC}, 0x80
        v_mov_b32 v2, s{T0+4}
        s_lshl_b32 s{T0+4}, s{sTEAM}, 5
        s_add_u32 s{T0+4}, s{T0+4}, s{sSLOT}
        s_waitcnt vmcnt(56)
        s_mov_b64 exec, 1
        buffer_store_byte v2, off, {srd(SDBG)}, s{T0+4} sc1
        s_mov_b64 exec, -1""")
        A.cond_end(); A.label('L_nr')
        self.prepass_load()
        A(f"""v_lshrrev_b32 v2, 5, v0            ; h
        v_bfe_u32 v3, v0, 2, 2                  ; r
        v_lshl_add_u32 v3, v2, 3, v3
        v_mul_u32_u24 v{vTR}, 192, v3
        v_bfe_u32 v3, v0, 4, 1
        v_lshl_add_u32 v{vTR}, v3, 5, v{vTR}
        v_and_b32 v4, 3, v0
        v_lshl_add_u32 v{vTR}, v4, 3, v{vTR}
        v_lshlrev_b32 v{vVST}, 13, v3
        v_and_b32 v4, 15, v0
        v_lshl_add_u32 v4, v2, 4, v4
        v_lshl_add_u32 v{vVST}, v4, 4, v{vVST}
        v_and_b32 v4, 31, v0
        v_lshlrev_b32 v{vSLD}, 6, v4
        v_lshl_add_u32 v{vSLD}, v2, 5, v{vSLD}
        s_lshl_b32 s{T0+2}, s{sW}, 3
        v_and_b32 v4, 7, v0
        v_add_u32 v4, s{T0+2}, v4              ; 8w+i
        v_bfe_u32 v5, v0, 3, 1                 ; h'
        v_lshrrev_b32 v6, 4, v0                ; q
        v_lshlrev_b32 v{vRRD}, 4, v4
        v_mul_u32_u24 v7, 4608, v2
        v_add_u32 v{vRRD}, v{vRRD}, v7
        v_lshl_add_u32 v7, v3, 1, v5
        v_mul_u32_u24 v7, 1152, v7
        v_add_u32 v{vRRD}, v{vRRD}, v7
        v_add_u32 v{vRRD}, {SCR}, v{vRRD}
        s_mul_i32 s{T0+2}, s{sW}, 9216
        s_add_u32 s{T0+2}, s{T0+2}, {SCR}
        v_add_u32 v{vRWR}, s{T0+2}, v{vL16}
        v_lshlrev_b32 v{vXST}, 4, v4
        v_lshl_add_u32 v{vXST}, v5, 9, v{vXST}
        v_lshl_add_u32 v{vXST}, v6, 10, v{vXST}
        v_lshlrev_b32 v{vROW}, 10, v4
        v_lshl_add_u32 v{vROW}, v6, 5, v{vROW}
        v_lshl_add_u32 v{vROW}, v5, 4, v{vROW}
        v_lshlrev_b32 v{vSST}, 6, v4
        v_lshl_add_u32 v{vDSL}, v5, 5, v{vSST}
        v_lshl_add_u32 v{vSST}, v3, 5, v{vSST}""")
        A(f"""v_lshrrev_b32 v2, 4, v0
        v_and_b32 v3, 15, v0
        v_xor_b32 v3, v3, v2
        v_lshlrev_b32 v3, 4, v3
        v_lshl_add_u32 v3, v2, 8, v3
        s_lshl_b32 s{T0+2}, s{sW}, 13
        s_add_u32 s{T0+2}, s{T0+2}, {XS}
        v_add_u32 v228, s{T0+2}, v3
        v_xor_b32 v229, 64, v228
        v_xor_b32 v230, 0x80, v228
        v_xor_b32 v231, 0xc0, v228
        v_and_b32 v2, 31, v0
        v_lshrrev_b32 v3, 5, v0
        v_and_b32 v4, 15, v0
        v_xor_b32 v3, v3, v4
        v_lshlrev_b32 v3, 4, v3
        v_lshl_add_u32 v3, v2, 8, v3
        v_add_u32 v232, s{T0+2}, v3""")
        for k in range(1,8): A(f"v_xor_b32 v{232+k}, {k*32}, v232")
        A(f"""s_lshl_b32 s{T0+3}, s{sCW}, 7
        s_lshl_b32 s{T0+4}, s{sTBA}, 15
        s_add_u32 s{T0+4}, s{T0+4}, s{T0+3}
        s_lshl_b32 s{T0+5}, s{sTBB}, 15
        s_add_u32 s{T0+5}, s{T0+5}, s{T0+3}
        buffer_load_dwordx4 {v(RES,4)}, v{vROW}, {srd(SX)}, s{T0+4} offen
        buffer_load_dwordx4 {v(RES+4,4)}, v{vROW}, {srd(SX)}, s{T0+5} offen""")
        for r in range(240,244): A(f"v_mov_b32 v{r}, 0")
        for qd in range(4):
            for i in range(8): A(f"ds_write_b128 v{228+(i&3)}, {v(XR+qd*32+i*4,4)} offset:{i*1024}")
            for k in range(8): A(f"ds_read_b128 {v(XR+qd*32+k*4,4)}, v{232+k}")
            if qd>0: self._stats(XR+(qd-1)*32)
        self._stats(XR+96)
        A(f"""v_add_f32 v240, v240, v242
        v_add_f32 v241, v241, v243
        v_mov_b32 v242, v240
        v_mov_b32 v243, v241
        v_permlane32_swap_b32 v240, v242
        v_permlane32_swap_b32 v241, v243
        v_add_f32 v240, v240, v242
        v_add_f32 v241, v241, v243""")
        A(f"""s_waitcnt vmcnt(0)
        s_mul_i32 s{T0+2}, s{sW}, 3072
        v_add_u32 v228, s{T0+2}, v{vTR}
        v_add_u32 v229, 49152, v228
        v_mov_b32 v244, 0
        v_mov_b32 v245, 0
        v_mov_b32 v246, 0""")
        def rd(n):
            for b in range(3):
                o=(n&3)*4*3072+b*64; r=200+(n&1)*12+b*4
                A(f"ds_read_b64_tr_b16 {v(r,2)}, v{228+(n>>2)} offset:{o}\nds_read_b64_tr_b16 {v(r+2,2)}, v{228+(n>>2)} offset:{o+768}")
        rd(0)
        for n in range(8):
            if n<7: rd(n+1)
            for j in range(4):
                for b in range(3): A(f"v_dot2c_f32_bf16 v{244+b}, s{sONE}, v{200+(n&1)*12+b*4+j}")
        A(f"""v_and_b32 v248, 31, v0
        v_lshrrev_b32 v249, 5, v0
        v_lshlrev_b32 v248, 4, v248
        v_lshl_add_u32 v248, v249, 2, v248
        s_lshr_b32 s{T0+2}, s{sW}, 1
        s_lshl_b32 s{T0+2}, s{T0+2}, 9
        s_and_b32 s{T0+3}, s{sW}, 1
        s_lshl_b32 s{T0+3}, s{T0+3}, 3
        s_add_u32 s{T0+2}, s{T0+2}, s{T0+3}
        s_add_u32 s{T0+2}, s{T0+2}, {AUG}
        v_add_u32 v228, s{T0+2}, v248""")
        for b in range(3):
            self.hilo(244+b,247)
            A(f"ds_write_b32 v228, v{244+b} offset:{b*1024}")
        A("s_waitcnt lgkmcnt(0)\ns_barrier")
        self.stamp('pro')
    def hilo(self,r,t):
        self.A(f"""v_cvt_pk_bf16_f32 v{t}, v{r}, v{r}
        v_and_b32 v{t}, 0xffff0000, v{t}
        v_sub_f32 v{t}, v{r}, v{t}
        v_cvt_pk_bf16_f32 v{r}, v{r}, v{t}""")
    def _stats(self,base):
        A=self.A
        for j in range(32):
            A(f"v_dot2c_f32_bf16 v{240+(j&1)*2}, s{sONE}, v{base+j}\nv_dot2c_f32_bf16 v{241+(j&1)*2}, v{base+j}, v{base+j}")
    def prepass_load(self):
        A=self.A
        A(f"""v_lshrrev_b32 v2, 3, v0
        v_and_b32 v3, 7, v0
        v_lshlrev_b32 v3, 4, v3
        v_mul_u32_u24 v4, 3584, v2
        v_add_u32 v4, v4, v3
        v_lshl_add_u32 v5, v2, 10, v3
        s_cmp_ge_u32 s2, 224
        s_cbranch_scc1 L_ppo""")
        A.cond_begin()
        A(f"""s_mul_i32 s5, s2, 2341
        s_lshr_b32 s5, s5, 16
        s_mul_i32 s4, s5, 28
        s_sub_u32 s4, s2, s4
        s_lshl_b32 s{T0+2}, s5, 6
        s_lshl_b32 s{T0+3}, s{sW}, 4
        s_add_u32 s{T0+2}, s{T0+2}, s{T0+3}
        s_mul_i32 s{T0+2}, s{T0+2}, 3584
        s_lshl_b32 s{T0+3}, s4, 7
        s_add_u32 s{T0+2}, s{T0+2}, s{T0+3}
        s_add_u32 s{T0+3}, s{T0+2}, {8*3584}
        s_lshl_b32 s{T0+4}, s{sW}, 11""")
        for j in range(2):
            for u,sr in enumerate((SWG,SWU)):
                A(f"s_add_u32 m0, s{T0+4}, {PP+u*8192+j*1024}")
                self.dma(4,srd(sr),f"s{T0+2+j}",0,sc1=False,m0set=False)
        A(f"""s_lshr_b32 s6, s2, 1
        s_and_b32 s7, s2, 1
        s_lshl_b32 s7, s7, 2
        s_add_u32 s7, s7, s{sW}
        s_lshl_b32 s{T0+2}, s6, 14
        s_lshl_b32 s{T0+3}, s7, 7
        s_add_u32 s{T0+2}, s{T0+2}, s{T0+3}
        s_add_u32 s{T0+3}, s{T0+2}, 8192""")
        for j in range(2):
            A(f"s_add_u32 m0, s{T0+4}, {PP+16384+j*1024}")
            self.dma(5,srd(SWD),f"s{T0+2+j}",0,sc1=False,m0set=False)
        A("s_branch L_ppl")
        A.cond_end(); A.label('L_ppo'); A.cond_begin()
        A(f"""s_sub_u32 s6, s2, 224
        s_lshl_b32 s{T0+2}, s6, 14
        s_lshl_b32 s{T0+3}, s{sW}, 8
        s_add_u32 s{T0+2}, s{T0+2}, s{T0+3}
        s_lshl_b32 s{T0+4}, s{sW}, 12""")
        for u in range(2):
            for j in range(2):
                A(f"s_add_u32 s{T0+3}, s{T0+2}, {u*128+j*8192}\ns_add_u32 m0, s{T0+4}, {PP+u*2048+j*1024}")
                self.dma(5,srd(SWO),f"s{T0+3}",0,sc1=False,m0set=False)
        A.cond_end(); A.label('L_ppl')
    def prepass_store(self):
        A=self.A
        A(f"""s_lshl_b32 s{T0+2}, s{sTEAM}, 1
        s_add_u32 s{T0+2}, s{T0+2}, s{sTH}
        s_lshl_b32 s{T0+2}, s{T0+2}, 2
        s_add_u32 s{T0+2}, s{T0+2}, s{sW}
        s_mul_i32 s{T0+2}, s{T0+2}, 1536
        v_add_u32 v24, s{T0+2}, v{vL16}
        v_lshlrev_b32 v25, 3, v0
        v_add_u32 v26, s{T0+2}, v25
        ds_read_b128 v[28:31], v24
        ds_read_b64 v[32:33], v26 offset:1024
        s_mul_i32 s{T0+3}, s{sC}, 98304
        s_add_u32 s{T0+3}, s{T0+3}, {LY.WQI}
        buffer_store_dwordx4 v[28:31], v24, {WS}, s{T0+3} offen sc1
        buffer_store_dwordx2 v[32:33], v26, {WS}, s{T0+3} offen offset:1024 sc1""")
        A(f"""v_lshrrev_b32 v26, 5, v0
        v_bfe_u32 v27, v0, 2, 2
        v_lshl_add_u32 v24, v26, 2, v27
        v_lshlrev_b32 v24, 7, v24
        v_lshl_add_u32 v25, v26, 3, v27
        v_lshlrev_b32 v25, 7, v25
        v_bfe_u32 v26, v0, 4, 1
        v_lshl_add_u32 v24, v26, 5, v24
        v_lshl_add_u32 v25, v26, 13, v25
        v_and_b32 v26, 3, v0
        v_lshl_add_u32 v24, v26, 3, v24
        v_lshl_add_u32 v25, v26, 3, v25
        s_cmp_ge_u32 s2, 224
        s_cbranch_scc1 L_pso""")
        def dunit(vb,off,soff,r):
            for cb in range(2):
                A(f"ds_read_b64_tr_b16 {v(r+cb*4,2)}, v{vb} offset:{off+cb*64}\nds_read_b64_tr_b16 {v(r+cb*4+2,2)}, v{vb} offset:{off+cb*64+1024}")
            for cb in range(2):
                A(f"buffer_store_dwordx4 {v(r+cb*4,4)}, v{vL16}, {WS}, {soff} offen offset:{cb*1024} sc1")
        A.cond_begin()
        A(f"""s_lshl_b32 s{T0+2}, s{sW}, 5
        s_add_u32 s{T0+2}, s{T0+2}, {PP}
        v_add_u32 v25, s{T0+2}, v25
        s_lshl_b32 s{T0+2}, s{sW}, 11
        s_add_u32 s{T0+2}, s{T0+2}, {PP+16384}
        v_add_u32 v24, s{T0+2}, v24
        s_lshl_b32 s{T0+2}, s4, 2
        s_add_u32 s{T0+2}, s{T0+2}, s{sW}
        s_mul_i32 s{T0+3}, s{T0+2}, 9363
        s_lshr_b32 s{T0+3}, s{T0+3}, 16
        s_mul_i32 s{T0+4}, s{T0+3}, 7
        s_sub_u32 s{T0+4}, s{T0+2}, s{T0+4}
        s_mul_i32 s{T0+3}, s{T0+3}, 231
        s_add_u32 s{T0+3}, s{T0+3}, s{T0+4}
        s_lshl_b32 s{T0+3}, s{T0+3}, 10
        s_add_u32 s{T0+3}, s{T0+3}, {LY.WGU}
        s_mul_i32 s{T0+4}, s5, {4*7168}
        s_add_u32 s{T0+4}, s{T0+4}, s{T0+3}
        v_mov_b32 v56, 0
        v_mov_b32 v57, 0""")
        for k in range(4):
            A(f"ds_read_b64_tr_b16 {v(32+k*4,2)}, v25 offset:{k*2048}\nds_read_b64_tr_b16 {v(34+k*4,2)}, v25 offset:{k*2048+512}")
        for k in range(4):
            A(f"s_add_u32 s{T0+5}, s{T0+4}, {k*7168}\nbuffer_store_dwordx4 {v(32+k*4,4)}, v{vL16}, {WS}, s{T0+5} offen sc1")
            for j in range(4): A(f"v_dot2c_f32_bf16 v{56+(j&1)}, s{sONE}, v{32+k*4+j}")
        A(f"""v_add_f32 v56, v56, v57
        v_mov_b32 v57, v56
        v_permlane32_swap_b32 v56, v57
        v_add_f32 v56, v56, v57""")
        self.hilo(56,57)
        A(f"""s_lshr_b32 s{T0+4}, s5, 2
        s_lshl_b32 s{T0+4}, s{T0+4}, 9
        s_and_b32 s{T0+5}, s5, 3
        s_lshl_b32 s{T0+5}, s{T0+5}, 2
        s_add_u32 s{T0+4}, s{T0+4}, s{T0+5}
        s_add_u32 s{T0+4}, s{T0+4}, s{T0+3}
        s_add_u32 s{T0+4}, s{T0+4}, {32*7168}
        s_mov_b32 exec_hi, 0
        buffer_store_dword v56, v{vL16}, {WS}, s{T0+4} offen sc1
        s_mov_b64 exec, -1
        s_mul_i32 s{T0+2}, s7, {112*2048}
        s_lshl_b32 s{T0+3}, s6, 11
        s_add_u32 s{T0+2}, s{T0+2}, s{T0+3}
        s_add_u32 s{T0+2}, s{T0+2}, {LY.WDT}""")
        dunit(24,0,f"s{T0+2}",48)
        A("s_branch L_psl")
        A.cond_end(); A.label('L_pso'); A.cond_begin()
        A(f"""s_lshl_b32 s{T0+2}, s{sW}, 12
        s_add_u32 s{T0+2}, s{T0+2}, {PP}
        v_add_u32 v24, s{T0+2}, v24
        s_lshl_b32 s{T0+2}, s{sW}, 17
        s_lshl_b32 s{T0+3}, s6, 11
        s_add_u32 s{T0+2}, s{T0+2}, s{T0+3}
        s_add_u32 s{T0+2}, s{T0+2}, {LY.WOT}
        s_add_u32 s{T0+3}, s{T0+2}, 65536""")
        dunit(24,0,f"s{T0+2}",32); dunit(24,2048,f"s{T0+3}",40)
        A.cond_end(); A.label('L_psl')
        A(f"""s_or_b32 s{T0+4}, s{sXCC}, 0xc0
        v_mov_b32 v24, s{T0+4}
        s_lshl_b32 s{T0+4}, s{sTEAM}, 5
        s_add_u32 s{T0+4}, s{T0+4}, s{sSLOT}
        s_waitcnt vmcnt(0) lgkmcnt(0)
        s_barrier
        s_cmp_lg_u32 s{sW}, 0
        s_cbranch_scc1 L_nm""")
        A.cond_begin()
        A(f"s_mov_b64 exec, 1\nbuffer_store_byte v24, off, {srd(SDBG)}, s{T0+4} sc1\ns_mov_b64 exec, -1")
        A.cond_end(); A.label('L_nm')
    def find_mode(self):
        A=self.A
        A(f"""s_sub_u32 s{T0+2}, s{sTEAM}, 1
        s_max_i32 s{T0+2}, s{T0+2}, 0
        s_lshl_b32 s{T0+2}, s{T0+2}, 5
        s_lshl_b32 s{T0+3}, s{sTEAM}, 5
        v_and_b32 v{vP0}, 7, v0
        v_lshlrev_b32 v{vP0}, 2, v{vP0}
        v_mov_b32 v{vT0}, s{T0+3}
        v_mov_b32 v{vT1}, s{T0+2}
        v_cmp_gt_u32 vcc, 32, v0
        v_cndmask_b32 v{vT0}, v{vT1}, v{vT0}, vcc
        v_add_u32 v{vP0}, v{vP0}, v{vT0}
        s_mov_b32 s{T0+4}, 0x80808080""")
        l=A.newlabel('L_poll'); d=A.newlabel('L_ok')
        A.flush_hz(); A.label(l)
        A(f"""buffer_load_dword v{vP1}, v{vP0}, {srd(SDBG)}, 0 offen sc1
        s_waitcnt vmcnt(0)
        v_and_b32 v{vT0}, s{T0+4}, v{vP1}
        v_cmp_ne_u32 vcc, s{T0+4}, v{vT0}
        s_cbranch_vccz {d}
        s_sub_u32 s{sTO}, s{sTO}, 1
        s_cbranch_scc0 {l}
        s_endpgm""")
        A.label(d)
        A(f"""s_mul_i32 s{T0+4}, s{sXCC}, 0x01010101
        v_and_b32 v{vT0}, 0x0f0f0f0f, v{vP1}
        v_cmp_ne_u32 vcc, s{T0+4}, v{vT0}
        s_cmp_lg_u32 vcc_lo, 0
        s_cselect_b32 s{sMODE}, 1, 0""")
        if self.force_mixed: A(f"s_mov_b32 s{sMODE}, 1")
    def xpoll_setup(self):
        A=self.A
        A(f"""s_sub_u32 s{T0+2}, 3, s{sW}
        s_cmp_eq_u32 s{sTH}, 0
        s_cselect_b32 s{T0+2}, s{sW}, s{T0+2}
        s_lshl_b32 s{T0+2}, s{T0+2}, 4
        v_bfe_u32 v{vP0}, v0, 2, 3
        v_lshlrev_b32 v{vP0}, 6, v{vP0}
        v_and_b32 v{vP1}, 3, v0
        v_lshl_add_u32 v{vP0}, v{vP1}, 2, v{vP0}
        v_add_u32 v{vP0}, s{T0+2}, v{vP0}""")
    def qkv_head2(self):
        A=self.A; XR=24
        self.xpoll_setup()
        A(f"s_add_u32 s{T0+3}, s{sTH}, {F_DNA}")
        self.poll(WS,f"s{sTF}",f"s{T0+3}"); self.acquire()
        self.stamp('qkv.rdy')
        A(f"""s_lshl_b32 s{T0+2}, s{sTB}, 11
        s_add_u32 s{T0+2}, s{T0+2}, s{sLB}
        s_add_u32 s{T0+2}, s{T0+2}, {LY.STX}
        buffer_load_dwordx4 v[228:231], v{vSLD}, {WS}, s{T0+2} offen sc1
        buffer_load_dwordx4 v[232:235], v{vSLD}, {WS}, s{T0+2} offen offset:16 sc1
        s_lshl_b32 s{T0+2}, s{sTB}, 15
        s_add_u32 s{T0+2}, s{T0+2}, s{sLB}""")
        for ks in range(32):
            if ks%4==0 and ks: A(f"s_add_u32 s{T0+2}, s{T0+2}, 4096")
            A(f"buffer_load_dwordx4 {v(XR+ks*4,4)}, v{vL16}, {WS}, s{T0+2} offen offset:{(ks%4)*1024} sc1")
        self.sum8(228)
        A(f"""v_mov_b32 v240, v228
        v_mov_b32 v241, v228
        v_permlane32_swap_b32 v240, v241""")
    def qkv(self):
        A=self.A; XR=24; ACC=152; WF=200; MFG=224
        self.ln_scalars(240,241,MFG,242,243)
        A(f"""v_mov_b32 v{MFG+1}, v{MFG}
        v_mov_b32 v{MFG+2}, v{MFG}
        v_mov_b32 v{MFG+3}, v{MFG}
        v_add_u32 v228, 49152, v{vTR}
        v_add_u32 v229, {AUG}, v{vL16}
        s_lshl_b32 s{T0+2}, s{sW}, 7
        s_add_u32 s{T0+2}, s{T0+2}, {RB}
        v_and_b32 v230, 31, v0
        v_lshlrev_b32 v230, 2, v230
        v_add_u32 v230, s{T0+2}, v230
        ds_write_b32 v230, v242
        v_lshrrev_b32 v230, 5, v0
        v_lshlrev_b32 v230, 4, v230
        v_add_u32 v230, s{T0+2}, v230
        v_mul_f32 v241, 0x3eb8aa3b, v242""")
        def rd(ks,b):
            r=WF+(ks&1)*12+b*4
            if ks==32: return [f"ds_read_b128 {v(r,4)}, v229 offset:{b*1024}"]
            o=(ks&15)*3072+b*64; ad=vTR if ks<16 else 228
            return [f"ds_read_b64_tr_b16 {v(r,2)}, v{ad} offset:{o}",f"ds_read_b64_tr_b16 {v(r+2,2)}, v{ad} offset:{o+768}"]
        for b in range(3):
            for t in rd(0,b): A(t)
        for ks in range(33):
            x=v(XR+ks*4,4) if ks<32 else v(MFG,4)
            for b in range(3):
                w=v(WF+(ks&1)*12+b*4,4); acc=v(ACC+b*16,16); c=acc if ks else '0'
                A(f"{MF} {acc}, {w}, {x}, {c}" if b<2 else f"{MF} {acc}, {x}, {w}, {c}")
                if ks<32:
                    for t in rd(ks+1,b): A(t)
            if ks==30:
                for q in range(4): A(f"ds_read_b128 {v(XR+q*4,4)}, v230 offset:{q*32}")
        A("s_barrier")
        self.stamp('qkv.mm')
        l=A.newlabel('L_m'); A(f"s_cmp_lg_u32 s{sLAYER}, 0\ns_cbranch_scc1 {l}")
        A.cond_begin(); self.find_mode(); A.cond_end(); A.label(l)
        PK=XR+16
        A(f"""s_lshl_b32 s{T0+2}, s{sTEAM}, 18
        s_lshl_b32 s{T0+3}, s{sC}, 14
        s_add_u32 s{T0+2}, s{T0+2}, s{T0+3}
        s_and_b32 s{T0+3}, s{sTB}, 7
        s_lshl_b32 s{T0+3}, s{T0+3}, 10
        s_add_u32 s{T0+2}, s{T0+2}, s{T0+3}
        s_add_u32 s{T0+2}, s{T0+2}, s{sLB}""")
        offs={'Q':LY.QF,'K':LY.KF,'V':LY.VF,'KH':LY.KH,'VH':LY.VH}
        for i,(n,o) in enumerate(offs.items()):
            A(f"s_add_u32 s{T0+4+2*i}, s{T0+2}, {o}\ns_add_u32 s{T0+5+2*i}, s{T0+2}, {o+8192}")
        for b in (1,2,0):
            for r in range(16):
                sc=241 if b==0 else (242 if b==1 else XR+r)
                A(f"v_mul_f32 v{ACC+b*16+r}, v{ACC+b*16+r}, v{sc}")
            for r in range(8): A(f"v_cvt_pk_bf16_f32 v{PK+b*8+r}, v{ACC+b*16+2*r}, v{ACC+b*16+2*r+1}")
            for f in range(2):
                d=v(PK+b*8+f*4,4)
                if b<2: tg=A(f"buffer_store_dwordx4 {d}, v{vL16}, {WS}, s{T0+4+2*b+f} offen")
                else:   tg=A(f"buffer_store_dwordx4 {d}, v{vVST}, {WS}, s{T0+8} offen offset:{f*512}")
        for f in range(2): A(f"buffer_store_dwordx4 {v(PK+8+f*4,4)}, v{vL16}, {WS}, s{T0+10+f} offen sc1")
        for f in range(2): th=A(f"buffer_store_dwordx4 {v(PK+16+f*4,4)}, v{vVST}, {WS}, s{T0+12} offen offset:{f*512} sc1")
        self.publish(F_QKV,tg)
        A(f"s_add_u32 s{T0+2}, s{sLAYER}, 1\nv_mov_b32 v{vT0}, s{T0+2}\ns_add_u32 s{T0+2}, s{sMYF}, {LY.HFLAGS}")
        A.wait_vm(th)
        A(f"s_mov_b64 exec, 1\nbuffer_store_dword v{vT0}, off, {WS}, s{T0+2} sc1\ns_mov_b64 exec, -1")
        self.stamp('qkv.pub')
    def att(self):
        A=self.A
        QA,QB,OA,OB,S0,P0,KFR,VFR,MD,MT,AD,WW=24,28,32,48,64,96,112,120,136,152,168,172
        A(f"""s_lshl_b32 s{T0+2}, s{sW}, 11
        s_add_u32 s{T0+2}, s{T0+2}, {AO}
        v_add_u32 v{AD}, s{T0+2}, v{vL16}
        s_cmp_eq_u32 s{sTEAM}, 0
        s_cselect_b32 s{T0+3}, 0, s{sONE}""")
        for r in range(4): A(f"v_mov_b32 v{S0+r}, s{sONE}\nv_mov_b32 v{S0+4+r}, s{T0+3}")
        for j in range(2):
            A(f"ds_write_b128 v{AD}, {v(S0+4,4)} offset:{j*1024}\nds_write_b128 v{AD}, {v(S0,4)} offset:{8192+j*1024}")
        A(f"""s_and_b32 s{T0+2}, s{sSLOT}, 30
        s_lshl_b32 s{T0+2}, s{T0+2}, 4
        v_and_b32 v{vP0}, 7, v0
        v_lshlrev_b32 v{vP0}, 2, v{vP0}
        v_add_u32 v{vP0}, s{T0+2}, v{vP0}
        s_add_u32 s{T0+3}, s{sFB}, {F_QKV}""")
        self.poll(WS,f"s{sTF}",f"s{T0+3}"); self.acquire()
        self.stamp('att.rdy')
        A(f"""s_lshl_b32 s{T0+2}, s{sTEAM}, 18
        s_lshl_b32 s{T0+3}, s{sSLOT}, 13
        s_add_u32 s{T0+2}, s{T0+2}, s{T0+3}
        s_add_u32 s{T0+2}, s{T0+2}, s{sLB}
        s_lshl_b32 s{T0+3}, s{sW}, 11
        s_add_u32 s{T0+4}, s{T0+2}, s{T0+3}
        s_add_u32 s{T0+5}, s{T0+4}, {LY.KF}
        s_add_u32 s{T0+6}, s{T0+4}, {LY.VF}
        s_add_u32 m0, s{T0+3}, {AK+8192}""")
        for j in range(2): self.dma(vL16,WS,f"s{T0+5}",0,off=j*1024,m0set=False)
        A(f"s_add_u32 m0, s{T0+3}, {AV+8192}")
        for j in range(2): self.dma(vL16,WS,f"s{T0+6}",0,off=j*1024,m0set=False)
        A(f"""s_lshl_b32 s{T0+5}, s{sW}, 10
        s_add_u32 s{T0+6}, s{T0+2}, {LY.QF}
        s_add_u32 s{T0+7}, s{T0+6}, s{T0+5}
        s_sub_u32 s{T0+6}, s{T0+6}, s{T0+5}
        s_add_u32 s{T0+6}, s{T0+6}, 7168
        buffer_load_dwordx4 {v(QA,4)}, v{vL16}, {WS}, s{T0+7} offen sc1
        buffer_load_dwordx4 {v(QB,4)}, v{vL16}, {WS}, s{T0+6} offen sc1""")
        lz=A.newlabel('L_hz'); ld=A.newlabel('L_hd')
        A(f"s_cmp_eq_u32 s{sTEAM}, 0\ns_cbranch_scc1 {lz}")
        A.cond_begin()
        A(f"s_add_u32 s{T0+5}, s{sTF}, {LY.HFLAGS-512}\ns_add_u32 s{T0+6}, s{sLAYER}, 1")
        self.poll(WS,f"s{T0+5}",f"s{T0+6}"); self.acquire()
        A(f"""s_add_u32 s{T0+5}, s{T0+4}, {LY.KH-262144}
        s_add_u32 s{T0+6}, s{T0+4}, {LY.VH-262144}
        s_add_u32 m0, s{T0+3}, {AK}""")
        for j in range(2): self.dma(vL16,WS,f"s{T0+5}",0,off=j*1024,m0set=False)
        A(f"s_add_u32 m0, s{T0+3}, {AV}")
        for j in range(2): self.dma(vL16,WS,f"s{T0+6}",0,off=j*1024,m0set=False)
        A(f"s_branch {ld}")
        A.cond_end(); A.label(lz); A.cond_begin()
        A(f"v_subrev_u32 v{AD}, {AO-AK}, v{AD}")
        for j in range(2):
            A(f"ds_write_b128 v{AD}, {v(S0+4,4)} offset:{j*1024}\nds_write_b128 v{AD}, {v(S0+4,4)} offset:{16384+j*1024}")
        A.cond_end(); A.label(ld)
        A(f"""v_and_b32 v{vT0}, 31, v0
        v_lshrrev_b32 v{vT1}, 5, v0
        v_lshlrev_b32 v{AD}, 2, v{vT1}
        v_sub_u32 v{AD}, v{vT0}, v{AD}
        v_mov_b32 v{AD+1}, 0xf149f2ca""")
        for r in range(16):
            A(f"v_cmp_le_i32 vcc, {(r//4)*8+r%4}, v{AD}\nv_cndmask_b32_e64 v{MD+r}, v{AD+1}, 0, vcc\nv_cndmask_b32_e64 v{MT+r}, 0, v{AD+1}, vcc")
        A(f"""s_lshl_b32 s{T0+2}, s{sW}, 10
        s_sub_u32 s{T0+3}, 7168, s{T0+2}
        v_add_u32 v{AD}, {AK}, v{vL16}
        v_add_u32 v{AD+1}, s{T0+3}, v{AD}
        v_add_u32 v{AD}, s{T0+2}, v{AD}
        v_and_b32 v{AD+2}, 15, v0
        v_lshl_add_u32 v{AD+2}, v{vT1}, 4, v{AD+2}
        v_lshlrev_b32 v{AD+2}, 4, v{AD+2}
        v_bfe_u32 v{vT0}, v0, 4, 1
        v_lshl_add_u32 v{AD+2}, v{vT0}, 14, v{AD+2}
        v_add_u32 v{AD+2}, {AV}, v{AD+2}
        v_add_u32 v{AD+3}, s{T0+3}, v{AD+2}
        v_add_u32 v{AD+2}, s{T0+2}, v{AD+2}
        s_waitcnt vmcnt(0) lgkmcnt(0)
        s_barrier""")
        self.stamp('att.kv')
        order=[('b',0),('b',1),('b',2),('b',3),('b',4),('a',0),('b',5),('a',1),('b',6),('a',2),('b',7),('a',3),('b',8),('a',4),('a',5),('a',6),('a',7),('a',8)]
        N=len(order); seen=set()
        def rk(n):
            q,d=order[n]; A(f"ds_read_b128 {v(KFR+(n&1)*4,4)}, v{AD+(q=='b')} offset:{(8-d)*1024}")
        def rv(n):
            q,d=order[n]
            for f in range(2): A(f"ds_read_b128 {v(VFR+(n&1)*8+f*4,4)}, v{AD+2+(q=='b')} offset:{(8-d)*1024+f*512}")
        def sm(n):
            q,d=order[n]; c=v(MD,16) if d==0 else (v(MT,16) if d==8 else '0')
            A(f"{MF} {v(S0+(n&1)*16,16)}, {v(KFR+(n&1)*4,4)}, {v(QB if q=='b' else QA,4)}, {c}")
        rk(0); rk(1); rv(0); sm(0)
        for n in range(N):
            q,d=order[n]; S=S0+(n&1)*16; P=P0+(n&1)*8; O=OB if q=='b' else OA
            if n+1<N: sm(n+1); rv(n+1)
            for f in range(2):
                for r in range(8): A(f"v_exp_f32 v{S+f*8+r}, v{S+f*8+r}")
                if f==0 and n+2<N: rk(n+2)
                for r in range(4): A(f"v_cvt_pk_bf16_f32 v{P+f*4+r}, v{S+f*8+2*r}, v{S+f*8+2*r+1}")
                c=v(O,16) if (q in seen or f) else '0'
                A(f"{MF} {v(O,16)}, {v(VFR+(n&1)*8+f*4,4)}, {v(P+f*4,4)}, {c}")
            seen.add(q)
        A(f"""s_lshl_b32 s{T0+2}, s{sTEAM}, 3
        s_add_u32 s{T0+3}, s{T0+2}, s{sW}
        s_sub_u32 s{T0+2}, s{T0+2}, s{sW}
        s_add_u32 s{T0+2}, s{T0+2}, 7
        s_lshl_b32 s{T0+2}, s{T0+2}, 15
        s_lshl_b32 s{T0+3}, s{T0+3}, 15
        s_lshl_b32 s{T0+4}, s{sSLOT}, 10
        s_add_u32 s{T0+4}, s{T0+4}, s{sLB}
        s_add_u32 s{T0+4}, s{T0+4}, {LY.OF}
        s_add_u32 s{T0+2}, s{T0+2}, s{T0+4}
        s_add_u32 s{T0+3}, s{T0+3}, s{T0+4}""")
        for O,so in ((OB,T0+2),(OA,T0+3)):
            A(f"v_rcp_f32 v{O+9}, v{O+8}")
            for r in range(8): A(f"v_mul_f32 v{O+r}, v{O+r}, v{O+9}")
            for r in range(4): A(f"v_cvt_pk_bf16_f32 v{O+12+r}, v{O+2*r}, v{O+2*r+1}")
            tg=A(f"buffer_store_dwordx4 {v(O+12,4)}, v{vL16}, {WS}, s{so} offen")
        self.publish(F_ATT,tg)
        A("s_barrier")
        self.stamp('att.pub')
    def prefetch_w(self):
        A=self.A; WW=172
        l=A.newlabel('L_pf')
        A(f"s_cmp_lg_u32 s{sLAYER}, 0\ns_cbranch_scc1 {l}")
        A.cond_begin()
        A(f"v_lshlrev_b32 v{vP0}, 2, v0\ns_mov_b32 s{T0+2}, 0x40404040")
        self.poll(srd(SDBG),'0',None,mask=f"s{T0+2}")
        A.cond_end(); A.label(l)
        A(f"""s_lshl_b32 s{T0+2}, s{sCW}, 16
        s_lshl_b32 s{T0+3}, s{sW}, 14
        s_add_u32 s{T0+2}, s{T0+2}, s{T0+3}
        s_add_u32 s{T0+2}, s{T0+2}, {LY.WOT}""")
        for i in range(16):
            if i%4==0 and i: A(f"s_add_u32 s{T0+2}, s{T0+2}, 4096")
            A(f"buffer_load_dwordx4 {v(WW+i*4,4)}, v{vL16}, {WS}, s{T0+2} offen offset:{(i%4)*1024} sc1")
    def prefetch_ring(self):
        A=self.A
        A(f"""s_mul_i32 s{T0+2}, s{sC}, {33*7168}
        s_mul_i32 s{T0+3}, s{sW}, 7168
        s_add_u32 s{T0+2}, s{T0+2}, s{T0+3}
        s_add_u32 s{T0+2}, s{T0+2}, {LY.WGU}""")
        for g in range(4):
            for b in range(7):
                if b in (0,4): A(f"s_add_u32 s{T0+4}, s{T0+2}, {g*4*7168+b*1024}\ns_add_u32 m0, s{T0+3}, {g*4*7168+b*1024}")
                self.dma(vL16,WS,f"s{T0+4}",0,off=(b%4)*1024,m0set=False)
    def prefetch_wd(self):
        A=self.A
        l=A.newlabel('L_pf')
        A(f"s_cmp_lg_u32 s{sLAYER}, 0\ns_cbranch_scc1 {l}")
        A.cond_begin()
        A(f"""s_mul_i32 s{T0+2}, s{sCW}, {112*2048}
        s_mul_i32 s{T0+3}, s{sW}, {28*2048}
        s_add_u32 s{T0+2}, s{T0+2}, s{T0+3}
        s_add_u32 s{T0+2}, s{T0+2}, {LY.WDT}""")
        for i in range(56):
            if i%4==0 and i: A(f"s_add_u32 s{T0+2}, s{T0+2}, 4096")
            A(f"buffer_load_dwordx4 {a(i*4,4)}, v{vL16}, {WS}, s{T0+2} offen offset:{(i%4)*1024} sc1")
        A.cond_end(); A.label(l)
    def red_write(self,acc):
        A=self.A
        for cb in range(2):
            for rq in range(4): A(f"ds_write_b128 v{vRWR}, {v(acc+cb*16+rq*4,4)} offset:{cb*4608+rq*1152}")
        A("s_waitcnt lgkmcnt(0)\ns_barrier")
    def red_read(self,R):
        A=self.A
        for p in range(4):
            for e in range(2): A(f"ds_read_b128 {v(R+(p*2+e)*4,4)}, v{vRRD} offset:{p*9216+e*512}")
    def red_fin(self,rnd,R,scale,down):
        A=self.A; rs=RES+rnd*4; L=[]
        for n in range(8): L.append(f"v_add_f32 v{R+n}, v{R+n}, v{R+8+n}")
        for n in range(8): L.append(f"v_add_f32 v{R+16+n}, v{R+16+n}, v{R+24+n}")
        for n in range(4): L.append(f"v_lshlrev_b32 v{R+8+2*n}, 16, v{rs+n}"); L.append(f"v_and_b32 v{R+9+2*n}, 0xffff0000, v{rs+n}")
        for n in range(8): L.append(f"v_add_f32 v{R+n}, v{R+n}, v{R+16+n}")
        for n in range(8):
            L.append(f"v_fma_f32 v{R+n}, v{R+n}, v{scale}, v{R+8+n}" if scale is not None else f"v_add_f32 v{R+n}, v{R+n}, v{R+8+n}")
        for n in range(4): L.append(f"v_cvt_pk_bf16_f32 v{rs+n}, v{R+2*n}, v{R+2*n+1}")
        return L
    def red_store(self,rnd,R,down):
        A=self.A; rs=RES+rnd*4; tb=sTBA if rnd==0 else sTBB
        xo,so=(LY.XF+LY.LBS,LY.STX+LY.LBS) if down else (LY.X1F,LY.ST1)
        if down:
            lf=A.newlabel('L_fin'); ld=A.newlabel('L_fd')
            A(f"s_cmp_lg_u32 s{sLAYER}, 0\ns_cbranch_scc1 {lf}")
            A.cond_begin()
        A(f"""s_lshl_b32 s{T0+2}, s{tb}, 15
        s_lshl_b32 s{T0+3}, s{sCW}, 12
        s_add_u32 s{T0+2}, s{T0+2}, s{T0+3}
        s_add_u32 s{T0+2}, s{T0+2}, s{sLB}
        s_add_u32 s{T0+2}, s{T0+2}, {xo}
        buffer_store_dwordx4 {v(rs,4)}, v{vXST}, {WS}, s{T0+2} offen
        v_mov_b32 v{R}, 0
        v_mov_b32 v{R+1}, 0""")
        for n in range(4): A(f"v_dot2c_f32_bf16 v{R}, s{sONE}, v{rs+n}\nv_dot2c_f32_bf16 v{R+1}, v{rs+n}, v{rs+n}")
        A(f"""s_lshl_b32 s{T0+2}, s{tb}, 11
        s_lshl_b32 s{T0+3}, s{sCW}, 2
        s_add_u32 s{T0+2}, s{T0+2}, s{T0+3}
        s_add_u32 s{T0+2}, s{T0+2}, s{sLB}
        s_add_u32 s{T0+2}, s{T0+2}, {so}
        v_add_f32_dpp v{R}, v{R}, v{R} row_ror:8 row_mask:0xf bank_mask:0xf
        v_add_f32_dpp v{R+1}, v{R+1}, v{R+1} row_ror:8 row_mask:0xf bank_mask:0xf
        v_permlane16_swap_b32 v{R}, v{R+1}
        v_add_f32 v{R}, v{R}, v{R+1}
        v_mov_b32 v{R+1}, v{R}
        v_permlane32_swap_b32 v{R}, v{R+1}
        v_add_f32 v{R}, v{R}, v{R+1}""")
        tg=A(f"buffer_store_dword v{R}, v{vSST}, {WS}, s{T0+2} offen")
        self.publish((F_DNA if down else F_WOA)+rnd,tg)
        if down:
            A(f"s_branch {ld}")
            A.cond_end(); A.label(lf); A.cond_begin()
            A(f"""s_lshl_b32 s{T0+2}, s{tb}, 15
            s_lshl_b32 s{T0+3}, s{sCW}, 7
            s_add_u32 s{T0+2}, s{T0+2}, s{T0+3}
            buffer_store_dwordx4 {v(rs,4)}, v{vROW}, {srd(SOUT)}, s{T0+2} offen""")
            A.cond_end(); A.label(ld)
    def wo(self):
        A=self.A; WW=172; FR=24; ACC=88
        A(f"""s_lshl_b32 s{T0+2}, s{sW}, 7
        s_lshl_b32 s{T0+3}, s{sTQ}, 2
        s_add_u32 s{T0+2}, s{T0+2}, s{T0+3}
        v_and_b32 v{vP0}, 7, v0
        v_lshlrev_b32 v{vP0}, 4, v{vP0}
        v_add_u32 v{vP0}, s{T0+2}, v{vP0}
        s_add_u32 s{T0+3}, s{sFB}, {F_ATT}""")
        self.poll(WS,f"s{sTF}",f"s{T0+3}"); self.acquire()
        self.stamp('wo.rdy')
        for rnd,tb in enumerate((sTBA,sTBB)):
            A(f"""s_lshl_b32 s{T0+2}, s{tb}, 15
            s_lshl_b32 s{T0+3}, s{sW}, 13
            s_add_u32 s{T0+2}, s{T0+2}, s{T0+3}
            s_add_u32 s{T0+2}, s{T0+2}, s{sLB}
            s_add_u32 s{T0+2}, s{T0+2}, {LY.OF}
            s_add_u32 s{T0+3}, s{T0+2}, 4096""")
            for k in range(8): A(f"buffer_load_dwordx4 {v(FR+rnd*32+k*4,4)}, v{vL16}, {WS}, s{T0+2+k//4} offen offset:{(k%4)*1024} sc1")
        self.prefetch_ring()
        def mm(rnd,fill):
            for k in range(8):
                for cb in range(2):
                    acc=v(ACC+rnd*32+cb*16,16)
                    A(f"{MF} {acc}, {v(WW+(k*2+cb)*4,4)}, {v(FR+rnd*32+k*4,4)}, {acc if k else '0'}")
                    for _ in range(4):
                        if fill and k>=2: A(fill.pop(0))
            while fill: A(fill.pop(0))
        mm(0,[])
        self.red_write(ACC); self.red_read(FR)
        mm(1,self.red_fin(0,FR,None,False))
        self.red_store(0,FR,False)
        A("s_barrier")
        self.red_write(ACC+32); self.red_read(FR+32)
        for t in self.red_fin(1,FR+32,None,False): A(t)
        self.red_store(1,FR+32,False)
        self.stamp('wo.pub')
    def gu(self):
        A=self.A; ACC=24; WF=136; XR=192; AM=224
        self.xpoll_setup()
        A(f"s_add_u32 s{T0+3}, s{sTH}, {F_WOA}\ns_add_u32 s{T0+3}, s{T0+3}, s{sFB}")
        self.poll(WS,f"s{sTF}",f"s{T0+3}"); self.acquire()
        A("s_barrier")
        self.stamp('gu.rdy')
        sX=T0+2; sG=T0+3; sR=T0+4; sI=T0+5; sTMP=T0+6
        A(f"""s_lshl_b32 s{sX}, s{sTB}, 11
        s_add_u32 s{sX}, s{sX}, s{sLB}
        s_add_u32 s{sX}, s{sX}, {LY.ST1}
        buffer_load_dwordx4 {v(WF+28,4)}, v{vSLD}, {WS}, s{sX} offen sc1
        buffer_load_dwordx4 {v(WF+32,4)}, v{vSLD}, {WS}, s{sX} offen offset:16 sc1
        s_lshl_b32 s{sX}, s{sTB}, 15
        s_add_u32 s{sX}, s{sX}, s{sLB}
        s_add_u32 s{sX}, s{sX}, {LY.X1F}""")
        def xl(ks):
            L=[]
            if ks%4==0 and ks: L.append(f"s_add_u32 s{sX}, s{sX}, 4096")
            L.append(f"buffer_load_dwordx4 {v(XR+(ks%16)*4,4)}, v{vL16}, {WS}, s{sX} offen offset:{(ks%4)*1024} sc1")
            return L
        for ks in range(16):
            for t in xl(ks): A(t)
        A(f"""s_mul_i32 s{sG}, s{sC}, {33*7168}
        s_mul_i32 s{sR}, s{sW}, 7168
        s_add_u32 s{sG}, s{sG}, {LY.WGU}
        s_mul_i32 s{sI}, s{sC}, 98304
        s_add_u32 s{sI}, s{sI}, s{sR}
        s_add_u32 s{sI}, s{sI}, {LY.WQI}
        v_add_u32 v{vT0}, 57344, v{vL16}
        v_add_u32 v{vT1}, {GAUG}, v{vL16}""")
        A(f"""s_lshl_b32 s{sTMP}, s{sW}, 11
        s_add_u32 m0, s{sTMP}, {GAUG}
        s_add_u32 s{sTMP}, s{sTMP}, s{sG}
        s_add_u32 s{sTMP}, s{sTMP}, {32*7168}""")
        for j in range(2): self.dma(vL16,WS,f"s{sTMP}",0,off=j*1024,m0set=False)
        A(f"s_add_u32 s{sG}, s{sG}, s{sR}")
        def rd(ks,b):
            r=v(WF+(ks&1)*28+b*4,4)
            if ks==32: return f"ds_read_b128 {r}, v{vT1} offset:{b*1024}"
            sl=ks%16
            return f"ds_read_b128 {r}, v{vL16 if sl<8 else vT0} offset:{(sl%8)*7168+b*1024}"
        for b in range(7): A(rd(0,b))
        self.sum8(WF+28)
        A(f"v_mov_b32 v{WF+29}, v{WF+28}\nv_permlane32_swap_b32 v{WF+28}, v{WF+29}\nv_mul_f32 v{WF+28}, 0x3b000000, v{WF+28}\nv_cvt_pk_bf16_f32 v{WF+28}, -v{WF+28}, -v{WF+28}")
        for r in range(4): A(f"v_accvgpr_write_b32 a{AM+r}, v{WF+28}")
        dq=[]; dtag={}
        def queue_dma(n):
            for b in range(7):
                g=[]
                if n<=4:
                    o=(n+3)*4*7168+b*1024; lo=((n+3)%4)*4*7168+b*1024
                    if b in(0,4): g+= [f"s_add_u32 s{sTMP}, s{sG}, {o}",f"s_add_u32 m0, s{sR}, {lo}"]
                    g.append(('tag',n+3,f"buffer_load_dwordx4 v{vL16}, {WS}, s{sTMP} offen offset:{(b%4)*1024} sc1 lds"))
                dq.append(g)
        def img(n):
            l=A.newlabel('L_im')
            A(f"s_cmp_lg_u32 s{sLAYER}, 0\ns_cbranch_scc1 {l}")
            A.cond_begin()
            if n<8:
                for b in range(7):
                    o=(n-5)*28672+b*1024
                    if b in(0,4): A(f"s_add_u32 s{sTMP}, s{sI}, {o}\ns_add_u32 m0, s{sR}, {o}")
                    self.dma(vL16,WS,f"s{sTMP}",0,off=(b%4)*1024,m0set=False)
            else:
                A(f"""s_mul_i32 s{sTMP}, s{sW}, 4096
                s_sub_u32 s{sI}, s{sI}, s{sTMP}
                s_sub_u32 s{sTMP}, s{sR}, s{sTMP}
                s_add_u32 m0, s{sTMP}, 86016
                s_add_u32 s{sTMP}, s{sI}, 86016""")
                for b in range(3): self.dma(vL16,WS,f"s{sTMP}",0,off=b*1024,m0set=False)
            A.cond_end(); A.label(l)
        for ks in range(33):
            x=v(XR+(ks%16)*4,4) if ks<32 else a(AM,4)
            bar=(ks%4==3)
            rq=[rd(ks+1,b) for b in range(7)] if ks<32 else []
            for b in range(7):
                acc=v(ACC+b*16,16)
                A(f"{MF} {acc}, {v(WF+(ks&1)*28+b*4,4)}, {x}, {acc if ks else '0'}")
                if bar:
                    if b==1:
                        n=(ks+1)//4
                        if n in dtag: A.wait_vm(dtag[n])
                        A("s_waitcnt lgkmcnt(0)\ns_barrier")
                        if n<=4: queue_dma(n)
                        else: img(n)
                    if b>=1:
                        for _ in range(2):
                            if rq: A(rq.pop(0))
                elif rq: A(rq.pop(0))
                if b in (2,5) and dq:
                    for t in dq.pop(0):
                        if isinstance(t,tuple): dtag[t[1]]=A(t[2])
                        else: A(t)
            if ks<16:
                for t in xl(ks+16): A(t)
        self.stamp('gu.mm')
        A(f"""s_mul_i32 s{sX}, s{sTB}, {112*1024}
        s_mul_i32 s{sTMP}, s{sC}, 7168
        s_add_u32 s{sX}, s{sX}, s{sTMP}
        s_add_u32 s{sX}, s{sX}, s{sLB}
        s_add_u32 s{sX}, s{sX}, {LY.HF}
        s_add_u32 s{sTMP}, s{sX}, 4096""")
        for b in range(7):
            g=ACC+b*16
            for r in range(8): A(f"v_max_f32 v{g+r}, 0, v{g+r}")
            for r in range(8): A(f"v_mul_f32 v{g+r}, v{g+r}, v{g+8+r}")
            for r in range(4): A(f"v_cvt_pk_bf16_f32 v{XR+b*4+r}, v{g+2*r}, v{g+2*r+1}")
            tg=A(f"buffer_store_dwordx4 {v(XR+b*4,4)}, v{vL16}, {WS}, s{sX if b<4 else sTMP} offen offset:{(b%4)*1024}")
        self.publish(F_GU,tg)
        self.stamp('gu.pub')
    def down(self):
        A=self.A; ACC=24; FR=88; R2=248; NS=40
        A(f"""s_lshl_b32 s{T0+2}, s{sW}, 7
        s_lshl_b32 s{T0+3}, s{sTQ}, 2
        s_sub_u32 s{T0+4}, 28, s{T0+3}
        v_and_b32 v{vP0}, 3, v0
        v_lshlrev_b32 v{vP0}, 5, v{vP0}
        v_add_u32 v{vP0}, s{T0+2}, v{vP0}
        v_mov_b32 v{vT0}, s{T0+3}
        v_mov_b32 v{vT1}, s{T0+4}
        v_and_b32 v{vP1}, 4, v0
        v_cmp_ne_u32 vcc, 0, v{vP1}
        v_cndmask_b32 v{vT0}, v{vT0}, v{vT1}, vcc
        v_add_u32 v{vP0}, v{vP0}, v{vT0}
        s_add_u32 s{T0+3}, s{sFB}, {F_GU}""")
        self.poll(WS,f"s{sTF}",f"s{T0+3}"); self.acquire()
        self.stamp('dn.rdy')
        SB=ACC+32
        for rnd,tb in enumerate((sTBA,sTBB)):
            A(f"""s_lshl_b32 s{T0+2}, s{tb}, 11
            s_add_u32 s{T0+2}, s{T0+2}, s{sLB}
            s_add_u32 s{T0+2}, s{T0+2}, {LY.ST1}
            buffer_load_dwordx4 {v(SB+rnd*8,4)}, v{vDSL}, {WS}, s{T0+2} offen sc1
            buffer_load_dwordx4 {v(SB+rnd*8+4,4)}, v{vDSL}, {WS}, s{T0+2} offen offset:16 sc1""")
        class Cap:
            def __init__(s_): s_.L=[]
            def __call__(s_,t): s_.L+= [x.strip() for x in t.split('\n') if x.strip()]
        cap=Cap(); self.A=cap
        cap(f"v_and_b32 v{vT0}, 8, v0\nv_cmp_ne_u32 vcc, 0, v{vT0}")
        for rnd in range(2):
            b=SB+rnd*8
            self.sum8(b)
            cap(f"""v_mov_b32_dpp v{b+1}, v{b} row_ror:8 row_mask:0xf bank_mask:0xf
            v_cndmask_b32 v{b+2}, v{b}, v{b+1}, vcc
            v_cndmask_b32 v{b+3}, v{b+1}, v{b}, vcc""")
            self.ln_scalars(b+2,b+3,None,R2+rnd,b+4)
            cap(f"v_mul_f32 v{R2+rnd}, v{R2+rnd}, v{R2+rnd}")
        self.A=A
        for rnd,tb in enumerate((sTBA,sTBB)):
            A(f"""s_mul_i32 s{T0+6+rnd}, s{tb}, {112*1024}
            s_mul_i32 s{T0+3}, s{sW}, {28*1024}
            s_add_u32 s{T0+6+rnd}, s{T0+6+rnd}, s{T0+3}
            s_add_u32 s{T0+6+rnd}, s{T0+6+rnd}, s{sLB}
            s_add_u32 s{T0+6+rnd}, s{T0+6+rnd}, {LY.HF}""")
        def ld(i):
            rnd,k=divmod(i,28)
            if k%4==0 and k: A(f"s_add_u32 s{T0+6+rnd}, s{T0+6+rnd}, 4096")
            A(f"buffer_load_dwordx4 {v(FR+(i%NS)*4,4)}, v{vL16}, {WS}, s{T0+6+rnd} offen offset:{(k%4)*1024} sc1")
        for i in range(NS): ld(i)
        def mm(rnd,fill):
            for k in range(28):
                i=rnd*28+k
                for cb in range(2):
                    acc=v(ACC+rnd*32+cb*16,16)
                    A(f"{MF} {acc}, {a((k*2+cb)*4,4)}, {v(FR+(i%NS)*4,4)}, {acc if k else '0'}")
                    for _ in range(2):
                        if fill and k>=2: A(fill.pop(0))
                if i+NS<56: ld(i+NS)
                if rnd==1 and k==18: self.red_store(0,FR+64,True)
        mm(0,cap.L); assert not cap.L
        self.red_write(ACC); self.red_read(FR+64)
        mm(1,self.red_fin(0,FR+64,R2,True))
        A("s_barrier")
        self.red_write(ACC+32); self.red_read(FR+64)
        for t in self.red_fin(1,FR+64,R2+1,True): A(t)
        self.red_store(1,FR+64,True)
        self.stamp('dn.pub')
    def build(self):
        A=self.A
        self.prologue()
        A.flush_hz(); A.label('L_layer'); A.forget()
        save=(A.L,A.H,self.stn,self.tail,A._n); A.L=[]; A.H=list(A.H); self.stn=[]; self.tail=[]
        self.qkv_head2(); q=(list(A.vmq)); A.L,A.H,self.stn,self.tail,A._n=save; A.vmq=q; A.lgq=[]
        self.qkv(); self.maybe_stop('qkv')
        l=A.newlabel('L_pp'); A(f"s_cmp_lg_u32 s{sLAYER}, 0\ns_cbranch_scc1 {l}")
        sv=(A.vmq,A.lgq); A.vmq=[];A.lgq=[]
        self.prepass_store(); A.vmq,A.lgq=sv; A.label(l)
        self.maybe_stop('pp')
        self.att(); self.maybe_stop('att')
        self.prefetch_w(); self.prefetch_wd()
        self.wo(); self.maybe_stop('wo')
        self.gu(); self.maybe_stop('gu')
        self.down(); self.maybe_stop('dn')
        A(f"s_cmp_lg_u32 s{sLAYER}, 0\ns_cbranch_scc1 L_done")
        A(f"s_mov_b32 s{sLAYER}, 1\ns_add_u32 s{sLB}, s{sLB}, {LY.LBS}\ns_mov_b32 s{sFB}, 8")
        self.qkv_head2()
        A.flush_hz(); A("s_branch L_layer")
        A.label('L_done'); self.end()
        A.label('L_exit'); A("s_endpgm")
        for t in self.tail: A.raw(t)
        hdr=f"""; generated by gen/gen_k.py
; @launch grid=(256,1,1) block=(256,1,1) lds=163840
.amdgcn_target "amdgcn-amd-amdhsa--gfx950"
.text
.globl {NAME}_kernel
.p2align 8
.type {NAME}_kernel,@function
{NAME}_kernel:
"""
        kd=f""".section .rodata,"a"
.p2align 6
.amdhsa_kernel {NAME}_kernel
  .amdhsa_next_free_vgpr 512
  .amdhsa_next_free_sgpr 102
  .amdhsa_accum_offset 256
  .amdhsa_group_segment_fixed_size 0
  .amdhsa_kernarg_size 80
  .amdhsa_user_sgpr_count 2
  .amdhsa_user_sgpr_kernarg_segment_ptr 1
  .amdhsa_system_sgpr_workgroup_id_x 1
.end_amdhsa_kernel
"""
        return hdr+A.text()+kd
if __name__=='__main__':
    o=dict(x.split('=') for x in sys.argv[2:])
    g=G(stop=o.get('stop'),stamps=bool(int(o.get('stamps','0'))),force_mixed=bool(int(o.get('mixed','0'))))
    t=g.build(); open(sys.argv[1],'w').write(t)
    print('lines',t.count('\n'),'auto nops',g.A.nops,'stamps',','.join(g.stn))
```

```python
import numpy as np
FLAGS=0x0; HFLAGS=0x1000; STAMPS=0x10000
WGU=0x100000; WDT=0x500000; WOT=0x700000; WQI=0x800000
LB0=0x1000000; LBS=0x2000000
XF=0x000000; QF=0x200000; KF=0x400000; VF=0x600000; KH=0x800000; VH=0xA00000; OF=0xC00000; X1F=0xE00000
HF=0x1000000; STX=0x1800000; ST1=0x1840000
WS_USED=LB0+2*LBS
def f32(u): return (u.astype(np.uint32)<<16).view(np.float32)
NAT=np.array([[8*h+j for j in range(8)] for h in range(2)])
PER=np.array([[(j>>2)*8+4*h+(j&3) for j in range(8)] for h in range(2)])
def frags(w,off,n):
    return f32(w[off:off+n*1024].view(np.uint16)).reshape(n,2,32,8)
def unfrag(F,m):
    sh=F.shape[:-3]; out=np.zeros(sh+(F.shape[-2],16),np.float32)
    for h in range(2):
        for j in range(8): out[...,m[h][j]]=F[...,h,:,j]
    return out
def decode(w,n,L,I):
    lb=LB0+L*LBS; R=[]
    if n=='qkv':
        qkv=I[f'qkv{L}'].float().numpy()
        for nm,off,c0,sc in (('Q',QF,0,0.25*1.4426950408889634),('K',KF,512,1),('KH',KH,512,1)):
            F=unfrag(frags(w,lb+off,2048).reshape(8,32,8,2,32,8),PER)
            M=F.transpose(0,2,3,1,4).reshape(2048,512)
            R.append((nm,M,qkv[:,c0:c0+512]*sc))
        for nm,off in (('V',VF),('VH',VH)):
            F=f32(w[lb+off:lb+off+2048*1024].view(np.uint16)).reshape(8,32,8,2,2,16,8)
            U=unfrag(F,PER)
            M=U.transpose(0,2,3,5,1,4).reshape(2048,512)
            R.append((nm,M,qkv[:,1024:]))
    elif n=='o':
        F=unfrag(frags(w,lb+OF,2048).reshape(64,32,2,32,8),PER)
        R.append(('O',F.transpose(0,2,1,3).reshape(2048,512),I[f'o{L}']))
    elif n in('x1','x'):
        off,so=(X1F,ST1) if n=='x1' else (XF,STX)
        F=unfrag(frags(w,lb+off,2048).reshape(64,32,2,32,8),NAT)
        M=F.transpose(0,2,1,3).reshape(2048,512)
        R.append((n,M,I[f'{n}{L}']))
        st=w[lb+so:lb+so+2048*64].view(np.float32).reshape(2048,2,8).sum(-1)
        R.append(('stats',st,np.stack([M.sum(1),(M*M).sum(1)],1)))
    elif n=='h':
        F=unfrag(frags(w,lb+HF,64*112).reshape(64,112,2,32,8),PER)
        M=F.transpose(0,2,1,3).reshape(2048,1792)
        r=I[f'r1{L}'].numpy()
        R.append(('H',M*(r*r)[:,None],I[f'h{L}']))
    return R
def check_weights(w,W):
    R=[]
    F=unfrag(frags(w,WGU,16*33*7).reshape(16,33,7,2,32,8),NAT)
    G=F[:,:32,:,:16,:].transpose(1,4,0,2,3).reshape(512,1792); U=F[:,:32,:,16:,:].transpose(1,4,0,2,3).reshape(512,1792)
    R.append(('Wg',G,W['B_W_gate'])); R.append(('Wu',U,W['B_W_up']))
    cs=F[:,32].sum(-1)
    R.append(('csg',cs[:,:,:16].reshape(1,1792),W['B_W_gate'].sum(0)[None])); R.append(('csu',cs[:,:,16:].reshape(1,1792),W['B_W_up'].sum(0)[None]))
    F=unfrag(frags(w,WDT,8*112*2).reshape(8,112,2,2,32,8),PER)
    R.append(('Wd',F.transpose(1,4,0,2,3).reshape(1792,512),W['B_W_down']))
    F=unfrag(frags(w,WOT,8*32*2).reshape(8,32,2,2,32,8),PER)
    R.append(('Wo',F.transpose(1,4,0,2,3).reshape(512,512),W['A_wo']))
    Q=f32(w[WQI:WQI+16*98304].view(np.uint16)).reshape(16,512,3,32).transpose(1,2,0,3).reshape(512,1536)
    R.append(('WQI',Q,W['A_wqkv']))
    return R
def stamps(w,names,cyc=False):
    names=names.split(',')
    S=w[STAMPS:STAMPS+256*4*64*4].view(np.uint32).reshape(256,4,64).astype(np.int64)
    t0=S[:,:,0].min()
    prev=None
    for i,nm in enumerate(names):
        if cyc:
            x=(S[:,:,i]-S[:,:,0])&0xffffffff
            d='' if prev is None else f'   dur min {np.min(x-prev)} med {int(np.median(x-prev))} max {np.max(x-prev)}'
            print(f'  {nm:10s} {int(np.median(x)):7d}{d}')
        else:
            x=(S[:,:,i]-t0)*0.01
            d='' if prev is None else f'   dur med {np.median(x-prev):.2f} max {np.max(x-prev):.2f}'
            print(f'  {nm:10s} {x.min():7.2f} {np.median(x):7.2f} {x.max():7.2f}{d}')
        prev=x
```

```python
import sys
sys.path.insert(0,'gen')
from asm2 import *
import layout as LY
NAME='interleave_layers__sliding_block__glu_gated_reglu__prompt'
MF='v_mfma_f32_32x32x16_bf16'
SX,SWQ,SWS,SOUT,SDBG,SWO,SWG,SWU,SWD=8,12,16,20,24,28,32,36,40
sTEAM,sSLOT,sW,sTH,sC,sTQ,sCW,sMODE,sLB,sFB,sMYF,sTF,sTO,sONE,sXCC,sTB,sTBA,sTBB,sLAYER,sSTI=range(44,64)
T0=84
sST=100
vL,vL16,RES,vTR,vSTMP,vVST,vRRD,vRWR,vXST,vROW,vSST,vSLD,vDSL,vP0,vP1,vT0,vT1=0,1,2,10,11,12,13,14,15,16,17,18,19,20,21,22,23
SLOTB=7168; XS=98304; PP=131072; SCR=114688; AK=100352; AV=AK+16384; AO=AV+16384; AUG=159744; RB=AUG+3072; GAUG=SCR
F_QKV,F_ATT,F_WOA,F_WOB,F_GU,F_DNA,F_DNB=1,2,3,4,5,6,7
def srd(i): return s(i,4)
WS=srd(SWS)

class G:
    def __init__(self,stop=None,stamps=False,force_mixed=False,o={}):
        self.o=o
        self.A=Asm(); self.stop=stop; self.stamps=stamps; self.force_mixed=force_mixed; self.tail=[]; self.nst=0; self.tm="s_memtime" if stamps==2 else "s_memrealtime"; self.stn=[]
    def stamp(self,name):
        if not self.stamps: return
        A=self.A
        A(f"s_waitcnt lgkmcnt(0)\ns_mov_b32 m0, s{sSTI}\nv_writelane_b32 v{vSTMP}, s{sST}, m0\ns_add_u32 s{sSTI}, s{sSTI}, 1\n{self.tm} {s(sST,2)}")
        self.stn.append(name)
    def end(self):
        A=self.A
        if self.stamps:
            self.stamp('end-')
            A(f"""s_lshl_b32 s{T0}, s2, 2
            s_add_u32 s{T0}, s{T0}, s{sW}
            s_lshl_b32 s{T0}, s{T0}, 8
            s_add_u32 s{T0}, s{T0}, {LY.STAMPS}
            v_lshlrev_b32 v{vT0}, 2, v{vL}
            buffer_store_dword v{vSTMP}, v{vT0}, {WS}, s{T0} offen""")
        A("s_endpgm")
    def maybe_stop(self,name):
        if self.stop and self.stop[:-1]==name:
            A=self.A; l=A.newlabel('L_go')
            A(f"s_cmp_lg_u32 s{sLAYER}, {self.stop[-1]}\ns_cbranch_scc1 {l}")
            A.cond_begin(); n=len(self.stn); self.end(); del self.stn[n:]; A.cond_end(); A.label(l)
    def poll(self,srd_,soff,target,cmpop='gt',mask=None):
        A=self.A; l=A.newlabel('L_poll'); d=A.newlabel('L_ok')
        A.flush_hz(); A.label(l)
        A(f"buffer_load_dword v{vP1}, v{vP0}, {srd_}, {soff} offen sc1\ns_waitcnt vmcnt(0)")
        if mask is not None:
            A(f"v_and_b32 v{vP1}, {mask}, v{vP1}\nv_cmp_ne_u32 vcc, {mask}, v{vP1}")
        else:
            A(f"v_cmp_gt_u32 vcc, {target}, v{vP1}")
        A(f"s_cbranch_vccz {d}\ns_sub_u32 s{sTO}, s{sTO}, 1\ns_cbranch_scc0 {l}\ns_endpgm")
        A.label(d)
    def acquire(self):
        A=self.A; b=A.newlabel('L_acq'); r=A.newlabel('L_acr')
        A(f"s_cmp_lg_u32 s{sMODE}, 0\ns_cbranch_scc1 {b}"); A.label(r)
        self.tail.append(f"{b}:\n    buffer_inv sc1\n    s_waitcnt vmcnt(0)\n    s_branch {r}")
    def publish(self,val,tag):
        A=self.A; b=A.newlabel('L_pub'); r=A.newlabel('L_pur')
        A(f"s_add_u32 s{T0+15}, s{sFB}, {val}\nv_mov_b32 v{vP1}, s{T0+15}")
        A.wait_vm(tag)
        A(f"s_mov_b64 exec, 1\ns_cmp_lg_u32 s{sMODE}, 0\ns_cbranch_scc1 {b}")
        A(f"buffer_store_dword v{vP1}, off, {WS}, s{sMYF}"); A.label(r)
        A("s_mov_b64 exec, -1")
        self.tail.append(f"{b}:\n    buffer_wbl2 sc1\n    s_waitcnt vmcnt(0)\n    buffer_store_dword v{vP1}, off, {WS}, s{sMYF} sc1\n    s_branch {r}")
    def cap(self,fn):
        class Cap:
            def __init__(s_): s_.L=[]
            def __call__(s_,x): s_.L+= [y.strip() for y in x.split('\n') if y.strip() and not y.strip().startswith(';')]
        A=self.A; c=Cap(); self.A=c
        try: fn()
        finally: self.A=A
        return c.L
    def pop(self,q,n=1):
        for _ in range(n):
            if not q: return
            g=q.pop(0)
            if callable(g): g()
            elif isinstance(g,(list,tuple)):
                for x in g: self.A(x)
            else: self.A(g)
    def l0(self,fn):
        A=self.A; l=A.newlabel('L_l0')
        A(f"s_cmp_lg_u32 s{sLAYER}, 0\ns_cbranch_scc1 {l}")
        A.cond_begin(); fn(); A.cond_end(); A.label(l)
    def try_issue(self,srd_,soff,dst,off):
        self.A(f"buffer_load_dword v{dst}, v{off}, {srd_}, {soff} offen sc1")
    def try_check(self,srd_,soff,dst,off,target,mask=False):
        A=self.A; l=A.newlabel('L_poll'); d=A.newlabel('L_ok')
        def test():
            if mask: return f"v_and_b32 v{vT1}, {target}, v{dst}\nv_cmp_ne_u32 vcc, {target}, v{vT1}"
            return f"v_cmp_gt_u32 vcc, {target}, v{dst}"
        A(test()); A(f"s_cbranch_vccnz {l}"); A.label(d)
        body=f"""{l}:
    s_nop 4
    buffer_load_dword v{dst}, v{off}, {srd_}, {soff} offen sc1
    s_waitcnt vmcnt(0)
"""+"".join("    "+x+"\n" for x in test().split("\n"))+f"""    s_nop 1
    s_cbranch_vccz {d}
    s_sub_u32 s{sTO}, s{sTO}, 1
    s_cbranch_scc0 {l}
    s_endpgm"""
        self.tail.append(body)
    def ln_scalars(self,vs,vq,vm,vr,t):
        A=self.A
        A(f"""v_mul_f32 v{vs}, 0x3b000000, v{vs}
        v_mul_f32 v{vq}, 0x3b000000, v{vq}
        v_fma_f32 v{vq}, -v{vs}, v{vs}, v{vq}
        v_max_f32 v{vq}, 0, v{vq}""")
        if vm is not None: A(f"v_cvt_pk_bf16_f32 v{vm}, -v{vs}, -v{vs}")
        if vr is not None:
            A(f"""v_cvt_pk_bf16_f32 v{t}, v{vq}, v{vq}
            v_and_b32 v{t}, 0xffff0000, v{t}
            v_add_f32 v{t}, 0x3727c5ac, v{t}
            v_cvt_pk_bf16_f32 v{t}, v{t}, v{t}
            v_and_b32 v{t}, 0xffff0000, v{t}
            v_sqrt_f32 v{t}, v{t}
            v_cvt_pk_bf16_f32 v{t}, v{t}, v{t}
            v_and_b32 v{t}, 0xffff0000, v{t}
            v_rcp_f32 v{vr}, v{t}""")
    def sum8(self,b):
        A=self.A
        A(f"""v_add_f32 v{b}, v{b}, v{b+1}
        v_add_f32 v{b+2}, v{b+2}, v{b+3}
        v_add_f32 v{b+4}, v{b+4}, v{b+5}
        v_add_f32 v{b+6}, v{b+6}, v{b+7}
        v_add_f32 v{b}, v{b}, v{b+2}
        v_add_f32 v{b+4}, v{b+4}, v{b+6}
        v_add_f32 v{b}, v{b}, v{b+4}""")
    def dma(self,voff,srd_,soff,ldsbase,off=0,sc1=True,m0set=True):
        A=self.A
        if m0set: A(f"s_mov_b32 m0, {ldsbase}" if isinstance(ldsbase,int) else f"s_mov_b32 m0, {ldsbase}")
        return A(f"buffer_load_dwordx4 v{voff}, {srd_}, {soff} offen"+(f" offset:{off}" if off else "")+(" sc1" if sc1 else "")+" lds")
    def prologue(self):
        A=self.A
        A(f"""s_cmp_ge_u32 s2, 256
        s_cbranch_scc1 L_exit
        s_load_dwordx16 s[64:79], s[0:1], 0
        s_load_dwordx4 s[80:83], s[0:1], 64""")
        if int(self.o.get('touch',1)):
            A("s_getpc_b64 s[4:5]"); A.label("L_pc")
            A("v_lshlrev_b32 v2, 7, v0")
            for i in range(2):
                A(f"v_add_u32 v3, {i*32768}, v2\nv_min_u32 v3, L_end-L_pc-4, v3\nglobal_load_dword v{254+i}, v3, s[4:5]")
        if self.stamps: A(f"{self.tm} {s(sST,2)}\ns_mov_b32 s{sSTI}, 0\nv_mov_b32 v{vSTMP}, 0"); self.stn.append('start')
        A(f"""v_lshrrev_b32 v2, 6, v0
        v_and_b32 v0, 63, v0
        v_readfirstlane_b32 s{sW}, v2
        v_lshlrev_b32 v{vL16}, 4, v0
        s_and_b32 s{sTEAM}, s2, 7
        s_lshr_b32 s{sSLOT}, s2, 3
        s_and_b32 s{sTH}, s{sSLOT}, 1
        s_lshr_b32 s{sC}, s{sSLOT}, 1
        s_and_b32 s{sTQ}, s{sSLOT}, 3
        s_lshr_b32 s{sCW}, s{sSLOT}, 2
        s_mov_b32 s{sLB}, {LY.LB0}
        s_mov_b32 s{sFB}, 0
        s_mov_b32 s{sLAYER}, 0
        s_mov_b32 s{sTO}, 400000
        s_mov_b32 s{sONE}, 0x3f803f80
        s_getreg_b32 s{sXCC}, hwreg(HW_REG_XCC_ID)
        s_and_b32 s{sXCC}, s{sXCC}, 15
        s_lshl_b32 s{sTF}, s{sTEAM}, 9
        s_lshl_b32 s{T0}, s{sSLOT}, 4
        s_add_u32 s{T0+1}, s{sTF}, s{T0}
        s_lshl_b32 s{T0}, s{sW}, 2
        s_add_u32 s{sMYF}, s{T0+1}, s{T0}
        s_lshl_b32 s{T0}, s{sTEAM}, 3
        s_lshl_b32 s{T0+2}, s{sTH}, 2
        s_add_u32 s{sTB}, s{T0}, s{T0+2}
        s_add_u32 s{sTB}, s{sTB}, s{sW}
        s_add_u32 s{sTBA}, s{T0}, s{sTQ}
        s_sub_u32 s{sTBB}, s{T0}, s{sTQ}
        s_add_u32 s{sTBB}, s{sTBB}, 7
        v_lshrrev_b32 v2, 4, v0
        v_and_b32 v3, 15, v0
        v_lshlrev_b32 v8, 10, v2
        v_lshl_add_u32 v8, v3, 4, v8
        s_lshl_b32 s{T0+2}, s{sTB}, 15""")
        for i in range(8): A(f"s_add_u32 s{T0+4+i}, s{T0+2}, {i*4096}")
        A("s_waitcnt lgkmcnt(0)")
        def mk(sr,p,sz): A(f"s_mov_b32 s{sr}, s{p}\ns_mov_b32 s{sr+1}, s{p+1}\ns_mov_b32 s{sr+2}, {sz}\ns_mov_b32 s{sr+3}, 0x20000")
        mk(SX,64,2097152)
        XR=24
        def xl(qd):
            for i in range(8): A(f"buffer_load_dwordx4 {v(XR+qd*32+i*4,4)}, v8, {srd(SX)}, s{T0+4+i} offen offset:{qd*256}")
        xl(0)
        for sr,p_,sz in ((SWQ,66,1572864),(SWS,82,LY.WS_USED),(SOUT,78,2097152),(SDBG,80,256),(SWO,68,524288),(SWG,72,1835008),(SWU,74,1835008),(SWD,76,1835008)): mk(sr,p_,sz)
        A(f"v_mov_b32 v4, 0\nv_mov_b32 v5, 0\nv_mov_b32 v6, 0\nv_mov_b32 v7, 0\ns_cmp_lg_u32 s{sW}, 0\ns_cbranch_scc1 L_nz")
        A.cond_begin()
        A(f"""s_mov_b64 exec, 1
        buffer_store_dwordx4 v[4:7], off, {WS}, s{T0+1} sc1
        s_add_u32 s{T0+2}, s{T0+1}, {LY.HFLAGS}
        buffer_store_dwordx4 v[4:7], off, {WS}, s{T0+2} sc1
        s_mov_b64 exec, -1""")
        A.cond_end(); A.label('L_nz')
        xl(1); xl(2); xl(3)
        for j in range(3):
            A(f"""v_add_u32 v5, {64*j}, v0
            v_mul_u32_u24 v6, 5462, v5
            v_lshrrev_b32 v6, 16, v6
            v_mul_u32_u24 v7, 12, v6
            v_sub_u32 v7, v5, v7
            v_mul_u32_u24 v6, 3072, v6
            v_lshrrev_b32 v5, 2, v7
            v_lshl_add_u32 v6, v5, 10, v6
            v_and_b32 v7, 3, v7
            v_lshl_add_u32 v6, v7, 4, v6
            v_subrev_u32 v{224+j}, {1024*j}, v6""")
        sWs,sWl,sWt=T0+12,T0+13,T0+14
        A(f"""s_mul_i32 s{sWs}, s{sW}, 49152
        s_lshl_b32 s{sWl}, s{sC}, 6
        s_add_u32 s{sWs}, s{sWs}, s{sWl}
        s_mul_i32 s{sWl}, s{sW}, 3072""")
        self.wtag={}
        def wop(n,j):
            def f():
                A(f"s_add_u32 s{sWt}, s{sWs}, {n*4*49152}\ns_add_u32 m0, s{sWl}, {n*4*3072}")
                self.wtag[n]=self.dma(224+j,srd(SWQ),f"s{sWt}",0,off=1024*j,sc1=False,m0set=False)
            return f
        wq=[wop(n,j) for n in range(8) for j in range(3)]
        self.pop(wq,6)
        self.prepass_load()
        pptag=A("s_nop 0") and None
        A(f"s_cmp_lg_u32 s{sW}, 0\ns_cbranch_scc1 L_nr")
        A.cond_begin()
        A(f"""s_or_b32 s{T0+4}, s{sXCC}, 0x80
        v_mov_b32 v2, s{T0+4}
        s_lshl_b32 s{T0+4}, s{sTEAM}, 5
        s_add_u32 s{T0+4}, s{T0+4}, s{sSLOT}
        s_waitcnt vmcnt(34)
        s_mov_b64 exec, 1
        buffer_store_byte v2, off, {srd(SDBG)}, s{T0+4} sc1
        s_mov_b64 exec, -1""")
        A.cond_end(); A.label('L_nr')
        A(f"""v_lshrrev_b32 v2, 5, v0            ; h
        v_bfe_u32 v3, v0, 2, 2                  ; r
        v_lshl_add_u32 v3, v2, 3, v3
        v_mul_u32_u24 v{vTR}, 192, v3
        v_bfe_u32 v3, v0, 4, 1
        v_lshl_add_u32 v{vTR}, v3, 5, v{vTR}
        v_and_b32 v4, 3, v0
        v_lshl_add_u32 v{vTR}, v4, 3, v{vTR}
        v_lshlrev_b32 v{vVST}, 13, v3
        v_and_b32 v4, 15, v0
        v_lshl_add_u32 v4, v2, 4, v4
        v_lshl_add_u32 v{vVST}, v4, 4, v{vVST}
        v_and_b32 v4, 31, v0
        v_lshlrev_b32 v{vSLD}, 6, v4
        v_lshl_add_u32 v{vSLD}, v2, 5, v{vSLD}
        s_lshl_b32 s{T0+2}, s{sW}, 3
        v_and_b32 v4, 7, v0
        v_add_u32 v4, s{T0+2}, v4              ; 8w+i
        v_bfe_u32 v5, v0, 3, 1                 ; h'
        v_lshrrev_b32 v6, 4, v0                ; q
        v_lshlrev_b32 v{vRRD}, 4, v4
        v_mul_u32_u24 v7, 4608, v2
        v_add_u32 v{vRRD}, v{vRRD}, v7
        v_lshl_add_u32 v7, v3, 1, v5
        v_mul_u32_u24 v7, 1152, v7
        v_add_u32 v{vRRD}, v{vRRD}, v7
        v_add_u32 v{vRRD}, {SCR}, v{vRRD}
        s_mul_i32 s{T0+2}, s{sW}, 9216
        s_add_u32 s{T0+2}, s{T0+2}, {SCR}
        v_add_u32 v{vRWR}, s{T0+2}, v{vL16}
        v_lshlrev_b32 v{vXST}, 4, v4
        v_lshl_add_u32 v{vXST}, v5, 9, v{vXST}
        v_lshl_add_u32 v{vXST}, v6, 10, v{vXST}
        v_lshlrev_b32 v{vROW}, 10, v4
        v_lshl_add_u32 v{vROW}, v6, 5, v{vROW}
        v_lshl_add_u32 v{vROW}, v5, 4, v{vROW}
        v_lshlrev_b32 v{vSST}, 6, v4
        v_lshl_add_u32 v{vDSL}, v5, 5, v{vSST}
        v_lshl_add_u32 v{vSST}, v3, 5, v{vSST}""")
        A(f"""v_lshrrev_b32 v2, 4, v0
        v_and_b32 v3, 15, v0
        v_xor_b32 v3, v3, v2
        v_lshlrev_b32 v3, 4, v3
        v_lshl_add_u32 v3, v2, 8, v3
        s_lshl_b32 s{T0+2}, s{sW}, 13
        s_add_u32 s{T0+2}, s{T0+2}, {XS}
        v_add_u32 v228, s{T0+2}, v3
        v_xor_b32 v229, 64, v228
        v_xor_b32 v230, 0x80, v228
        v_xor_b32 v231, 0xc0, v228
        v_and_b32 v2, 31, v0
        v_lshrrev_b32 v3, 5, v0
        v_and_b32 v4, 15, v0
        v_xor_b32 v3, v3, v4
        v_lshlrev_b32 v3, 4, v3
        v_lshl_add_u32 v3, v2, 8, v3
        v_add_u32 v232, s{T0+2}, v3""")
        for k in range(1,8): A(f"v_xor_b32 v{232+k}, {k*32}, v232")
        for r in range(240,244): A(f"v_mov_b32 v{r}, 0")
        self.stamp('p.iss')
        def stats(base):
            for j in range(32):
                A(f"v_dot2c_f32_bf16 v{240+(j&1)*2}, s{sONE}, v{base+j}\nv_dot2c_f32_bf16 v{241+(j&1)*2}, v{base+j}, v{base+j}")
                if j%6==5: self.pop(wq)
        for qd in range(4):
            for i in range(8): A(f"ds_write_b128 v{228+(i&3)}, {v(XR+qd*32+i*4,4)} offset:{i*1024}")
            for k in range(8): A(f"ds_read_b128 {v(XR+qd*32+k*4,4)}, v{232+k}")
            if qd>0: stats(XR+(qd-1)*32)
            else: self.pop(wq,2)
        stats(XR+96)
        self.pop(wq,99)
        A(f"""v_add_f32 v240, v240, v242
        v_add_f32 v241, v241, v243
        v_mov_b32 v242, v240
        v_mov_b32 v243, v241
        v_permlane32_swap_b32 v240, v242
        v_permlane32_swap_b32 v241, v243
        v_add_f32 v240, v240, v242
        v_add_f32 v241, v241, v243""")
        A(f"""s_lshl_b32 s{T0+3}, s{sCW}, 7
        s_lshl_b32 s{T0+4}, s{sTBA}, 15
        s_add_u32 s{T0+4}, s{T0+4}, s{T0+3}
        s_lshl_b32 s{T0+5}, s{sTBB}, 15
        s_add_u32 s{T0+5}, s{T0+5}, s{T0+3}
        buffer_load_dwordx4 {v(RES,4)}, v{vROW}, {srd(SX)}, s{T0+4} offen
        buffer_load_dwordx4 {v(RES+4,4)}, v{vROW}, {srd(SX)}, s{T0+5} offen""")
        self.stamp('p.stat')
        A("s_waitcnt vmcnt(20)\ns_barrier")
        self.stamp('p.w0')
        self.prepass_store()
        self.stamp('pro')
    def hilo(self,r,t):
        self.A(f"""v_cvt_pk_bf16_f32 v{t}, v{r}, v{r}
        v_and_b32 v{t}, 0xffff0000, v{t}
        v_sub_f32 v{t}, v{r}, v{t}
        v_cvt_pk_bf16_f32 v{r}, v{r}, v{t}""")
    def prepass_load(self):
        A=self.A
        A(f"""v_lshrrev_b32 v2, 3, v0
        v_and_b32 v3, 7, v0
        v_lshlrev_b32 v3, 4, v3
        v_mul_u32_u24 v4, 3584, v2
        v_add_u32 v4, v4, v3
        v_lshl_add_u32 v5, v2, 10, v3
        s_cmp_ge_u32 s2, 224
        s_cbranch_scc1 L_ppo""")
        A.cond_begin()
        A(f"""s_mul_i32 s5, s2, 2341
        s_lshr_b32 s5, s5, 16
        s_mul_i32 s4, s5, 28
        s_sub_u32 s4, s2, s4
        s_lshl_b32 s{T0+2}, s5, 6
        s_lshl_b32 s{T0+3}, s{sW}, 4
        s_add_u32 s{T0+2}, s{T0+2}, s{T0+3}
        s_mul_i32 s{T0+2}, s{T0+2}, 3584
        s_lshl_b32 s{T0+3}, s4, 7
        s_add_u32 s{T0+2}, s{T0+2}, s{T0+3}
        s_add_u32 s{T0+3}, s{T0+2}, {8*3584}
        s_lshl_b32 s{T0+4}, s{sW}, 11""")
        for j in range(2):
            for u,sr in enumerate((SWG,SWU)):
                A(f"s_add_u32 m0, s{T0+4}, {PP+u*8192+j*1024}")
                self.dma(4,srd(sr),f"s{T0+2+j}",0,sc1=False,m0set=False)
        A(f"""s_lshr_b32 s6, s2, 1
        s_and_b32 s7, s2, 1
        s_lshl_b32 s7, s7, 2
        s_add_u32 s7, s7, s{sW}
        s_lshl_b32 s{T0+2}, s6, 14
        s_lshl_b32 s{T0+3}, s7, 7
        s_add_u32 s{T0+2}, s{T0+2}, s{T0+3}
        s_add_u32 s{T0+3}, s{T0+2}, 8192""")
        for j in range(2):
            A(f"s_add_u32 m0, s{T0+4}, {PP+16384+j*1024}")
            self.dma(5,srd(SWD),f"s{T0+2+j}",0,sc1=False,m0set=False)
        A("s_branch L_ppl")
        A.cond_end(); A.label('L_ppo'); A.cond_begin()
        A(f"""s_sub_u32 s6, s2, 224
        s_lshl_b32 s{T0+2}, s6, 14
        s_lshl_b32 s{T0+3}, s{sW}, 8
        s_add_u32 s{T0+2}, s{T0+2}, s{T0+3}
        s_lshl_b32 s{T0+4}, s{sW}, 12""")
        for u in range(2):
            for j in range(2):
                A(f"s_add_u32 s{T0+3}, s{T0+2}, {u*128+j*8192}\ns_add_u32 m0, s{T0+4}, {PP+u*2048+j*1024}")
                self.dma(5,srd(SWO),f"s{T0+3}",0,sc1=False,m0set=False)
        A.cond_end(); A.label('L_ppl')
    def prepass_store(self):
        A=self.A
        A(f"""v_lshrrev_b32 v154, 5, v0
        v_bfe_u32 v155, v0, 2, 2
        v_lshl_add_u32 v152, v154, 2, v155
        v_lshlrev_b32 v152, 7, v152
        v_lshl_add_u32 v153, v154, 3, v155
        v_lshlrev_b32 v153, 7, v153
        v_bfe_u32 v154, v0, 4, 1
        v_lshl_add_u32 v152, v154, 5, v152
        v_lshl_add_u32 v153, v154, 13, v153
        v_and_b32 v154, 3, v0
        v_lshl_add_u32 v152, v154, 3, v152
        v_lshl_add_u32 v153, v154, 3, v153
        s_cmp_ge_u32 s2, 224
        s_cbranch_scc1 L_pso""")
        def dunit(vb,off,soff,r):
            for cb in range(2):
                A(f"ds_read_b64_tr_b16 {v(r+cb*4,2)}, v{vb} offset:{off+cb*64}\nds_read_b64_tr_b16 {v(r+cb*4+2,2)}, v{vb} offset:{off+cb*64+1024}")
            for cb in range(2):
                A(f"buffer_store_dwordx4 {v(r+cb*4,4)}, v{vL16}, {WS}, {soff} offen offset:{cb*1024} sc1")
        A.cond_begin()
        A(f"""s_lshl_b32 s{T0+2}, s{sW}, 5
        s_add_u32 s{T0+2}, s{T0+2}, {PP}
        v_add_u32 v153, s{T0+2}, v153
        s_lshl_b32 s{T0+2}, s{sW}, 11
        s_add_u32 s{T0+2}, s{T0+2}, {PP+16384}
        v_add_u32 v152, s{T0+2}, v152
        s_lshl_b32 s{T0+2}, s4, 2
        s_add_u32 s{T0+2}, s{T0+2}, s{sW}
        s_mul_i32 s{T0+3}, s{T0+2}, 9363
        s_lshr_b32 s{T0+3}, s{T0+3}, 16
        s_mul_i32 s{T0+4}, s{T0+3}, 7
        s_sub_u32 s{T0+4}, s{T0+2}, s{T0+4}
        s_mul_i32 s{T0+3}, s{T0+3}, 231
        s_add_u32 s{T0+3}, s{T0+3}, s{T0+4}
        s_lshl_b32 s{T0+3}, s{T0+3}, 10
        s_add_u32 s{T0+3}, s{T0+3}, {LY.WGU}
        s_mul_i32 s{T0+4}, s5, {4*7168}
        s_add_u32 s{T0+4}, s{T0+4}, s{T0+3}
        v_mov_b32 v184, 0
        v_mov_b32 v185, 0""")
        for k in range(4):
            A(f"ds_read_b64_tr_b16 {v(160+k*4,2)}, v153 offset:{k*2048}\nds_read_b64_tr_b16 {v(162+k*4,2)}, v153 offset:{k*2048+512}")
        for k in range(4):
            A(f"s_add_u32 s{T0+5}, s{T0+4}, {k*7168}\nbuffer_store_dwordx4 {v(160+k*4,4)}, v{vL16}, {WS}, s{T0+5} offen sc1")
            for j in range(4): A(f"v_dot2c_f32_bf16 v{184+(j&1)}, s{sONE}, v{160+k*4+j}")
        A(f"""v_add_f32 v184, v184, v185
        v_mov_b32 v185, v184
        v_permlane32_swap_b32 v184, v185
        v_add_f32 v184, v184, v185""")
        self.hilo(184,185)
        A(f"""s_lshr_b32 s{T0+4}, s5, 2
        s_lshl_b32 s{T0+4}, s{T0+4}, 9
        s_and_b32 s{T0+5}, s5, 3
        s_lshl_b32 s{T0+5}, s{T0+5}, 2
        s_add_u32 s{T0+4}, s{T0+4}, s{T0+5}
        s_add_u32 s{T0+4}, s{T0+4}, s{T0+3}
        s_add_u32 s{T0+4}, s{T0+4}, {32*7168}
        s_mov_b32 exec_hi, 0
        buffer_store_dword v184, v{vL16}, {WS}, s{T0+4} offen sc1
        s_mov_b64 exec, -1
        s_mul_i32 s{T0+2}, s7, {112*2048}
        s_lshl_b32 s{T0+3}, s6, 11
        s_add_u32 s{T0+2}, s{T0+2}, s{T0+3}
        s_add_u32 s{T0+2}, s{T0+2}, {LY.WDT}""")
        dunit(152,0,f"s{T0+2}",176)
        A("s_branch L_psl")
        A.cond_end(); A.label('L_pso'); A.cond_begin()
        A(f"""s_lshl_b32 s{T0+2}, s{sW}, 12
        s_add_u32 s{T0+2}, s{T0+2}, {PP}
        v_add_u32 v152, s{T0+2}, v152
        s_lshl_b32 s{T0+2}, s{sW}, 17
        s_lshl_b32 s{T0+3}, s6, 11
        s_add_u32 s{T0+2}, s{T0+2}, s{T0+3}
        s_add_u32 s{T0+2}, s{T0+2}, {LY.WOT}
        s_add_u32 s{T0+3}, s{T0+2}, 65536""")
        dunit(152,0,f"s{T0+2}",160); dunit(152,2048,f"s{T0+3}",168)
        A.cond_end(); A.label('L_psl')
    def image_dump(self):
        A=self.A
        A(f"""s_lshl_b32 s{T0+2}, s{sTEAM}, 1
        s_add_u32 s{T0+2}, s{T0+2}, s{sTH}
        s_lshl_b32 s{T0+2}, s{T0+2}, 2
        s_add_u32 s{T0+2}, s{T0+2}, s{sW}
        s_mul_i32 s{T0+2}, s{T0+2}, 1536
        v_add_u32 v248, s{T0+2}, v{vL16}
        v_lshlrev_b32 v249, 3, v0
        v_add_u32 v250, s{T0+2}, v249
        ds_read_b128 v[252:255], v248
        ds_read_b64 v[236:237], v250 offset:1024
        s_mul_i32 s{T0+3}, s{sC}, 98304
        s_add_u32 s{T0+3}, s{T0+3}, {LY.WQI}
        buffer_store_dwordx4 v[252:255], v248, {WS}, s{T0+3} offen sc1
        buffer_store_dwordx2 v[236:237], v250, {WS}, s{T0+3} offen offset:1024 sc1""")
    def mark_done(self):
        A=self.A
        A(f"s_cmp_lg_u32 s{sW}, 0\ns_cbranch_scc1 L_nm")
        A.cond_begin()
        A(f"""s_or_b32 s{T0+4}, s{sXCC}, 0xc0
        v_mov_b32 v248, s{T0+4}
        s_lshl_b32 s{T0+4}, s{sTEAM}, 5
        s_add_u32 s{T0+4}, s{T0+4}, s{sSLOT}
        s_mov_b64 exec, 1
        buffer_store_byte v248, off, {srd(SDBG)}, s{T0+4} sc1
        s_mov_b64 exec, -1""")
        A.cond_end(); A.label('L_nm')
    def mode_issue(self):
        A=self.A
        A(f"""s_sub_u32 s{T0+2}, s{sTEAM}, 1
        s_max_i32 s{T0+2}, s{T0+2}, 0
        s_lshl_b32 s{T0+2}, s{T0+2}, 5
        s_lshl_b32 s{T0+3}, s{sTEAM}, 5
        v_and_b32 v{vP0}, 7, v0
        v_lshlrev_b32 v{vP0}, 2, v{vP0}
        v_mov_b32 v{vT0}, s{T0+3}
        v_mov_b32 v{vT1}, s{T0+2}
        v_cmp_gt_u32 vcc, 32, v0
        v_cndmask_b32 v{vT0}, v{vT1}, v{vT0}, vcc
        v_add_u32 v{vP0}, v{vP0}, v{vT0}""")
        self.try_issue(srd(SDBG),'0',vP1,vP0)
    def mode_check(self):
        A=self.A
        A(f"s_mov_b32 s{T0+4}, 0x80808080")
        self.try_check(srd(SDBG),'0',vP1,vP0,f"s{T0+4}",mask=True)
        A(f"""s_mul_i32 s{T0+4}, s{sXCC}, 0x01010101
        v_and_b32 v{vT0}, 0x0f0f0f0f, v{vP1}
        v_cmp_ne_u32 vcc, s{T0+4}, v{vT0}
        s_cmp_lg_u32 vcc_lo, 0
        s_cselect_b32 s{sMODE}, 1, 0""")
        if self.force_mixed: A(f"s_mov_b32 s{sMODE}, 1")
    def xpoll_setup(self):
        A=self.A
        A(f"""s_sub_u32 s{T0+2}, 3, s{sW}
        s_cmp_eq_u32 s{sTH}, 0
        s_cselect_b32 s{T0+2}, s{sW}, s{T0+2}
        s_lshl_b32 s{T0+2}, s{T0+2}, 4
        v_bfe_u32 v{vP0}, v0, 2, 3
        v_lshlrev_b32 v{vP0}, 6, v{vP0}
        v_and_b32 v{vP1}, 3, v0
        v_lshl_add_u32 v{vP0}, v{vP1}, 2, v{vP0}
        v_add_u32 v{vP0}, s{T0+2}, v{vP0}""")
    def qkv_scal(self):
        A=self.A; MFG=224
        self.ln_scalars(240,241,MFG,242,243)
        A(f"""v_mov_b32 v{MFG+1}, v{MFG}
        v_mov_b32 v{MFG+2}, v{MFG}
        v_mov_b32 v{MFG+3}, v{MFG}
        s_lshl_b32 s{T0+2}, s{sW}, 7
        s_add_u32 s{T0+2}, s{T0+2}, {RB}
        v_and_b32 v230, 31, v0
        v_lshlrev_b32 v230, 2, v230
        v_add_u32 v230, s{T0+2}, v230
        ds_write_b32 v230, v242
        v_lshrrev_b32 v230, 5, v0
        v_lshlrev_b32 v230, 4, v230
        v_add_u32 v230, s{T0+2}, v230
        v_mul_f32 v241, 0x3eb8aa3b, v242""")
    def qkv_mm(self,first):
        A=self.A; XR=24; ACC=152; WF=200; MFG=224; LEAD=6
        A(f"v_add_u32 v228, 49152, v{vTR}\nv_add_u32 v229, {AUG}, v{vL16}")
        if first:
            fill=self.cap(self.qkv_scal)
            fill=[f"v_mov_b32 v{244+b}, 0" for b in range(3)]+fill
            self.pop(fill,3)
        else:
            self.xpoll_setup()
            A(f"s_add_u32 s{T0+3}, s{sTH}, {F_DNA}")
            self.poll(WS,f"s{sTF}",f"s{T0+3}"); self.acquire()
            self.stamp('qkv.rdy')
            sX=T0+6
            A(f"""s_lshl_b32 s{T0+2}, s{sTB}, 11
            s_add_u32 s{T0+2}, s{T0+2}, s{sLB}
            s_add_u32 s{T0+2}, s{T0+2}, {LY.STX}
            s_lshl_b32 s{sX}, s{sTB}, 15
            s_add_u32 s{sX}, s{sX}, s{sLB}""")
            def xl(ks):
                if ks%4==0 and ks: A(f"s_add_u32 s{sX}, s{sX}, 4096")
                A(f"buffer_load_dwordx4 {v(XR+ks*4,4)}, v{vL16}, {WS}, s{sX} offen offset:{(ks%4)*1024} sc1")
            xl(0)
            A(f"""buffer_load_dwordx4 v[232:235], v{vSLD}, {WS}, s{T0+2} offen sc1
            buffer_load_dwordx4 v[236:239], v{vSLD}, {WS}, s{T0+2} offen offset:16 sc1""")
            for ks in range(1,LEAD): xl(ks)
            def sc():
                self.sum8(232)
                self.A("v_mov_b32 v240, v232\nv_mov_b32 v241, v232\nv_permlane32_swap_b32 v240, v241")
                self.qkv_scal()
            fill=self.cap(sc)
        def rd(ks,b):
            r=WF+(ks&1)*12+b*4
            if ks==32: return [f"ds_read_b128 {v(r,4)}, v229 offset:{b*1024}"]
            o=(ks&15)*3072+b*64; ad=vTR if ks<16 else 228
            return [f"ds_read_b64_tr_b16 {v(r,2)}, v{ad} offset:{o}",f"ds_read_b64_tr_b16 {v(r+2,2)}, v{ad} offset:{o+768}"]
        for b in range(3):
            for x in rd(0,b): A(x)
        for ks in range(33):
            x=v(XR+ks*4,4) if ks<32 else v(MFG,4)
            if first and ks<32: A(f"s_cmp_eq_u32 s{sW}, {ks&3}")
            for b in range(3):
                wr=WF+(ks&1)*12+b*4
                w=v(wr,4); acc=v(ACC+b*16,16); c=acc if ks else '0'
                A(f"{MF} {acc}, {w}, {x}, {c}" if b<2 else f"{MF} {acc}, {x}, {w}, {c}")
                if first and b==0 and ks in (7,15,23):
                    A.wait_vm(self.wtag[(ks+1)//4+1]); A("s_barrier")
                if ks<31 or (ks==31 and not first):
                    for y in rd(ks+1,b): A(y)
                if first and ks<32:
                    l=A.newlabel('L_cs'); A(f"s_cbranch_scc0 {l}"); A.cond_begin()
                    for jj in range(4): A(f"v_dot2c_f32_bf16 v{244+b}, s{sONE}, v{wr+jj}")
                    A.cond_end(); A.label(l)
                if not first and b==0 and ks+LEAD<32: xl(ks+LEAD)
                if not first and ks>=1 and b>0: self.pop(fill,2)
            if first:
                self.pop(fill,3)
                if ks==24: self.image_dump()
                if ks==27: self.mode_issue()
            if ks==30:
                for q in range(4): A(f"ds_read_b128 {v(XR+q*4,4)}, v230 offset:{q*32}")
            if first and ks==31:
                A(f"""v_and_b32 v248, 31, v0
                v_lshrrev_b32 v249, 5, v0
                v_lshlrev_b32 v248, 4, v248
                v_lshl_add_u32 v248, v249, 2, v248
                s_lshr_b32 s{T0+2}, s{sW}, 1
                s_lshl_b32 s{T0+2}, s{T0+2}, 9
                s_and_b32 s{T0+3}, s{sW}, 1
                s_lshl_b32 s{T0+3}, s{T0+3}, 3
                s_add_u32 s{T0+2}, s{T0+2}, s{T0+3}
                s_add_u32 s{T0+2}, s{T0+2}, {AUG}
                v_add_u32 v248, s{T0+2}, v248""")
                for b in range(3):
                    self.hilo(244+b,247)
                    A(f"ds_write_b32 v248, v{244+b} offset:{b*1024}")
                self.stamp('q.31')
                A("s_waitcnt vmcnt(0) lgkmcnt(0)")
                self.stamp('q.vm')
                A("s_barrier")
                for b in range(3):
                    for y in rd(32,b): A(y)
                self.stamp('q.bar')
                self.mark_done(); self.mode_check()
        assert not fill
        A("s_waitcnt lgkmcnt(0)")
    def qkv_epi(self):
        A=self.A; XR=24; ACC=152
        self.stamp('qkv.mm')
        PK=XR+16
        A(f"""s_lshl_b32 s{T0+2}, s{sTEAM}, 18
        s_lshl_b32 s{T0+3}, s{sC}, 14
        s_add_u32 s{T0+2}, s{T0+2}, s{T0+3}
        s_and_b32 s{T0+3}, s{sTB}, 7
        s_lshl_b32 s{T0+3}, s{T0+3}, 10
        s_add_u32 s{T0+2}, s{T0+2}, s{T0+3}
        s_add_u32 s{T0+2}, s{T0+2}, s{sLB}""")
        offs={'Q':LY.QF,'K':LY.KF,'V':LY.VF,'KH':LY.KH,'VH':LY.VH}
        for i,(n,o) in enumerate(offs.items()):
            A(f"s_add_u32 s{T0+4+2*i}, s{T0+2}, {o}\ns_add_u32 s{T0+5+2*i}, s{T0+2}, {o+8192}")
        A("s_nop 4")
        for b in (0,1,2):
            for r in range(16):
                sc=241 if b==0 else (242 if b==1 else XR+r)
                A(f"v_mul_f32 v{ACC+b*16+r}, v{ACC+b*16+r}, v{sc}")
            for r in range(8): A(f"v_cvt_pk_bf16_f32 v{PK+b*8+r}, v{ACC+b*16+2*r}, v{ACC+b*16+2*r+1}")
            for f in range(2):
                d=v(PK+b*8+f*4,4)
                if b<2: tg=A(f"buffer_store_dwordx4 {d}, v{vL16}, {WS}, s{T0+4+2*b+f} offen")
                else:   tg=A(f"buffer_store_dwordx4 {d}, v{vVST}, {WS}, s{T0+8} offen offset:{f*512}")
        for f in range(2): A(f"buffer_store_dwordx4 {v(PK+8+f*4,4)}, v{vL16}, {WS}, s{T0+10+f} offen sc1")
        for f in range(2): self.htag=A(f"buffer_store_dwordx4 {v(PK+16+f*4,4)}, v{vVST}, {WS}, s{T0+12} offen offset:{f*512} sc1")
        self.publish(F_QKV,tg)
        self.stamp('qkv.pub')
    def bg_wo(self):
        WW=172; sB=T0+8; L=[]
        L.append([f"s_lshl_b32 s{sB}, s{sCW}, 16",f"s_lshl_b32 s{sB+1}, s{sW}, 14",f"s_add_u32 s{sB}, s{sB}, s{sB+1}",f"s_add_u32 s{sB}, s{sB}, {LY.WOT}"])
        for i in range(16):
            g=[]
            if i%4==0 and i: g.append(f"s_add_u32 s{sB}, s{sB}, 4096")
            g.append(f"buffer_load_dwordx4 {v(WW+i*4,4)}, v{vL16}, {WS}, s{sB} offen offset:{(i%4)*1024} sc1")
            L.append(g)
        L[1]=L[0]+L[1]; return L[1:]
    def bg_ring(self,groups,sB=T0+10):
        L=[]; pre=[f"s_mul_i32 s{sB}, s{sC}, {33*7168}",f"s_mul_i32 s{sB+1}, s{sW}, 7168",f"s_add_u32 s{sB}, s{sB}, s{sB+1}",f"s_add_u32 s{sB}, s{sB}, {LY.WGU}"]
        for g in groups:
            for b in range(7):
                x=[]
                o=g*4*7168+(b//4)*4096
                x+=[f"s_add_u32 s{sB+2}, s{sB}, {o}",f"s_add_u32 m0, s{sB+1}, {o}"]
                x.append(f"buffer_load_dwordx4 v{vL16}, {WS}, s{sB+2} offen offset:{(b%4)*1024} sc1 lds")
                L.append(x)
        L[0]=pre+L[0]; return L
    def wd_loads(self,i0,i1,sB=T0+13):
        if i0>=i1: return
        A=self.A
        def f():
            A(f"""s_mul_i32 s{sB}, s{sCW}, {112*2048}
            s_mul_i32 s{sB+1}, s{sW}, {28*2048}
            s_add_u32 s{sB}, s{sB}, s{sB+1}""")
            cur=None
            for i in range(i0,i1):
                if i//4!=cur: cur=i//4; A(f"s_add_u32 s{sB+1}, s{sB}, {LY.WDT+cur*4096}")
                A(f"buffer_load_dwordx4 {a(i*4,4)}, v{vL16}, {WS}, s{sB+1} offen offset:{(i%4)*1024} sc1")
        self.l0(f)
    def att(self):
        A=self.A; o=self.o
        QA,QB,OA,OB,S0,P0,KFR,VFR,MD,MT,AD,WW,HP,PD=24,28,32,48,64,96,112,120,136,152,168,172,236,238
        A("s_barrier")
        A(f"""s_and_b32 s{T0+2}, s{sSLOT}, 30
        s_lshl_b32 s{T0+2}, s{T0+2}, 4
        v_and_b32 v{vP0}, 7, v0
        v_lshlrev_b32 v{vP0}, 2, v{vP0}
        v_add_u32 v{vP0}, s{T0+2}, v{vP0}
        v_lshlrev_b32 v{PD}, 2, v0""")
        A(f"""s_lshl_b32 s{T0+2}, s{sW}, 11
        s_add_u32 s{T0+2}, s{T0+2}, {AO}
        v_add_u32 v{AD}, s{T0+2}, v{vL16}
        s_cmp_eq_u32 s{sTEAM}, 0
        s_cselect_b32 s{T0+3}, 0, s{sONE}""")
        for r in range(4): A(f"v_mov_b32 v{S0+r}, s{sONE}\nv_mov_b32 v{S0+4+r}, s{T0+3}")
        for j in range(2):
            A(f"ds_write_b128 v{AD}, {v(S0+4,4)} offset:{j*1024}\nds_write_b128 v{AD}, {v(S0,4)} offset:{8192+j*1024}")
        lz=A.newlabel('L_hz')
        A(f"s_cmp_lg_u32 s{sTEAM}, 0\ns_cbranch_scc1 {lz}")
        A.cond_begin()
        A(f"v_subrev_u32 v{AD}, {AO-AK}, v{AD}")
        for j in range(2):
            A(f"ds_write_b128 v{AD}, {v(S0+4,4)} offset:{j*1024}\nds_write_b128 v{AD}, {v(S0+4,4)} offset:{16384+j*1024}")
        A.cond_end(); A.label(lz)
        A(f"""v_and_b32 v{vT0}, 31, v0
        v_lshrrev_b32 v{vT1}, 5, v0
        v_lshlrev_b32 v{AD}, 2, v{vT1}
        v_sub_u32 v{AD}, v{vT0}, v{AD}
        v_mov_b32 v{AD+1}, 0xf149f2ca""")
        for r in range(16):
            A(f"v_cmp_le_i32 vcc, {(r//4)*8+r%4}, v{AD}\nv_cndmask_b32_e64 v{MD+r}, v{AD+1}, 0, vcc\nv_cndmask_b32_e64 v{MT+r}, 0, v{AD+1}, vcc")
        A(f"""s_lshl_b32 s{T0+2}, s{sW}, 10
        s_sub_u32 s{T0+3}, 7168, s{T0+2}
        v_add_u32 v{AD}, {AK}, v{vL16}
        v_add_u32 v{AD+1}, s{T0+3}, v{AD}
        v_add_u32 v{AD}, s{T0+2}, v{AD}
        v_and_b32 v{AD+2}, 15, v0
        v_lshl_add_u32 v{AD+2}, v{vT1}, 4, v{AD+2}
        v_lshlrev_b32 v{AD+2}, 4, v{AD+2}
        v_bfe_u32 v{vT0}, v0, 4, 1
        v_lshl_add_u32 v{AD+2}, v{vT0}, 14, v{AD+2}
        v_add_u32 v{AD+2}, {AV}, v{AD+2}
        v_add_u32 v{AD+3}, s{T0+3}, v{AD+2}
        v_add_u32 v{AD+2}, s{T0+2}, v{AD+2}""")
        A(f"s_add_u32 s{T0+2}, s{sLAYER}, 1\nv_mov_b32 v{vT0}, s{T0+2}\ns_add_u32 s{T0+2}, s{sMYF}, {LY.HFLAGS}")
        A.wait_vm(self.htag)
        A(f"s_mov_b64 exec, 1\nbuffer_store_dword v{vT0}, off, {WS}, s{T0+2} sc1\ns_mov_b64 exec, -1")
        self.stamp('att.hpub')
        A(f"s_add_u32 s{T0+3}, s{sFB}, {F_QKV}")
        self.poll(WS,f"s{sTF}",f"s{T0+3}"); self.acquire()
        self.stamp('att.rdy')
        sH=T0+4; sL=T0+3; sHF=T0+7
        A(f"""s_lshl_b32 s{T0+2}, s{sTEAM}, 18
        s_lshl_b32 s{sL}, s{sSLOT}, 13
        s_add_u32 s{T0+2}, s{T0+2}, s{sL}
        s_add_u32 s{T0+2}, s{T0+2}, s{sLB}
        s_lshl_b32 s{sL}, s{sW}, 11
        s_add_u32 s{sH}, s{T0+2}, s{sL}
        s_add_u32 s{T0+5}, s{sH}, {LY.KF}
        s_add_u32 s{T0+6}, s{sH}, {LY.VF}
        s_add_u32 m0, s{sL}, {AK+8192}""")
        for j in range(2): self.dma(vL16,WS,f"s{T0+5}",0,off=j*1024,m0set=False)
        A(f"s_add_u32 m0, s{sL}, {AV+8192}")
        for j in range(2): self.dma(vL16,WS,f"s{T0+6}",0,off=j*1024,m0set=False)
        A(f"""s_lshl_b32 s{T0+5}, s{sW}, 10
        s_add_u32 s{T0+6}, s{T0+2}, {LY.QF}
        s_add_u32 s{T0+7}, s{T0+6}, s{T0+5}
        s_sub_u32 s{T0+6}, s{T0+6}, s{T0+5}
        s_add_u32 s{T0+6}, s{T0+6}, 7168
        buffer_load_dwordx4 {v(QB,4)}, v{vL16}, {WS}, s{T0+6} offen sc1""")
        qt=A(f"buffer_load_dwordx4 {v(QA,4)}, v{vL16}, {WS}, s{T0+7} offen sc1")
        A(f"""s_sub_u32 s{sHF}, s{sTF}, 512
        s_max_i32 s{sHF}, s{sHF}, 0
        s_add_u32 s{sHF}, s{sHF}, {LY.HFLAGS}""")
        self.try_issue(WS,f"s{sHF}",HP,vP0)
        self.try_issue(srd(SDBG),'0',PD+1,PD)
        A.wait_vm(qt)
        A("s_waitcnt lgkmcnt(0)\ns_barrier")
        self.stamp('att.kv')
        def halo():
            ld=A.newlabel('L_hd')
            A(f"s_cmp_eq_u32 s{sTEAM}, 0\ns_cbranch_scc1 {ld}")
            A.cond_begin()
            A(f"s_add_u32 s{T0+6}, s{sLAYER}, 1")
            self.try_check(WS,f"s{sHF}",HP,vP0,f"s{T0+6}"); self.acquire()
            A(f"""s_add_u32 s{T0+5}, s{sH}, {LY.KH-262144}
            s_add_u32 s{T0+6}, s{sH}, {LY.VH-262144}
            s_add_u32 m0, s{sL}, {AK}""")
            for j in range(2): self.dma(vL16,WS,f"s{T0+5}",0,off=j*1024,m0set=False)
            A(f"s_add_u32 m0, s{sL}, {AV}")
            for j in range(2): self.dma(vL16,WS,f"s{T0+6}",0,off=j*1024,m0set=False)
            A.cond_end(); A.label(ld)
        def ppcheck():
            A(f"s_mov_b32 s{T0+5}, 0x40404040")
            self.try_check(srd(SDBG),'0',PD+1,PD,f"s{T0+5}",mask=True)
        bg=self.bg_wo()+self.bg_ring([0,1,2])
        late=[]
        if int(o.get('nobg',0)): late=bg; bg=[]
        order=[('b',0),('b',1),('b',2),('b',3),('b',4),('a',0),('b',5),('a',1),('b',6),('a',2),('b',7),('a',3),('b',8),('a',4),('a',5),('a',6),('a',7),('a',8)]
        N=len(order); seen=set()
        def rk(n):
            q,d=order[n]; A(f"ds_read_b128 {v(KFR+(n&1)*4,4)}, v{AD+(q=='b')} offset:{(8-d)*1024}")
        def rv(n,f):
            q,d=order[n]
            A(f"ds_read_b128 {v(VFR+(n&1)*8+f*4,4)}, v{AD+2+(q=='b')} offset:{(8-d)*1024+f*512}")
        def sm(n):
            q,d=order[n]; c=v(MD,16) if d==0 else (v(MT,16) if d==8 else '0')
            A(f"{MF} {v(S0+(n&1)*16,16)}, {v(KFR+(n&1)*4,4)}, {v(QB if q=='b' else QA,4)}, {c}")
        def pv(n,f):
            q,d=order[n]; O=OB if q=='b' else OA
            c=v(O,16) if (q in seen) else '0'; seen.add(q)
            A(f"{MF} {v(O,16)}, {v(VFR+(n&1)*8+f*4,4)}, {v(P0+(n&1)*8+f*4,4)}, {c}")
        HC=int(o.get('hc',2)); HW=5; nbg=0
        rk(0); rk(1); rv(0,0); rv(0,1); sm(0)
        for n in range(N):
            S=S0+(n&1)*16; P=P0+(n&1)*8
            ex=lambda a_,b_: [A(f"v_exp_f32 v{S+r}, v{S+r}") for r in range(a_,b_)]
            cv=lambda a_,b_: [A(f"v_cvt_pk_bf16_f32 v{P+r}, v{S+2*r}, v{S+2*r+1}") for r in range(a_,b_)]
            if n==HW:
                self.stamp('att.t5'); A(f"s_waitcnt vmcnt({nbg})\ns_barrier"); self.stamp('att.hw'); rk(n+1)
            elif n+1<N: sm(n+1)
            if n+2<N and n+2!=HW+1: rk(n+2)
            if n+1<N: rv(n+1,0)
            ex(0,4)
            if n>0: pv(n-1,1)
            if n+1<N: rv(n+1,1)
            ex(4,8)
            if n==HW: sm(n+1)
            if n>HC and bg: self.pop(bg); nbg+= (n<HW)
            cv(0,4); ex(8,12); pv(n,0)
            if n>HC and bg: self.pop(bg); nbg+= (n<HW)
            ex(12,16)
            if n>HC and bg: self.pop(bg); nbg+= (n<HW)
            cv(4,8)
            if n==HC: self.stamp('att.t2'); halo(); self.stamp('att.hf'); ppcheck(); self.stamp('att.pp')
        pv(N-1,1)
        self.pop(bg,99)
        A(f"""s_lshl_b32 s{T0+2}, s{sTEAM}, 3
        s_add_u32 s{T0+3}, s{T0+2}, s{sW}
        s_sub_u32 s{T0+2}, s{T0+2}, s{sW}
        s_add_u32 s{T0+2}, s{T0+2}, 7
        s_lshl_b32 s{T0+2}, s{T0+2}, 15
        s_lshl_b32 s{T0+3}, s{T0+3}, 15
        s_lshl_b32 s{T0+4}, s{sSLOT}, 10
        s_add_u32 s{T0+4}, s{T0+4}, s{sLB}
        s_add_u32 s{T0+4}, s{T0+4}, {LY.OF}
        s_add_u32 s{T0+2}, s{T0+2}, s{T0+4}
        s_add_u32 s{T0+3}, s{T0+3}, s{T0+4}""")
        self.stamp('att.mm')
        for O,so in ((OB,T0+2),(OA,T0+3)):
            A(f"v_rcp_f32 v{O+9}, v{O+8}")
            for r in range(8): A(f"v_mul_f32 v{O+r}, v{O+r}, v{O+9}")
            for r in range(4): A(f"v_cvt_pk_bf16_f32 v{O+12+r}, v{O+2*r}, v{O+2*r+1}")
            tg=A(f"buffer_store_dwordx4 {v(O+12,4)}, v{vL16}, {WS}, s{so} offen")
        for i,O in enumerate((OB,OA)):
            A(f"v_mov_b32 v{S0+i}, 0")
            for r in range(4): A(f"v_dot2c_f32_bf16 v{S0+i}, s{sONE}, v{O+12+r}")
        for i,O in enumerate((OB,OA)):
            A(f"v_fma_f32 v{S0+i}, v{S0+i}, 0, v{O+8}\nv_subrev_u32 v{S0+i}, 0x30800000, v{S0+i}")
        A(f"v_max_u32 v{S0}, v{S0}, v{S0+1}\nv_cmp_le_u32 vcc, 0x28000000, v{S0}")
        if int(o.get('fb',0)): A("s_branch L_fb")
        else: A("s_cbranch_vccnz L_fb")
        A.label('L_fbr')
        self.att_exact(QA,QB,OA,S0,P0,KFR,VFR,MD,MT,AD)
        self.publish(F_ATT,tg)
        self.stamp('att.pub')
        self.pop(late,99)
    def att_exact(self,QA,QB,O,S,P,KFR,VFR,MD,MT,AD):
        B=Asm(); B._n=9000; sD,sM=T0+5,T0+6; M=S+16; vK=S+17; vV=S+18; T=S+19
        B.label('L_fb'); B("s_nop 7\ns_nop 7")
        def scores(Q):
            l0=B.newlabel('L_f0'); l8=B.newlabel('L_f8'); le=B.newlabel('L_fe')
            B(f"s_waitcnt lgkmcnt(0)\ns_cmp_eq_u32 s{sD}, 0\ns_cbranch_scc1 {l0}\ns_cmp_eq_u32 s{sD}, 8\ns_cbranch_scc1 {l8}")
            B(f"{MF} {v(S,16)}, {v(KFR,4)}, {v(Q,4)}, 0\ns_branch {le}")
            B.label(l0); B(f"{MF} {v(S,16)}, {v(KFR,4)}, {v(Q,4)}, {v(MD,16)}\ns_branch {le}")
            B.label(l8); B(f"{MF} {v(S,16)}, {v(KFR,4)}, {v(Q,4)}, {v(MT,16)}")
            B.label(le); B("s_nop 7\ns_nop 7")
        for q,Q,so in ((1,QB,T0+2),(0,QA,T0+3)):
            B(f"s_sub_u32 s{sM}, 7, s{sW}" if q else f"s_mov_b32 s{sM}, s{sW}")
            B(f"s_cmp_eq_u32 s{sTEAM}, 0\ns_cselect_b32 s{sM}, s{sM}, 8")
            B(f"s_mov_b32 s{sD}, 0\nv_mov_b32 v{M}, 0xff800000\nv_add_u32 v{vK}, 8192, v{AD+q}")
            l=B.newlabel('L_fa'); B.flush_hz(); B.label(l)
            B(f"ds_read_b128 {v(KFR,4)}, v{vK}")
            scores(Q)
            for r in range(8): B(f"v_max3_f32 v{M}, v{S+2*r}, v{S+2*r+1}, v{M}")
            B(f"v_subrev_u32 v{vK}, 1024, v{vK}\ns_add_u32 s{sD}, s{sD}, 1\ns_cmp_le_u32 s{sD}, s{sM}")
            B.flush_hz(); B(f"s_cbranch_scc1 {l}")
            B(f"v_mov_b32 v{T}, v{M}\nv_permlane32_swap_b32 v{M}, v{T}\nv_max_f32 v{M}, v{M}, v{T}")
            B(f"s_mov_b32 s{sD}, 0\nv_add_u32 v{vK}, 8192, v{AD+q}\nv_add_u32 v{vV}, 8192, v{AD+2+q}")
            for r in range(16): B(f"v_mov_b32 v{O+r}, 0")
            l=B.newlabel('L_fb'); B.flush_hz(); B.label(l)
            B(f"ds_read_b128 {v(KFR,4)}, v{vK}\nds_read_b128 {v(VFR,4)}, v{vV}\nds_read_b128 {v(VFR+4,4)}, v{vV} offset:512")
            scores(Q)
            for r in range(16): B(f"v_sub_f32 v{S+r}, v{S+r}, v{M}")
            for r in range(16): B(f"v_exp_f32 v{S+r}, v{S+r}")
            for r in range(8): B(f"v_cvt_pk_bf16_f32 v{P+r}, v{S+2*r}, v{S+2*r+1}")
            for f in range(2): B(f"{MF} {v(O,16)}, {v(VFR+f*4,4)}, {v(P+f*4,4)}, {v(O,16)}")
            B(f"v_subrev_u32 v{vK}, 1024, v{vK}\nv_subrev_u32 v{vV}, 1024, v{vV}\ns_add_u32 s{sD}, s{sD}, 1\ns_cmp_le_u32 s{sD}, s{sM}")
            B.flush_hz(); B(f"s_cbranch_scc1 {l}")
            B(f"v_rcp_f32 v{O+9}, v{O+8}")
            for r in range(8): B(f"v_mul_f32 v{O+r}, v{O+r}, v{O+9}")
            for r in range(4): B(f"v_cvt_pk_bf16_f32 v{O+12+r}, v{O+2*r}, v{O+2*r+1}")
            B("s_waitcnt vmcnt(0)")
            B(f"buffer_store_dwordx4 {v(O+12,4)}, v{vL16}, {WS}, s{so} offen\ns_waitcnt vmcnt(0)")
        B("s_branch L_fbr")
        self.tail.append(B.text().rstrip("\n"))
    def red_write(self,acc):
        A=self.A
        for cb in range(2):
            for rq in range(4): A(f"ds_write_b128 v{vRWR}, {v(acc+cb*16+rq*4,4)} offset:{cb*4608+rq*1152}")
        A("s_waitcnt lgkmcnt(0)\ns_barrier")
    def red_read(self,R):
        A=self.A
        for p in range(4):
            for e in range(2): A(f"ds_read_b128 {v(R+(p*2+e)*4,4)}, v{vRRD} offset:{p*9216+e*512}")
    def red_fin(self,rnd,R,scale,down):
        A=self.A; rs=RES+rnd*4; L=[]
        for n in range(8): L.append(f"v_add_f32 v{R+n}, v{R+n}, v{R+8+n}")
        for n in range(8): L.append(f"v_add_f32 v{R+16+n}, v{R+16+n}, v{R+24+n}")
        for n in range(4): L.append(f"v_lshlrev_b32 v{R+8+2*n}, 16, v{rs+n}"); L.append(f"v_and_b32 v{R+9+2*n}, 0xffff0000, v{rs+n}")
        for n in range(8): L.append(f"v_add_f32 v{R+n}, v{R+n}, v{R+16+n}")
        for n in range(8):
            L.append(f"v_fma_f32 v{R+n}, v{R+n}, v{scale}, v{R+8+n}" if scale is not None else f"v_add_f32 v{R+n}, v{R+n}, v{R+8+n}")
        for n in range(4): L.append(f"v_cvt_pk_bf16_f32 v{rs+n}, v{R+2*n}, v{R+2*n+1}")
        return L
    def red_store(self,rnd,R,down):
        A=self.A; rs=RES+rnd*4; tb=sTBA if rnd==0 else sTBB
        xo,so=(LY.XF+LY.LBS,LY.STX+LY.LBS) if down else (LY.X1F,LY.ST1)
        if down:
            lf=A.newlabel('L_fin'); ld=A.newlabel('L_fd')
            A(f"s_cmp_lg_u32 s{sLAYER}, 0\ns_cbranch_scc1 {lf}")
            A.cond_begin()
        A(f"""s_lshl_b32 s{T0+2}, s{tb}, 15
        s_lshl_b32 s{T0+3}, s{sCW}, 12
        s_add_u32 s{T0+2}, s{T0+2}, s{T0+3}
        s_add_u32 s{T0+2}, s{T0+2}, s{sLB}
        s_add_u32 s{T0+2}, s{T0+2}, {xo}
        buffer_store_dwordx4 {v(rs,4)}, v{vXST}, {WS}, s{T0+2} offen
        v_mov_b32 v{R}, 0
        v_mov_b32 v{R+1}, 0""")
        for n in range(4): A(f"v_dot2c_f32_bf16 v{R}, s{sONE}, v{rs+n}\nv_dot2c_f32_bf16 v{R+1}, v{rs+n}, v{rs+n}")
        A(f"""s_lshl_b32 s{T0+2}, s{tb}, 11
        s_lshl_b32 s{T0+3}, s{sCW}, 2
        s_add_u32 s{T0+2}, s{T0+2}, s{T0+3}
        s_add_u32 s{T0+2}, s{T0+2}, s{sLB}
        s_add_u32 s{T0+2}, s{T0+2}, {so}
        v_add_f32_dpp v{R}, v{R}, v{R} row_ror:8 row_mask:0xf bank_mask:0xf
        v_add_f32_dpp v{R+1}, v{R+1}, v{R+1} row_ror:8 row_mask:0xf bank_mask:0xf
        v_permlane16_swap_b32 v{R}, v{R+1}
        v_add_f32 v{R}, v{R}, v{R+1}
        v_mov_b32 v{R+1}, v{R}
        v_permlane32_swap_b32 v{R}, v{R+1}
        v_add_f32 v{R}, v{R}, v{R+1}""")
        tg=A(f"buffer_store_dword v{R}, v{vSST}, {WS}, s{T0+2} offen")
        self.publish((F_DNA if down else F_WOA)+rnd,tg)
        if down:
            A(f"s_branch {ld}")
            A.cond_end(); A.label(lf); A.cond_begin()
            A(f"""s_lshl_b32 s{T0+2}, s{tb}, 15
            s_lshl_b32 s{T0+3}, s{sCW}, 7
            s_add_u32 s{T0+2}, s{T0+2}, s{T0+3}
            buffer_store_dwordx4 {v(rs,4)}, v{vROW}, {srd(SOUT)}, s{T0+2} offen""")
            A.cond_end(); A.label(ld)
    def wo(self):
        A=self.A; WW=172; FR=24; ACC=88; o=self.o
        n1=int(o.get('wd1',12)); n2=int(o.get('wd2',10))
        self.wd_loads(0,n1)
        A(f"""s_lshl_b32 s{T0+2}, s{sW}, 7
        s_lshl_b32 s{T0+3}, s{sTQ}, 2
        s_add_u32 s{T0+2}, s{T0+2}, s{T0+3}
        v_and_b32 v{vP0}, 7, v0
        v_lshlrev_b32 v{vP0}, 4, v{vP0}
        v_add_u32 v{vP0}, s{T0+2}, v{vP0}
        s_add_u32 s{T0+3}, s{sFB}, {F_ATT}""")
        for rnd,tb in enumerate((sTBA,sTBB)):
            b=T0+4+2*rnd
            A(f"""s_lshl_b32 s{b}, s{tb}, 15
            s_lshl_b32 s{b+1}, s{sW}, 13
            s_add_u32 s{b}, s{b}, s{b+1}
            s_add_u32 s{b}, s{b}, s{sLB}
            s_add_u32 s{b}, s{b}, {LY.OF}
            s_add_u32 s{b+1}, s{b}, 4096""")
        self.poll(WS,f"s{sTF}",f"s{T0+3}"); self.acquire()
        self.stamp('wo.rdy')
        def ld(i):
            rnd,k=divmod(i,8)
            A(f"buffer_load_dwordx4 {v(FR+i*4,4)}, v{vL16}, {WS}, s{T0+4+2*rnd+k//4} offen offset:{(k%4)*1024} sc1")
        for i in range(8): ld(i)
        A("s_barrier")
        def mm(rnd,fill):
            for k in range(8):
                for cb in range(2):
                    acc=v(ACC+rnd*32+cb*16,16)
                    A(f"{MF} {acc}, {v(WW+(k*2+cb)*4,4)}, {v(FR+rnd*32+k*4,4)}, {acc if k else '0'}")
                    if rnd==0 and cb==0: ld(8+k)
                    if k>=2: self.pop(fill,4)
            self.pop(fill,99)
        mm(0,[])
        self.red_write(ACC); self.red_read(FR)
        mm(1,self.red_fin(0,FR,None,False))
        self.red_store(0,FR,False)
        A("s_barrier")
        self.red_write(ACC+32); self.red_read(FR+32)
        for x in self.red_fin(1,FR+32,None,False): A(x)
        self.red_store(1,FR+32,False)
        self.stamp('wo.pub')
        self.wd_loads(n1,n1+n2)
    def gu(self):
        A=self.A; ACC=24; WF=136; XR=192; AM=224
        self.xpoll_setup()
        A(f"s_add_u32 s{T0+3}, s{sTH}, {F_WOA}\ns_add_u32 s{T0+3}, s{T0+3}, s{sFB}")
        self.poll(WS,f"s{sTF}",f"s{T0+3}"); self.acquire()
        A("s_barrier")
        self.stamp('gu.rdy')
        sX=T0+2; sG=T0+3; sR=T0+4; sI=T0+5; sTMP=T0+6
        A(f"""s_lshl_b32 s{sX}, s{sTB}, 11
        s_add_u32 s{sX}, s{sX}, s{sLB}
        s_add_u32 s{sX}, s{sX}, {LY.ST1}
        buffer_load_dwordx4 {v(WF+28,4)}, v{vSLD}, {WS}, s{sX} offen sc1
        buffer_load_dwordx4 {v(WF+32,4)}, v{vSLD}, {WS}, s{sX} offen offset:16 sc1
        s_lshl_b32 s{sX}, s{sTB}, 15
        s_add_u32 s{sX}, s{sX}, s{sLB}
        s_add_u32 s{sX}, s{sX}, {LY.X1F}""")
        def xl(ks):
            L=[]
            if ks%4==0 and ks: L.append(f"s_add_u32 s{sX}, s{sX}, 4096")
            L.append(f"buffer_load_dwordx4 {v(XR+(ks%16)*4,4)}, v{vL16}, {WS}, s{sX} offen offset:{(ks%4)*1024} sc1")
            return L
        LEAD=int(self.o.get('gl',6)); xn=[LEAD]
        for ks in range(LEAD):
            for t in xl(ks): A(t)
        A(f"""s_mul_i32 s{sG}, s{sC}, {33*7168}
        s_mul_i32 s{sR}, s{sW}, 7168
        s_add_u32 s{sG}, s{sG}, {LY.WGU}
        s_mul_i32 s{sI}, s{sC}, 98304
        s_add_u32 s{sI}, s{sI}, s{sR}
        s_add_u32 s{sI}, s{sI}, {LY.WQI}
        v_add_u32 v{vT0}, 57344, v{vL16}
        v_add_u32 v{vT1}, {GAUG}, v{vL16}""")
        A(f"""s_lshl_b32 s{sTMP}, s{sW}, 11
        s_add_u32 m0, s{sTMP}, {GAUG}
        s_add_u32 s{sTMP}, s{sTMP}, s{sG}
        s_add_u32 s{sTMP}, s{sTMP}, {32*7168}""")
        for j in range(2): self.dma(vL16,WS,f"s{sTMP}",0,off=j*1024,m0set=False)
        A(f"s_add_u32 s{sG}, s{sG}, s{sR}")
        def rd(ks,b):
            r=v(WF+(ks&1)*28+b*4,4)
            if ks==32: return f"ds_read_b128 {r}, v{vT1} offset:{b*1024}"
            sl=ks%16
            return f"ds_read_b128 {r}, v{vL16 if sl<8 else vT0} offset:{(sl%8)*7168+b*1024}"
        for b in range(7): A(rd(0,b))
        self.sum8(WF+28)
        A(f"v_mov_b32 v{WF+29}, v{WF+28}\nv_permlane32_swap_b32 v{WF+28}, v{WF+29}\nv_mul_f32 v{WF+28}, 0x3b000000, v{WF+28}\nv_cvt_pk_bf16_f32 v{WF+28}, -v{WF+28}, -v{WF+28}")
        for r in range(4): A(f"v_accvgpr_write_b32 a{AM+r}, v{WF+28}")
        dq=[]; dtag={}; wdn=[int(self.o.get('wd1',12))+int(self.o.get('wd2',10))]
        def queue_dma(n):
            for b in range(7):
                g=[]
                if n<=4:
                    o=(n+3)*4*7168+b*1024; lo=((n+3)%4)*4*7168+b*1024
                    if b in(0,4): g+= [f"s_add_u32 s{sTMP}, s{sG}, {o}",f"s_add_u32 m0, s{sR}, {lo}"]
                    g.append(('tag',n+3,f"buffer_load_dwordx4 v{vL16}, {WS}, s{sTMP} offen offset:{(b%4)*1024} sc1 lds"))
                dq.append(g)
        def img(n):
            def piece(n,b):
                def f():
                    if n<8:
                        o=(n-5)*28672+(b//4)*4096
                        A(f"s_add_u32 s{sTMP}, s{sI}, {o}\ns_add_u32 m0, s{sR}, {o}")
                        self.dma(vL16,WS,f"s{sTMP}",0,off=(b%4)*1024,m0set=False)
                    else:
                        A(f"""s_mul_i32 s{sTMP}, s{sW}, 4096
                        s_sub_u32 s{sI}, s{sI}, s{sTMP}
                        s_sub_u32 s{sTMP}, s{sR}, s{sTMP}
                        s_add_u32 m0, s{sTMP}, 86016
                        s_add_u32 s{sTMP}, s{sI}, 86016""")
                        for bb in range(3): self.dma(vL16,WS,f"s{sTMP}",0,off=bb*1024,m0set=False)
                return lambda: self.l0(f)
            for b in range(7 if n<8 else 1): dq.append(piece(n,b))
        queue_dma(0)
        for ks in range(33):
            x=v(XR+(ks%16)*4,4) if ks<32 else a(AM,4)
            bar=(ks%4==3)
            rq=[rd(ks+1,b) for b in range(7)] if ks<32 else []
            for b in range(7):
                acc=v(ACC+b*16,16)
                A(f"{MF} {acc}, {v(WF+(ks&1)*28+b*4,4)}, {x}, {acc if ks else '0'}")
                if bar:
                    if b==1:
                        n=(ks+1)//4
                        if n in dtag: A.wait_vm(dtag[n])
                        A("s_waitcnt lgkmcnt(0)\ns_barrier")
                        if n<=4: queue_dma(n)
                        else: img(n)
                    if b>=1:
                        for _ in range(2):
                            if rq: A(rq.pop(0))
                elif rq: A(rq.pop(0))
                if (b in (2,5) or (ks<3 and b==0)) and dq:
                    g_=dq.pop(0)
                    if callable(g_): g_()
                    else:
                        for t in g_:
                            if isinstance(t,tuple): dtag[t[1]]=A(t[2])
                            else: A(t)
                if b in (0,4) and ks>=int(self.o.get('wds',19)) and wdn[0]<56:
                    e=min(56,wdn[0]+int(self.o.get('wd3',1))); self.wd_loads(wdn[0],e); wdn[0]=e
            for _ in range(2):
                if xn[0]<32 and xn[0]<=ks+16 and (_==0 or ks<int(self.o.get('gx2',3))):
                    for t in xl(xn[0]): A(t)
                    xn[0]+=1
        assert xn[0]==32 and not dq
        self.wd_loads(wdn[0],56)
        self.stamp('gu.mm')
        A(f"""s_mul_i32 s{sX}, s{sTB}, {112*1024}
        s_mul_i32 s{sTMP}, s{sC}, 7168
        s_add_u32 s{sX}, s{sX}, s{sTMP}
        s_add_u32 s{sX}, s{sX}, s{sLB}
        s_add_u32 s{sX}, s{sX}, {LY.HF}
        s_add_u32 s{sTMP}, s{sX}, 4096""")
        for b in range(7):
            g=ACC+b*16
            for r in range(8): A(f"v_max_f32 v{g+r}, 0, v{g+r}")
            for r in range(8): A(f"v_mul_f32 v{g+r}, v{g+r}, v{g+8+r}")
            for r in range(4): A(f"v_cvt_pk_bf16_f32 v{XR+b*4+r}, v{g+2*r}, v{g+2*r+1}")
            tg=A(f"buffer_store_dwordx4 {v(XR+b*4,4)}, v{vL16}, {WS}, s{sX if b<4 else sTMP} offen offset:{(b%4)*1024}")
        self.publish(F_GU,tg)
        self.stamp('gu.pub')
    def down(self):
        A=self.A; ACC=24; FR=88; R2=248; NS=40
        A(f"""s_lshl_b32 s{T0+2}, s{sW}, 7
        s_lshl_b32 s{T0+3}, s{sTQ}, 2
        s_sub_u32 s{T0+4}, 28, s{T0+3}
        v_and_b32 v{vP0}, 3, v0
        v_lshlrev_b32 v{vP0}, 5, v{vP0}
        v_add_u32 v{vP0}, s{T0+2}, v{vP0}
        v_mov_b32 v{vT0}, s{T0+3}
        v_mov_b32 v{vT1}, s{T0+4}
        v_and_b32 v{vP1}, 4, v0
        v_cmp_ne_u32 vcc, 0, v{vP1}
        v_cndmask_b32 v{vT0}, v{vT0}, v{vT1}, vcc
        v_add_u32 v{vP0}, v{vP0}, v{vT0}
        s_add_u32 s{T0+3}, s{sFB}, {F_GU}""")
        self.poll(WS,f"s{sTF}",f"s{T0+3}"); self.acquire()
        self.stamp('dn.rdy')
        SB=ACC+32
        for rnd,tb in enumerate((sTBA,sTBB)):
            A(f"""s_lshl_b32 s{T0+2}, s{tb}, 11
            s_add_u32 s{T0+2}, s{T0+2}, s{sLB}
            s_add_u32 s{T0+2}, s{T0+2}, {LY.ST1}
            buffer_load_dwordx4 {v(SB+rnd*8,4)}, v{vDSL}, {WS}, s{T0+2} offen sc1
            buffer_load_dwordx4 {v(SB+rnd*8+4,4)}, v{vDSL}, {WS}, s{T0+2} offen offset:16 sc1""")
        class Cap:
            def __init__(s_): s_.L=[]
            def __call__(s_,t): s_.L+= [x.strip() for x in t.split('\n') if x.strip()]
        cap=Cap(); self.A=cap
        cap(f"v_and_b32 v{vT0}, 8, v0\nv_cmp_ne_u32 vcc, 0, v{vT0}")
        for rnd in range(2):
            b=SB+rnd*8
            self.sum8(b)
            cap(f"""v_mov_b32_dpp v{b+1}, v{b} row_ror:8 row_mask:0xf bank_mask:0xf
            v_cndmask_b32 v{b+2}, v{b}, v{b+1}, vcc
            v_cndmask_b32 v{b+3}, v{b+1}, v{b}, vcc""")
            self.ln_scalars(b+2,b+3,None,R2+rnd,b+4)
            cap(f"v_mul_f32 v{R2+rnd}, v{R2+rnd}, v{R2+rnd}")
        self.A=A
        for rnd,tb in enumerate((sTBA,sTBB)):
            A(f"""s_mul_i32 s{T0+6+rnd}, s{tb}, {112*1024}
            s_mul_i32 s{T0+3}, s{sW}, {28*1024}
            s_add_u32 s{T0+6+rnd}, s{T0+6+rnd}, s{T0+3}
            s_add_u32 s{T0+6+rnd}, s{T0+6+rnd}, s{sLB}
            s_add_u32 s{T0+6+rnd}, s{T0+6+rnd}, {LY.HF}""")
        def ld(i):
            rnd,k=divmod(i,28)
            if k%4==0 and k: A(f"s_add_u32 s{T0+6+rnd}, s{T0+6+rnd}, 4096")
            A(f"buffer_load_dwordx4 {v(FR+(i%NS)*4,4)}, v{vL16}, {WS}, s{T0+6+rnd} offen offset:{(k%4)*1024} sc1")
        DL=int(self.o.get('dl',8)); ln=[DL]
        for i in range(DL): ld(i)
        def mm(rnd,fill):
            for k in range(28):
                i=rnd*28+k
                for cb in range(2):
                    acc=v(ACC+rnd*32+cb*16,16)
                    A(f"{MF} {acc}, {a((k*2+cb)*4,4)}, {v(FR+(i%NS)*4,4)}, {acc if k else '0'}")
                    for _ in range(2):
                        if fill and k>=2: A(fill.pop(0))
                for _ in range(2 if i<int(self.o.get('dx2',4)) else 1):
                    if ln[0]<56 and ln[0]<i+NS: ld(ln[0]); ln[0]+=1
                if rnd==1 and k==18: self.red_store(0,FR+64,True)
        mm(0,cap.L); assert not cap.L
        self.stamp('dn.mm0')
        self.red_write(ACC); self.red_read(FR+64)
        mm(1,self.red_fin(0,FR+64,R2,True))
        self.stamp('dn.mm1')
        A("s_barrier")
        self.red_write(ACC+32); self.red_read(FR+64)
        for t in self.red_fin(1,FR+64,R2+1,True): A(t)
        self.red_store(1,FR+64,True)
        self.stamp('dn.pub')
    def build(self):
        A=self.A
        self.prologue()
        self.qkv_mm(True)
        A.flush_hz(); A.label('L_layer'); A.forget()
        self.qkv_epi(); self.maybe_stop('qkv')
        self.att(); self.maybe_stop('att')
        self.wo(); self.maybe_stop('wo')
        self.gu(); self.maybe_stop('gu')
        self.down(); self.maybe_stop('dn')
        A(f"s_cmp_lg_u32 s{sLAYER}, 0\ns_cbranch_scc1 L_done")
        A(f"s_mov_b32 s{sLAYER}, 1\ns_add_u32 s{sLB}, s{sLB}, {LY.LBS}\ns_mov_b32 s{sFB}, 8")
        self.qkv_mm(False)
        A.flush_hz(); A("s_branch L_layer")
        A.label('L_done'); self.end()
        A.label('L_exit'); A("s_endpgm")
        for t in self.tail: A.raw(t)
        A.label('L_end')
        hdr=f"""; generated by gen/gen_k.py
; @launch grid=(256,1,1) block=(256,1,1) lds=163840
.amdgcn_target "amdgcn-amd-amdhsa--gfx950"
.text
.globl {NAME}_kernel
.p2align 8
.type {NAME}_kernel,@function
{NAME}_kernel:
"""
        kd=f""".section .rodata,"a"
.p2align 6
.amdhsa_kernel {NAME}_kernel
  .amdhsa_next_free_vgpr 512
  .amdhsa_next_free_sgpr 102
  .amdhsa_accum_offset 256
  .amdhsa_group_segment_fixed_size 0
  .amdhsa_kernarg_size 80
  .amdhsa_user_sgpr_count 2
  .amdhsa_user_sgpr_kernarg_segment_ptr 1
  .amdhsa_system_sgpr_workgroup_id_x 1
.end_amdhsa_kernel
"""
        ex=''
        if self.stamps:
            l=self.stn[:-1]; i=l.index('qkv.mm'); ex='; STAMPS '+','.join(l+l[i:-1])+'\n'
        return hdr+A.text()+kd+ex
if __name__=='__main__':
    o=dict(x.split('=') for x in sys.argv[2:])
    g=G(stop=o.get('stop'),stamps=int(o.get("stamps","0")),force_mixed=bool(int(o.get('mixed','0'))),o=o)
    t=g.build(); open(sys.argv[1],'w').write(t)
    print('lines',t.count('\n'),'auto nops',g.A.nops,'stamps',','.join(g.stn))
```

```python
import re
def v(i,n=1): return f"v{i}" if n==1 else f"v[{i}:{i+n-1}]"
def a(i,n=1): return f"a{i}" if n==1 else f"a[{i}:{i+n-1}]"
def s(i,n=1): return f"s{i}" if n==1 else f"s[{i}:{i+n-1}]"

_R1=re.compile(r'^([vas])(\d+)$'); _R2=re.compile(r'^([vas])\[(\d+):(\d+)\]$')
def regs(tok):
    tok=tok.strip()
    neg=tok.startswith('-')
    if neg: tok=tok[1:]
    if tok.startswith('|') and tok.endswith('|'): tok=tok[1:-1]
    m=_R1.match(tok)
    if m: return [(m.group(1),int(m.group(2)))]
    m=_R2.match(tok)
    if m: return [(m.group(1),i) for i in range(int(m.group(2)),int(m.group(3))+1)]
    if tok=='vcc': return [('s',106),('s',107)]
    if tok=='vcc_lo': return [('s',106)]
    if tok=='vcc_hi': return [('s',107)]
    if tok=='exec': return [('s',126),('s',127)]
    if tok=='exec_lo': return [('s',126)]
    if tok=='exec_hi': return [('s',127)]
    if tok=='m0': return [('s',124)]
    return []
TRANS=('v_exp_f32','v_log_f32','v_rcp_f32','v_rsq_f32','v_sqrt_f32','v_sin_f32','v_cos_f32')
class Ins:
    __slots__=('text','op','dst','src','kind','states','region','srcc','wide','sdst','dpp','lds')
def parse(text):
    t=text.split(';')[0].strip()
    I=Ins(); I.text=text; I.states=1; I.srcc=[]; I.wide=False; I.dpp=False; I.lds=False
    parts=t.split(None,1); op=parts[0]; I.op=op
    rest=parts[1] if len(parts)>1 else ''
    rest=re.sub(r'\s+(op_sel|op_sel_hi|neg_lo|neg_hi):\[[01,]+\]','',rest)
    ops=[x.strip() for x in rest.split(',')] if rest else []
    mods=[]
    if ops:
        l=ops[-1].split()
        ops[-1]=l[0] if l else ''
        mods=l[1:]
    R=[regs(o) for o in ops]
    I.dst=[];I.src=[]
    base=re.sub(r'_(e32|e64|dpp|sdwa)$','',op)
    if op.startswith('v_mfma'):
        I.kind='mfma'; I.dst=R[0]; I.src=R[1]+R[2]+R[3]; I.srcc=R[3]
    elif op.startswith('v_'):
        I.kind='valu'
        if base in TRANS: I.kind='trans'
        if base.startswith('v_dot'): I.kind='dot'
        if any(m.startswith(('row_','quad_perm','wave_','bank_mask')) for m in mods): I.dpp=True
        if base.startswith('v_cmp'):
            I.dst=R[0]; I.src=sum(R[1:],[])
        elif base.startswith('v_permlane') and 'swap' in base:
            I.dst=R[0]+R[1]; I.src=R[0]+R[1]
        elif base in ('v_add_co_u32','v_sub_co_u32','v_addc_co_u32','v_subb_co_u32'):
            I.dst=R[0]+R[1]; I.src=sum(R[2:],[])
        else:
            I.dst=R[0]; I.src=sum(R[1:],[])
            if base.startswith(('v_fmac','v_mac','v_dot2c','v_dot4c','v_pk_fmac')) or I.dpp: I.src=I.src+R[0]
            if base=='v_cndmask_b32' and len(ops)==3: I.src+=regs('vcc')
            if base=='v_writelane_b32': I.src+=R[0]
    elif op.startswith('ds_'):
        I.kind='ds'
        if op.startswith(('ds_read','ds_bpermute','ds_permute','ds_swizzle')):
            I.dst=R[0]; I.src=sum(R[1:],[])
        else: I.src=sum(R,[])
    elif op.startswith('buffer_') or op.startswith('global_'):
        I.kind='vm'
        if op in ('buffer_wbl2','buffer_inv'): pass
        elif 'load' in op:
            if 'lds' in mods:
                I.lds=True; I.src=sum(R,[])+regs('m0')
            else:
                I.dst=R[0]; I.src=sum(R[1:],[])
        else:
            I.src=sum(R,[]); I.wide = op.endswith(('x3','x4')); I.sdst=R[0]
    elif op.startswith(('s_load','s_buffer_load','s_memtime','s_memrealtime')):
        I.kind='smem'; I.dst=R[0]; I.src=sum(R[1:],[])
    elif op.startswith('s_'):
        I.kind='salu'
        if op=='s_nop': I.states=int(ops[0],0)+1
        elif op.startswith(('s_cmp','s_bitcmp','s_cbranch','s_branch','s_waitcnt','s_barrier','s_endpgm','s_sleep','s_setprio','s_setreg')):
            I.src=sum(R,[])
            if op in('s_cbranch_vccz','s_cbranch_vccnz'): I.src+=regs('vcc')
        else:
            I.dst=R[0]; I.src=sum(R[1:],[])
            if 'saveexec' in op: I.dst=I.dst+regs('exec')
    else: raise ValueError("unknown op "+text)
    return I
VALUK=('valu','trans','dot')
class Asm:
    def __init__(self):
        self.L=[]; self.H=[]; self._n=0
        self.region=0; self._rid=0; self.rstack=[]
        self.vmq=[]
        self.lgq=[]
        self._id=0
        self.nops=0; self.auto=True
        self.tail=[]
    def cond_begin(self):
        self.rstack.append(self.region); self._rid+=1; self.region=self._rid
    def cond_end(self): self.region=self.rstack.pop()
    def _open(self,r): return r==self.region or r in self.rstack
    def _dist(self,idx):
        pr=self.H[idx].region; d=0
        for J in self.H[idx+1:]:
            if J.region==pr or self._open(J.region): d+=J.states
        return d
    def _need(self,I):
        need=0
        sset=set(I.src); dset=set(I.dst); rw=sset|dset
        n=len(self.H)
        for idx in range(n-1,max(-1,n-40),-1):
            P=self.H[idx]; req=0
            pd=set(P.dst)
            if P.kind=='mfma':
                if I.kind=='mfma':
                    if set(I.srcc)&pd: req=max(req,0 if I.srcc==P.dst else 10)
                    ab=set(I.src[:len(I.src)-len(I.srcc)])
                    if ab&pd: req=max(req,12)
                    if (dset&pd) and I.dst!=P.dst: req=max(req,12)
                    if I.dst==P.dst and I.srcc!=P.dst: req=max(req,12)
                elif I.kind in VALUK or I.kind in('ds','vm'):
                    if rw&pd: req=max(req,12)
                    if I.kind in VALUK and dset&set(P.srcc): req=max(req,7)
                    if I.kind in('ds','vm') and dset&set(P.srcc): req=max(req,7)
            elif P.kind in VALUK:
                pv={r for r in pd if r[0]!='s'}; ps={r for r in pd if r[0]=='s'}
                if I.kind=='mfma' and sset&pv: req=max(req,3 if P.kind=='dot' else 2)
                if I.kind in VALUK:
                    if P.kind=='trans' and I.kind!='trans' and sset&pv: req=max(req,1)
                    if P.kind=='trans' and I.kind=='trans' and sset&pv: req=max(req,1)
                    if P.kind=='dot' and rw&pv:
                        same=(I.kind=='dot' and I.op==P.op and I.dst==P.dst and not (set(I.src[:-len(I.dst)])&pv))
                        if not same: req=max(req,3)
                    if I.dpp and sset&pv: req=max(req,2)
                    if I.op.startswith('v_permlane') and sset&pv: req=max(req,2)
                    if I.op.startswith(('v_readlane','v_readfirstlane')) and sset&pv: req=max(req,1)
                    if sset&ps: req=max(req,4 if I.op.startswith(('v_readlane','v_writelane')) else 2)
                if I.kind in('ds','vm') and P.kind=='dot' and sset&pv: req=max(req,3)
                if I.kind in('ds','vm') and P.kind=='trans' and sset&pv: req=max(req,1)
                if I.kind=='vm' and sset&ps: req=max(req,5)
                if I.kind in('salu','smem') and sset&ps: req=max(req,2)
            elif P.kind=='salu':
                if ('s',124) in pd and I.kind=='vm' and I.lds: req=max(req,1)
                if (pd&set(regs('exec'))) and I.kind in VALUK and (I.dpp or I.op.startswith('v_permlane')): req=max(req,2)
            elif P.kind=='vm' and P.wide:
                if dset&set(P.sdst): req=max(req,2)
            if req:
                d=self._dist(idx)
                if req-d>need: need=req-d
        return need
    def _cnt(self,q,k):
        r=q[k][2]; return sum(1 for e in q[k+1:] if e[2]==r or self._open(e[2]))
    def _waits(self,I):
        rw=set(I.src)|set(I.dst); vm=None; lg=None
        for k in range(len(self.vmq)-1,-1,-1):
            e=self.vmq[k]
            hit = e[1]&(set(I.src) if (I.kind=='vm' and not I.lds) else rw)
            if hit: vm=k; break
        for k in range(len(self.lgq)-1,-1,-1):
            e=self.lgq[k]
            hit = e[1]&(set(I.src) if (I.kind=='ds' and not e[3]) else rw)
            if hit: lg=k; break
        self._emit_wait(vm,lg)
    def _emit_wait(self,vm,lg):
        w=[]
        if vm is not None:
            n=min(63,self._cnt(self.vmq,vm)); w.append(f"vmcnt({n})"); self._pop(self.vmq,vm)
        if lg is not None:
            if any(e[3] for e in self.lgq): n=0; self.lgq=[]
            else: n=min(15,self._cnt(self.lgq,lg)); self._pop(self.lgq,lg)
            w.append(f"lgkmcnt({n})")
        if w: self._raw_ins("s_waitcnt "+" ".join(w))
    def _pop(self,q,k):
        if self.region==0: del q[:k+1]
        else:
            keep=[e for e in q[:k+1] if e[2]!=self.region]
            q[:k+1]=keep
    def _manual(self,q,n):
        k=len(q)-1; c=0
        while k>=0 and c<n:
            if q[k][2]==0: c+=1
            k-=1
        del q[:k+1]
    def _raw_ins(self,text):
        I=parse(text); I.region=self.region; self.H.append(I); self.L.append("    "+text)
        if len(self.H)>200: del self.H[:100]
        return I
    def ins(self,text):
        I=parse(text)
        if I.op=='s_waitcnt':
            m=re.search(r'vmcnt\((\d+)\)',text)
            if m and self.region==0:
                n=int(m.group(1)); self._manual(self.vmq,n)
            m=re.search(r'lgkmcnt\((\d+)\)',text)
            if m and self.region==0:
                n=int(m.group(1))
                if n==0 or not any(e[3] for e in self.lgq): self._manual(self.lgq,n)
            self._raw_ins(text); return
        if self.auto:
            self._waits(I)
            nd=self._need(I)
            while nd>0:
                k=min(nd,16); self._raw_ins(f"s_nop {k-1}"); self.nops+=k; nd-=k
        I=self._raw_ins(text)
        self._id+=1
        if I.kind=='vm':
            d=set(I.dst)
            for e in self.vmq: e[1]-=d
            self.vmq.append([self._id,d,self.region])
        elif I.kind=='ds':
            d=set(I.dst)
            for e in self.lgq: e[1]-=d
            self.lgq.append([self._id,d,self.region,False])
        elif I.kind=='smem': self.lgq.append([self._id,set(I.dst),self.region,True])
        return self._id
    def __call__(self,t):
        r=None
        for line in t.split("\n"):
            line=line.strip()
            if not line or line.startswith(';'): continue
            r=self.ins(line)
        return r
    def wait_vm(self,tag):
        for k,e in enumerate(self.vmq):
            if e[0]==tag: self._emit_wait(k,None); return
    def wait_lg(self,tag):
        for k,e in enumerate(self.lgq):
            if e[0]==tag: self._emit_wait(None,k); return
    def assume(self,ents,lg=()):
        self.vmq=[]; self.lgq=[]; tags=[]
        for e in ents:
            self._id+=1; self.vmq.append([self._id,set(regs(e)) if e else set(),self.region]); tags.append(self._id)
        for e in lg:
            self._id+=1; self.lgq.append([self._id,set(regs(e)),self.region,False])
        return tags
    def snap(self):
        import copy
        return (copy.deepcopy(self.vmq),copy.deepcopy(self.lgq),list(self.H))
    def restore(self,st):
        import copy
        self.vmq,self.lgq,self.H=copy.deepcopy(st[0]),copy.deepcopy(st[1]),list(st[2])
    def merge(self,qa,qb):
        i,j=len(qa)-1,len(qb)-1; out=[]
        while i>=0 and j>=0:
            if qa[i][1]==qb[j][1]:
                r=qa[i][2] if qa[i][2]!=self.region else (qb[j][2] if qb[j][2]!=self.region else self.region)
                out.append([qa[i][0],set(qa[i][1]),r]); i-=1; j-=1
            elif not qa[i][1]: i-=1
            elif not qb[j][1]: j-=1
            else: raise ValueError('paths differ: %r %r'%(qa[i],qb[j]))
        rest=qa[:i+1]+qb[:j+1]
        for e in rest[::-1]:
            if e[1]: out.append([e[0],set(e[1]),self.region])
        self.vmq=out[::-1]; self.lgq=[]
    def forget(self):
        self.vmq=[]; self.lgq=[]
    def flush_hz(self):
        need=0;n=len(self.H)
        for idx in range(n-1,max(-1,n-40),-1):
            P=self.H[idx]
            req={'mfma':12,'valu':5,'trans':5,'dot':5,'salu':2,'vm':2}.get(P.kind,0)
            d=self._dist(idx)
            need=max(need,req-d)
        if need>0: self._raw_ins(f"s_nop {need-1}")
    def label(self,l): self.L.append(l+":")
    def comment(self,c): self.L.append("    ; "+c)
    def raw(self,t): self.L.append(t)
    def newlabel(self,p="L"):
        self._n+=1; return f"{p}_{self._n}"
    def text(self): return "\n".join(self.L)+"\n"
```

```python
import numpy as np, os
FLAGS=0x0; HFLAGS=0x1000; STAMPS=0x10000
REC=0x100000; RS=151552; XOFF=0; HOFF=32768; STX=147456; ST1=149504
HALO=0xB00000; HALO_L=0x400000
WQI=0x1300000
WS_USED=0x1480000
def f32(u): return (u.astype(np.uint32)<<16).view(np.float32)
NAT=np.array([[8*h+j for j in range(8)] for h in range(2)])
PER=np.array([[(j>>2)*8+4*h+(j&3) for j in range(8)] for h in range(2)])
def unfrag(F,m):
    sh=F.shape[:-3]; out=np.zeros(sh+(F.shape[-2],16),np.float32)
    for h in range(2):
        for j in range(8): out[...,m[h][j]]=F[...,h,:,j]
    return out
def recs(w,off,n):
    R=w[REC:REC+64*RS].reshape(64,RS)[:,off:off+n*1024].copy()
    return f32(R.view(np.uint16)).reshape(64,n,2,32,8)
def decode(w,n,L,I):
    R=[]
    if n=='qkv':
        qkv=I[f'qkv{L}'].float().numpy()
        H=w[HALO+L*HALO_L:HALO+(L+1)*HALO_L].reshape(8,32,2,8192)
        F=unfrag(f32(H[:,:,0].copy().view(np.uint16)).reshape(8,32,8,2,32,8),PER)
        R.append(('KH',F.transpose(0,2,3,1,4).reshape(2048,512),qkv[:,512:1024]))
        F=f32(H[:,:,1].copy().view(np.uint16)).reshape(8,32,8,2,2,16,8).transpose(0,1,2,4,3,5,6)
        U=unfrag(F,PER)
        R.append(('VH',U.transpose(0,2,3,5,1,4).reshape(2048,512),qkv[:,1024:]))
    elif n=='o':
        F=unfrag(recs(w,HOFF,32),PER)
        R.append(('O',F.transpose(0,2,1,3).reshape(2048,512),I[f'o{L}']))
    elif n in('x1','x'):
        so=ST1 if n=='x1' else STX
        F=unfrag(recs(w,XOFF,32),NAT)
        M=F.transpose(0,2,1,3).reshape(2048,512)
        R.append((n,M,I[f'{n}{L}']))
        st=w[REC:REC+64*RS].reshape(64,RS)[:,so:so+2048].copy().view(np.float32).reshape(2048,2,8).sum(-1)
        R.append(('stats',st,np.stack([M.sum(1),(M*M).sum(1)],1)))
    elif n=='h':
        F=unfrag(recs(w,HOFF,112),PER)
        M=F.transpose(0,2,1,3).reshape(2048,1792)
        r=I[f'r1{L}'].numpy()
        R.append(('H',M*(r*r)[:,None],I[f'h{L}']))
    return R
def check_weights(w,W):
    Q=f32(w[WQI:WQI+32*49152].view(np.uint16)).reshape(32,16,3,32,16).copy()
    Q[:,:,1]=Q[:,:,1][:,:,np.arange(32)^4]
    return [('WQI',Q.transpose(1,3,2,0,4).reshape(512,1536),W['A_wqkv'])]
def stamps(w,names,cyc=False):
    names=names.split(',')
    S=w[STAMPS:STAMPS+256*4*64*4].view(np.uint32).reshape(256,4,64).astype(np.int64)
    t0=S[:,:,0].min()
    prev=None
    for i,nm in enumerate(names[:64]):
        if cyc:
            x=(S[:,:,i]-S[:,:,0])&0xffffffff
            d='' if prev is None else f'   dur min {np.min(x-prev)} med {int(np.median(x-prev))} max {np.max(x-prev)}   w0..3 '+' '.join(str(int(np.median((x-prev)[:,k]))) for k in range(4))
            print(f'  {nm:10s} {int(np.median(x)):7d}{d}')
        else:
            x=(S[:,:,i]-t0)*0.01
            d='' if prev is None else f'   dur med {np.median(x-prev):.2f} max {np.max(x-prev):.2f}'
            print(f'  {nm:10s} {x.min():7.2f} {np.median(x):7.2f} {x.max():7.2f}{d}')
        prev=x
        if nm in os.environ.get('STM','').split(','):
            m=(x.max(axis=1).reshape(32,8).T)/(1000 if cyc else 1)
            for tm in range(8): print('    t%d '%tm+' '.join('%4.1f'%y for y in m[tm]))
```

```python
import sys,re
sys.path.insert(0,'gen')
from asm2 import *
import layout3 as LY
NAME='interleave_layers__sliding_block__glu_gated_reglu__prompt'
MF='v_mfma_f32_32x32x16_bf16'; MS='v_mfma_f32_16x16x32_bf16'
SX,SWQ,SWS,SOUT,SDBG,SWO,SWG,SWU,SWD=8,12,16,20,24,28,32,36,40
sTEAM,sSLOT,sW,sTQ,sCW,sE,sMODE,sQ,sMYF,sTF,sTO,sONE,sXCC,sHS,sSTI,sHI,sLO,sRHI,sRLO,sSLOW=range(44,64)
sXN,sHB,sGB,sDB,sOB,sLW,sBT,sHF,sW1K=range(64,73)
T0=84
sST=100
vL,vL16,RES,vW1,vW2,vWV,vRRD,vRW0,vRW1,vXST,vROW,vSST,vSLD,vDSL,vPX,vPA,vSTMP=0,1,2,10,11,12,13,14,15,16,17,18,19,20,21,22,23
CSG,CSQ,CSV,vG0,vG1,WOV=24,28,29,30,31,32
vGA,vGW=24,25
vP1,vT0,vT1,vD=252,253,254,255
RW=114688; AK=RW; AV=AK+16384; AO=AV+16384; SCR=131072
F_X1,F_X2,F_ATB,F_ATA,F_WO1,F_WO2,F_GU1,F_GU2,F_N=1,2,3,4,5,6,7,8,8
def srd(i): return s(i,4)
WS=srd(SWS)
def woreg(q,n=4): return v(WOV+4*q,n) if q<8 else a(224+4*(q-8),n)

class G:
    def __init__(self,o):
        self.o=o; self.stop=o.get('stop'); self.stamps=int(o.get('stamps',0)); self.force_mixed=int(o.get('mixed',0))
        self.A=Asm(); self.tail=[]; self.tm="s_memtime" if self.stamps==2 else "s_memrealtime"; self.stn=[]
        self.nt=' nt' if int(o.get('nt',0)) else ''
    def P(self,k,d): return int(self.o.get(k,d))
    def S(self,k,d):
        r={}
        for part in self.o.get(k,d).split('+'):
            if not part: continue
            n=1; st=1
            if '*' in part: part,n=part.split('*')
            if '/' in part: part,st=part.split('/')
            a_,b_=(part.split('-')+[part])[:2]
            for i in range(int(a_),int(b_)+1,int(st)): r[i]=r.get(i,0)+int(n)
        return r
    def stamp(self,name):
        if not self.stamps: return
        A=self.A
        A(f"s_waitcnt lgkmcnt(0)\ns_mov_b32 m0, s{sSTI}\nv_writelane_b32 v{vSTMP}, s{sST}, m0\ns_add_u32 s{sSTI}, s{sSTI}, 1\n{self.tm} {s(sST,2)}")
        self.stn.append(name)
    def fine(self,ph,i,every=4):
        if self.o.get('fs')==f"{ph}{self.L}" and i%every==0: self.stamp(f"{ph}:{i}")
    def end(self):
        A=self.A
        if self.stamps:
            self.stamp('end-')
            A(f"""s_lshl_b32 s{T0}, s2, 2
            s_add_u32 s{T0}, s{T0}, s{sW}
            s_lshl_b32 s{T0}, s{T0}, 8
            s_add_u32 s{T0}, s{T0}, {LY.STAMPS}
            v_lshlrev_b32 v{vT0}, 2, v{vL}
            buffer_store_dword v{vSTMP}, v{vT0}, {WS}, s{T0} offen""")
        A("s_endpgm")
    def acquire(self):
        A=self.A; b=A.newlabel('L_acq'); r=A.newlabel('L_acr')
        A(f"s_cmp_lg_u32 s{sMODE}, 0\ns_cbranch_scc1 {b}"); A.label(r)
        self.tail.append(f"{b}:\n    buffer_inv sc1\n    s_waitcnt vmcnt(0)\n    s_branch {r}")
    def publish(self,val,tag):
        A=self.A; b=A.newlabel('L_pub'); r=A.newlabel('L_pur')
        assert tag
        A(f"v_mov_b32 v{vP1}, {val}")
        A.wait_vm(tag)
        A(f"s_mov_b64 exec, 1\ns_cmp_lg_u32 s{sMODE}, 0\ns_cbranch_scc1 {b}")
        A(f"buffer_store_dword v{vP1}, off, {WS}, s{sMYF}"); A.label(r)
        A("s_mov_b64 exec, -1")
        self.tail.append(f"{b}:\n    buffer_wbl2 sc1\n    s_waitcnt vmcnt(0)\n    buffer_store_dword v{vP1}, off, {WS}, s{sMYF} sc1\n    s_branch {r}")
    def hpublish(self,val,tag):
        A=self.A
        assert tag
        A(f"v_mov_b32 v{vP1}, {2*self.L+val}\ns_add_u32 s{T0+15}, s{sMYF}, {LY.HFLAGS}")
        A.wait_vm(tag)
        A(f"s_mov_b64 exec, 1\nbuffer_store_dword v{vP1}, off, {WS}, s{T0+15} sc1\ns_mov_b64 exec, -1")
    def F(self,f): return f+self.L*F_N
    def cap(self,fn):
        class Cap:
            def __init__(s_): s_.L=[]
            def __call__(s_,x): s_.L+= [y.strip() for y in x.split('\n') if y.strip() and not y.strip().startswith(';')]
        A=self.A; c=Cap(); self.A=c
        try: fn()
        finally: self.A=A
        return c.L
    def pop(self,q,n=1):
        for _ in range(n):
            if not q: return
            g=q.pop(0)
            if callable(g): g()
            elif isinstance(g,(list,tuple)):
                for x in g: self.A(x)
            else: self.A(g)
    def cond(self,test,fn):
        A=self.A; l=A.newlabel('L_c')
        A(f"{test}\ns_cbranch_scc1 {l}")
        A.cond_begin(); fn(); A.cond_end(); A.label(l)
    def bg(self,n):
        r=None
        for _ in range(n):
            if self.L or not self.bgq: break
            g=self.bgq[0]
            m=re.match(r'a\[(\d+):',g[-1].split()[1])
            if m and int(m.group(1))>=self.xfree: break
            if srd(SWD) in g[-1] and 56-len(self.bgq)>=min(self.wn,32): break
            for x in self.bgq.pop(0): r=self.A(x)
        return r
    def try_issue(self,srd_,soff,dst,off):
        self.A(f"buffer_load_dword v{dst}, v{off}, {srd_}, {soff} offen sc1")
    def try_check(self,srd_,soff,dst,off,target,mask=False):
        A=self.A; l=A.newlabel('L_poll'); d=A.newlabel('L_ok')
        def test():
            if mask: return f"v_and_b32 v{vT1}, {target}, v{dst}\nv_cmp_ne_u32 vcc, {target}, v{vT1}"
            return f"v_cmp_gt_u32 vcc, {target}, v{dst}"
        A(test()); A(f"s_cbranch_vccnz {l}"); A.label(d)
        body=f"""{l}:
    s_nop 4
    buffer_load_dword v{dst}, v{off}, {srd_}, {soff} offen sc1
    s_waitcnt vmcnt(0)
"""+"".join("    "+x+"\n" for x in test().split("\n"))+f"""    s_nop 1
    s_cbranch_vccz {d}
    s_sub_u32 s{sTO}, s{sTO}, 1
    s_cbranch_scc0 {l}
    s_endpgm"""
        self.tail.append(body)
    def ln_scalars(self,vs,vq,vm,vr,t):
        A=self.A
        A(f"""v_mul_f32 v{vs}, 0x3b000000, v{vs}
        v_mul_f32 v{vq}, 0x3b000000, v{vq}
        v_fma_f32 v{vq}, -v{vs}, v{vs}, v{vq}
        v_max_f32 v{vq}, 0, v{vq}""")
        if vm is not None: A(f"v_cvt_pk_bf16_f32 v{vm}, -v{vs}, -v{vs}")
        if vr is not None:
            A(f"""v_cvt_pk_bf16_f32 v{t}, v{vq}, v{vq}
            v_and_b32 v{t}, 0xffff0000, v{t}
            v_add_f32 v{t}, 0x3727c5ac, v{t}
            v_cvt_pk_bf16_f32 v{t}, v{t}, v{t}
            v_and_b32 v{t}, 0xffff0000, v{t}
            v_sqrt_f32 v{t}, v{t}
            v_cvt_pk_bf16_f32 v{t}, v{t}, v{t}
            v_and_b32 v{t}, 0xffff0000, v{t}
            v_rcp_f32 v{vr}, v{t}""")
    def sum8(self,b):
        self.A(f"""v_add_f32 v{b}, v{b}, v{b+1}
        v_add_f32 v{b+2}, v{b+2}, v{b+3}
        v_add_f32 v{b+4}, v{b+4}, v{b+5}
        v_add_f32 v{b+6}, v{b+6}, v{b+7}
        v_add_f32 v{b}, v{b}, v{b+2}
        v_add_f32 v{b+4}, v{b+4}, v{b+6}
        v_add_f32 v{b}, v{b}, v{b+4}""")
    def cs_pack(self,r,t):
        self.A(f"""v_cvt_pk_bf16_f32 v{t}, v{r}, v{r}
        v_and_b32 v{t}, 0xffff0000, v{t}
        v_sub_f32 v{t}, v{r}, v{t}
        v_cvt_pk_bf16_f32 v{r}, v{r}, v{t}""")
    def selector(self,r):
        self.A(f"""v_bfe_u32 v{r}, v0, 4, 1
        v_lshlrev_b32 v{r}, 2, v{r}
        v_and_b32 v{r+1}, 15, v0
        v_cmp_eq_u32 vcc, v{r}, v{r+1}
        v_mov_b32 v{r+1}, s{sONE}
        v_cndmask_b32 v{r}, 0, v{r+1}, vcc
        v_mov_b32 v{r+1}, v{r}
        v_mov_b32 v{r+2}, v{r}
        v_mov_b32 v{r+3}, v{r}""")
    def mark(self,bits):
        A=self.A
        def f():
            A(f"""s_or_b32 s{T0+14}, s{sXCC}, {bits}
            v_mov_b32 v{vT0}, s{T0+14}
            s_lshl_b32 s{T0+14}, s{sTEAM}, 5
            s_add_u32 s{T0+14}, s{T0+14}, s{sSLOT}
            s_mov_b64 exec, 1
            buffer_store_byte v{vT0}, off, {srd(SDBG)}, s{T0+14} sc1
            s_mov_b64 exec, -1""")
        return f
    def q_wo(self):
        return [[f"s_add_u32 s{sBT}, s{sOB}, {q*8192}",f"buffer_load_dwordx4 {woreg(q)}, v{vD}, {srd(SWO)}, s{sBT} offen{self.nt}"] for q in range(16)]
    def q_wd(self):
        return [[f"s_add_u32 s{sBT}, s{sDB}, {q*8192}",f"buffer_load_dwordx4 {a(4*q,4)}, v{vD}, {srd(SWD)}, s{sBT} offen{self.nt}"] for q in range(56)]
    def q_wgu(self,j):
        L=[]
        for gu in range(2):
            for rh in range(2):
                L.append([f"s_add_u32 s{sBT}, s{sGB}, {j*64*3584+rh*8*3584}",f"s_add_u32 m0, s{sLW}, {j*16384+gu*2048+rh*1024}",
                          f"buffer_load_dwordx4 v{vG0+gu}, {srd(SWU if gu else SWG)}, s{sBT} offen{self.nt} lds"])
        return L
    def q_wgr(self):
        return [[f"s_add_u32 s{sBT}, s{sGB}, {(n>>2)*64*3584+(n&1)*8*3584}",
                 f"buffer_load_dwordx4 {a(4*n,4)}, v{vGA}, {srd(SWU if n&2 else SWG)}, s{sBT} offen"] for n in range(32)]
    def wout(self,k,lim=28):
        for _ in range(k):
            n=self.wn
            if self.L or n>=lim: return
            if any(g[-1].split()[1]==a(4*n,4)+',' and srd(SWD) not in g[-1] for g in self.bgq):
                assert lim==28
                return
            if n==16: self.A(f"v_add_u32 v{vGW}, 0x10000, v{vGW}\nv_add_u32 v{vGW+1}, 0x10000, v{vGW+1}")
            self.A(f"ds_write_b128 v{vGW+((n>>1)&1)}, {a(4*n,4)} offset:{((n>>2)&3)*16384+(n&3)*1024}")
            self.wn+=1
    def conv_setup(self,r):
        self.A(f"""v_lshrrev_b32 v{r}, 5, v{vL}
        v_bfe_u32 v{r+1}, v{vL}, 2, 2
        v_lshl_add_u32 v{r+1}, v{r}, 2, v{r+1}
        v_lshlrev_b32 v{r+1}, 7, v{r+1}
        v_bfe_u32 v{r}, v{vL}, 4, 1
        v_lshl_add_u32 v{r+1}, v{r}, 5, v{r+1}
        v_lshlrev_b32 v{r}, 6, v{r}
        v_and_b32 v{r+2}, 3, v{vL}
        v_lshl_add_u32 v{r+1}, v{r+2}, 3, v{r+1}
        v_bfe_u32 v{r+2}, v{vL}, 3, 1
        v_lshl_add_u32 v{r+1}, v{r+2}, 6, v{r+1}
        v_sub_u32 v{r+2}, v{vRW0}, v{vL16}
        v_add_u32 v{r+1}, v{r+1}, v{r+2}
        v_xor_b32 v{r+2}, 64, v{r+1}
        v_xor_b32 v{r}, v{r}, v{vRW0}""")
    def conv_unit(self,reg,b,r):
        L=[f"ds_write_b128 v{r}, {reg(b,4)}",f"ds_write_b128 v{r}, {reg(b+4,4)} offset:1024"]
        for cb in range(2):
            L+= [f"ds_read_b64_tr_b16 {reg(b+4*cb,2)}, v{r+1+cb}",f"ds_read_b64_tr_b16 {reg(b+4*cb+2,2)}, v{r+1+cb} offset:1024"]
        return L
    def xstore(self,rs,srec,so,R,woff=0):
        A=self.A
        A(f"""s_lshl_b32 s{T0+3}, s{sCW}, 12
        s_add_u32 s{T0+2}, s{srec}, s{T0+3}
        buffer_store_dwordx4 {v(rs,4)}, v{vXST}, {WS}, s{T0+2} offen offset:{woff*128}
        v_mov_b32 v{R}, 0
        v_mov_b32 v{R+1}, 0""")
        for n in range(4): A(f"v_dot2c_f32_bf16 v{R}, s{sONE}, v{rs+n}\nv_dot2c_f32_bf16 v{R+1}, v{rs+n}, v{rs+n}")
        A(f"""s_lshl_b32 s{T0+3}, s{sCW}, 2
        s_add_u32 s{T0+2}, s{srec}, s{T0+3}
        s_add_u32 s{T0+2}, s{T0+2}, {so}
        v_add_f32_dpp v{R}, v{R}, v{R} row_ror:8 row_mask:0xf bank_mask:0xf
        v_add_f32_dpp v{R+1}, v{R+1}, v{R+1} row_ror:8 row_mask:0xf bank_mask:0xf
        v_permlane16_swap_b32 v{R}, v{R+1}
        v_add_f32 v{R}, v{R}, v{R+1}
        v_mov_b32 v{R+1}, v{R}
        v_permlane32_swap_b32 v{R}, v{R+1}
        v_add_f32 v{R}, v{R}, v{R+1}""")
        return A(f"buffer_store_dword v{R}, v{vSST}, {WS}, s{T0+2} offen offset:{woff*512}")
    NG,XB=7,28672
    XF,SH,AW,XA,XD,TB,PD,XP=64,76,80,88,92,94,98,100
    sXH,sXM=T0+10,T0+12
    def xdma(self,g,pi):
        return self.A(f"""s_add_u32 s{sBT}, s{self.sXH+g//8}, {(g%8)*128+pi*8192}
        s_add_u32 m0, s{self.sXM}, {(g%self.NG)*4096+pi*1024}
        buffer_load_dwordx4 v{self.XD+(pi&1)}, {srd(SX)}, s{sBT} offen lds""")
    def xreg(self,g,pi): return a(112+4*(4*(g-self.NG)+pi),4)
    def xld(self,g,pi):
        return self.A(f"""s_add_u32 s{sBT}, s{self.sXH+g//8}, {(g%8)*128+pi*8192}
        buffer_load_dwordx4 {self.xreg(g,pi)}, v{self.XD+(pi&1)}, {srd(SX)}, s{sBT} offen""")
    def prologue(self):
        A=self.A; XD=self.XD
        A(f"""s_cmp_ge_u32 s2, 256
        s_cbranch_scc1 L_exit
        s_load_dwordx16 s[64:79], s[0:1], 0
        s_load_dwordx4 s[80:83], s[0:1], 64""")
        A("s_getpc_b64 s[4:5]"); A.label("L_pc")
        if self.stamps: A(f"{self.tm} {s(sST,2)}\ns_mov_b32 s{sSTI}, 0\nv_mov_b32 v{vSTMP}, 0"); self.stn.append('start')
        A(f"""v_lshrrev_b32 v2, 6, v0
        v_and_b32 v0, 63, v0
        v_readfirstlane_b32 s{sW}, v2
        v_lshlrev_b32 v{vL16}, 4, v0
        s_and_b32 s{sTEAM}, s2, 7
        s_lshr_b32 s{sSLOT}, s2, 3
        s_lshl_b32 s{T0}, s{sSLOT}, 2
        s_add_u32 s{T0}, s{T0}, s{sW}
        s_lshl_b32 s{T0}, s{T0}, 10
        v_and_b32 v4, 7, v0
        v_lshlrev_b32 v3, 7, v4
        v_add_u32 v3, s{T0}, v3
        v_min_u32 v3, L_end-L_pc-4, v3
        {'global_load_dword v251, v3, s[4:5]' if self.P('ct',1) else ''}
        v_lshrrev_b32 v7, 1, v0
        v_xor_b32 v8, 4, v7
        v_mul_u32_u24 v7, 3072, v7
        v_mul_u32_u24 v8, 3072, v8
        v_and_b32 v9, 1, v0
        v_lshl_add_u32 v7, v9, 4, v7
        v_lshl_add_u32 v8, v9, 4, v8
        s_mul_i32 s{T0+6}, s{sW}, {4*98304}
        s_lshl_b32 s{T0+7}, s{sSLOT}, 5
        s_add_u32 s{T0+6}, s{T0+6}, s{T0+7}
        s_mul_i32 s{T0+7}, s{sW}, {4*3072}
        s_lshl_b32 s{sTF}, s{sTEAM}, 9
        s_lshl_b32 s{T0+8}, s{sSLOT}, 4
        s_add_u32 s{T0+8}, s{T0+8}, s{sTF}
        v_mov_b32 v104, 0
        v_mov_b32 v105, 0
        v_mov_b32 v106, 0
        v_mov_b32 v107, 0
        s_waitcnt lgkmcnt(0)""")
        self.stamp('p.ka')
        def mk(sr,p,sz): A(f"s_mov_b32 s{sr}, s{p}\ns_mov_b32 s{sr+1}, s{p+1}\ns_mov_b32 s{sr+2}, {sz}\ns_mov_b32 s{sr+3}, 0x20000")
        mk(SX,64,2097152); mk(SWQ,66,1572864); mk(SWS,82,LY.WS_USED)
        A(f"""s_lshl_b32 s{T0}, s{sTEAM}, 3
        s_add_u32 s{self.sXH+1}, s{T0}, s{sW}
        s_sub_u32 s{self.sXH}, s{T0}, s{sW}
        s_add_u32 s{self.sXH}, s{self.sXH}, 7
        s_mul_i32 s{sHI}, s{self.sXH}, {LY.RS}
        s_mul_i32 s{sLO}, s{self.sXH+1}, {LY.RS}
        s_add_u32 s{sHI}, s{sHI}, {LY.REC}
        s_add_u32 s{sLO}, s{sLO}, {LY.REC}
        s_lshl_b32 s{self.sXH}, s{self.sXH}, 15
        s_lshl_b32 s{self.sXH+1}, s{self.sXH+1}, 15
        s_lshl_b32 s{T0+1}, s{sSLOT}, 10
        s_add_u32 s{T0+2}, s{T0+1}, s{self.sXH}
        s_add_u32 s{T0+3}, s{T0+1}, s{self.sXH+1}
        buffer_load_dwordx4 v[112:115], v{vL16}, {srd(SX)}, s{T0+2} offen
        buffer_load_dwordx4 v[116:119], v{vL16}, {srd(SX)}, s{T0+3} offen""")
        if self.P('wt',1):
            tt=A(f"""s_lshl_b32 s{T0+9}, s{sSLOT}, 2
            s_add_u32 s{T0+9}, s{T0+9}, s{sW}
            s_mul_i32 s{T0+9}, s{T0+9}, 12288
            v_lshlrev_b32 v3, 7, v0
            buffer_load_dword v250, v3, {srd(SWQ)}, s{T0+9} offen
            s_add_u32 s{T0+9}, s{T0+9}, 8192
            s_mov_b64 exec, 0xffffffff
            buffer_load_dword v250, v3, {srd(SWQ)}, s{T0+9} offen
            s_mov_b64 exec, -1""")
        self.cond(f"s_cmp_lg_u32 s{sW}, 0",lambda: A(f"""s_mov_b64 exec, 1
            buffer_store_dwordx4 v[104:107], off, {WS}, s{T0+8} sc1
            s_add_u32 s{T0+8}, s{T0+8}, {LY.HFLAGS}
            buffer_store_dwordx4 v[104:107], off, {WS}, s{T0+8} sc1
            s_mov_b64 exec, -1"""))
        self.stamp('p.wi')
        for sr,p_,sz in ((SDBG,80,256),(SOUT,78,2097152),(SWO,68,524288),(SWG,72,1835008),(SWU,74,1835008),(SWD,76,1835008)): mk(sr,p_,sz)
        A(f"""s_mul_i32 s{self.sXM}, s{sW}, {self.XB}
        v_lshrrev_b32 v9, 3, v0
        v_xor_b32 v5, v4, v9
        v_lshlrev_b32 v{XD}, 10, v9
        v_lshl_add_u32 v{XD}, v5, 4, v{XD}
        v_xor_b32 v{XD+1}, 0x410, v{XD}""")
        self.xtag={}
        for g in range(self.P('xg0',3)):
            for pi in range(4): self.xtag[g]=self.xdma(g,pi)
        A(f"""s_mov_b32 s{sONE}, 0x3f803f80
        s_lshl_b32 s{T0+1}, s{sSLOT}, 2
        s_add_u32 s{T0+1}, s{T0+1}, {LY.STX}
        v_bfe_u32 v124, v0, 4, 1
        v_lshlrev_b32 v124, 7, v124""")
        for q in range(2):
            R=120+2*q
            A(f"v_mov_b32 v{R}, 0\nv_mov_b32 v{R+1}, 0")
            for n in range(4): A(f"v_dot2c_f32_bf16 v{R}, s{sONE}, v{112+4*q+n}\nv_dot2c_f32_bf16 v{R+1}, v{112+4*q+n}, v{112+4*q+n}")
        for d in (8,4,2,1):
            for R in range(120,124): A(f"v_add_f32_dpp v{R}, v{R}, v{R} row_ror:{d} row_mask:0xf bank_mask:0xf")
        for q in range(2):
            R=120+2*q
            ts=A(f"""v_permlane16_swap_b32 v{R}, v{R+1}
            v_add_f32 v{R}, v{R}, v{R+1}
            v_mov_b32 v{R+1}, v{R}
            v_permlane32_swap_b32 v{R}, v{R+1}
            v_add_f32 v{R}, v{R}, v{R+1}
            s_add_u32 s{T0+2}, s{T0+1}, s{sLO if q else sHI}
            buffer_store_dword v{R}, v124, {WS}, s{T0+2} offen sc1""")
        A(f"""s_and_b32 s{sE}, s{sSLOT}, 1
        s_lshr_b32 s{T0+1}, s{sSLOT}, 1
        s_mul_i32 s{T0+1}, s{T0+1}, 224
        s_mul_i32 s{T0+2}, s{sE}, 96
        s_add_u32 s{T0+1}, s{T0+1}, s{T0+2}
        s_mul_i32 s{sGB}, s{sW}, {16*3584}
        s_add_u32 s{sGB}, s{sGB}, s{T0+1}
        v_mul_u32_u24 v{vGA}, 3584, v9
        v_lshl_add_u32 v{vGA}, v4, 4, v{vGA}""")
        self.bg(self.P('pg',10))
        self.stamp('p.xi')
        if self.P('wt',2)==1: A.wait_vm(tt)
        self.stamp('p.tt')
        for kg in range(4):
            for sub in range(3):
                tw=A(f"s_add_u32 s{T0+9}, s{T0+6}, {kg*98304+sub*1024}\ns_add_u32 m0, s{T0+7}, {RW+kg*3072+sub*1024}\nbuffer_load_dwordx4 v{8 if sub==1 else 7}, {srd(SWQ)}, s{T0+9} offen lds")
        A(f"""s_and_b32 s{sTQ}, s{sSLOT}, 3
        s_lshr_b32 s{sCW}, s{sSLOT}, 2
        s_getreg_b32 s{sXCC}, hwreg(HW_REG_XCC_ID)
        s_and_b32 s{sXCC}, s{sXCC}, 15
        s_add_u32 s{T0+1}, s{T0}, s{sTQ}
        s_sub_u32 s{T0+2}, s{T0}, s{sTQ}
        s_add_u32 s{T0+2}, s{T0+2}, 7
        v_bfe_u32 v5, v0, 3, 1
        v_lshrrev_b32 v6, 4, v0
        s_lshl_b32 s{T0+3}, s{sW}, 3
        v_add_u32 v4, s{T0+3}, v4
        v_lshlrev_b32 v{vROW}, 10, v4
        v_lshl_add_u32 v{vROW}, v6, 5, v{vROW}
        v_lshl_add_u32 v{vROW}, v5, 4, v{vROW}
        s_lshl_b32 s{T0+3}, s{sCW}, 7
        s_lshl_b32 s{T0+4}, s{T0+2}, 15
        s_add_u32 s{T0+4}, s{T0+4}, s{T0+3}
        s_lshl_b32 s{T0+5}, s{T0+1}, 15
        s_add_u32 s{T0+5}, s{T0+5}, s{T0+3}""")
        A(f"""s_mov_b32 s{sTO}, 200000
        s_lshl_b32 s{T0+6}, s{sSLOT}, 4
        s_add_u32 s{T0+7}, s{sTF}, s{T0+6}
        s_lshl_b32 s{T0+8}, s{sW}, 2
        s_add_u32 s{sMYF}, s{T0+7}, s{T0+8}
        s_max_i32 s{sHF}, s{sTF}, 512
        s_add_u32 s{sHF}, s{sHF}, s{T0+6}
        s_add_u32 s{sHF}, s{sHF}, {LY.HFLAGS-512}
        s_mul_i32 s{sRHI}, s{T0+2}, {LY.RS}
        s_add_u32 s{sRHI}, s{sRHI}, {LY.REC}
        s_mul_i32 s{sRLO}, s{T0+1}, {LY.RS}
        s_add_u32 s{sRLO}, s{sRLO}, {LY.REC}
        s_lshl_b32 s{sHB}, s{sTEAM}, 19
        s_lshl_b32 s{T0+6}, s{sSLOT}, 14
        s_add_u32 s{sHB}, s{sHB}, s{T0+6}
        s_add_u32 s{sHB}, s{sHB}, {LY.HALO}
        s_lshl_b32 s{sW1K}, s{sW}, 10
        s_lshl_b32 s{sLW}, s{sW}, 12
        s_lshl_b32 s{sOB}, s{sW}, 17
        s_add_u32 s{sOB}, s{sOB}, s{T0+3}
        s_mul_i32 s{sDB}, s{sW}, {448*1024}
        s_add_u32 s{sDB}, s{sDB}, s{T0+3}""")
        A(f"""v_lshrrev_b32 v2, 5, v0
        v_bfe_u32 v3, v0, 4, 1
        v_bfe_u32 v8, v0, 2, 2
        v_lshl_add_u32 v9, v2, 3, v8
        v_lshlrev_b32 v9, 5, v9
        v_and_b32 v7, 3, v0
        v_lshl_add_u32 v9, v7, 3, v9
        v_add_u32 v{vWV}, {RW+2048}, v9
        v_mul_u32_u24 v{vW1}, 1152, v3
        v_add3_u32 v{vW1}, v{vW1}, v9, v9
        v_sub_u32 v{vW1}, v{vW1}, v9
        v_add_u32 v{vW1}, {RW}, v{vW1}
        v_xor_b32 v{vW2}, 0x80, v{vW1}
        v_and_b32 v9, 31, v0
        v_lshlrev_b32 v{vSLD}, 6, v9
        v_lshl_add_u32 v{vSLD}, v2, 5, v{vSLD}
        v_lshlrev_b32 v9, 3, v5
        v_xor_b32 v9, v9, v4
        v_lshlrev_b32 v{vRRD}, 4, v9
        v_lshl_add_u32 v{vRRD}, v2, 12, v{vRRD}
        v_lshl_add_u32 v9, v3, 1, v5
        v_lshl_add_u32 v{vRRD}, v9, 10, v{vRRD}
        v_add_u32 v{vRRD}, {SCR}, v{vRRD}
        s_lshl_b32 s{T0+6}, s{sW}, 13
        s_add_u32 s{T0+6}, s{T0+6}, {SCR}
        v_add_u32 v{vRW0}, s{T0+6}, v{vL16}
        v_xor_b32 v{vRW1}, 0x80, v{vRW0}
        v_lshlrev_b32 v{vXST}, 4, v4
        v_lshl_add_u32 v{vXST}, v5, 9, v{vXST}
        v_lshl_add_u32 v{vXST}, v6, 10, v{vXST}
        v_lshlrev_b32 v{vSST}, 6, v4
        v_lshl_add_u32 v{vDSL}, v5, 5, v{vSST}
        v_lshl_add_u32 v{vSST}, v3, 5, v{vSST}
        v_bfe_u32 v9, v0, 2, 3
        v_lshlrev_b32 v{vPX}, 6, v9
        v_lshl_add_u32 v{vPX}, v7, 2, v{vPX}
        s_lshl_b32 s{T0+6}, s{sW}, 4
        v_add_u32 v{vPX}, s{T0+6}, v{vPX}
        v_and_b32 v9, 7, v0
        v_lshlrev_b32 v{vPA}, 4, v9
        s_lshl_b32 s{T0+6}, s{sW}, 7
        s_lshl_b32 s{T0+8}, s{sTQ}, 2
        s_add_u32 s{T0+6}, s{T0+6}, s{T0+8}
        v_add_u32 v{vPA}, s{T0+6}, v{vPA}
        v_lshrrev_b32 v8, 3, v0
        v_lshlrev_b32 v{vD}, 10, v8
        v_lshl_add_u32 v{vD}, v9, 4, v{vD}""")
        for gu in range(2):
            A(f"""v_bfe_u32 v9, v0, 1, 2
            v_and_b32 v7, 3, v8
            v_xor_b32 v9, v9, v7
            v_xor_b32 v9, {gu}, v9
            v_and_b32 v7, 1, v0
            v_lshlrev_b32 v7, 4, v7
            v_lshl_add_u32 v9, v9, 5, v7
            v_mul_u32_u24 v{vG0+gu}, 3584, v8
            v_add_u32 v{vG0+gu}, v{vG0+gu}, v9
            v_lshl_add_u32 v{vGW+gu}, v8, 7, v9
            v_add_u32 v{vGW+gu}, s{sLW}, v{vGW+gu}""")
        A(f"v_and_b32 v9, 7, v0\nv_add_u32 v{self.XP}, s{self.sXM}, v{vL16}")
        XA=self.XA
        A(f"""v_bfe_u32 v7, v0, 3, 2
        v_lshlrev_b32 v{XA}, 10, v7
        v_and_b32 v7, 1, v7
        v_xor_b32 v7, v7, v9
        v_lshl_add_u32 v{XA}, v7, 7, v{XA}
        v_xor_b32 v7, v2, v9
        v_lshl_add_u32 v{XA}, v7, 4, v{XA}
        v_add_u32 v{XA}, s{self.sXM}, v{XA}""")
        for k in (1,2,3): A(f"v_xor_b32 v{XA+k}, {k*32}, v{XA}")
        PD=self.PD
        A(f"""s_sub_u32 s{T0+6}, s{sTEAM}, 1
        s_max_i32 s{T0+6}, s{T0+6}, 0
        s_lshl_b32 s{T0+6}, s{T0+6}, 5
        s_lshl_b32 s{T0+8}, s{sTEAM}, 5
        v_and_b32 v{PD}, 7, v0
        v_lshlrev_b32 v{PD}, 2, v{PD}
        v_mov_b32 v{vT0}, s{T0+8}
        v_mov_b32 v{vT1}, s{T0+6}
        v_cmp_gt_u32 vcc, 32, v0
        v_cndmask_b32 v{vT0}, v{vT1}, v{vT0}, vcc
        v_add_u32 v{PD}, v{PD}, v{vT0}""")
        self.stamp('p.iss')
        if self.P('bench',0):
            def burst(nm,q):
                for g in q:
                    for x in g: A(x)
                self.stamp(nm+'.i'); A("s_waitcnt vmcnt(0)\ns_barrier"); self.stamp(nm)
            A("s_waitcnt vmcnt(0)\ns_barrier"); self.stamp('wq')
            G_=sum((self.q_wgu(j) for j in range(8)),[])
            burst('wgr',self.q_wgr()); burst('wgr2',self.q_wgr()); burst('wgu2',G_); burst('wd',self.q_wd()); burst('wd2',self.q_wd()); burst('wo',self.q_wo()); burst('wgu3',G_)
            self.stamp('x'); self.end(); return
        self.selector(184)
        assert ts<tw
        A.wait_vm(tw)
        self.stamp('p.w')
        A("s_barrier")
        self.cond(f"s_cmp_lg_u32 s{sW}, 0",self.mark(0xc0))
        self.stamp('p.bar')
        A(f"""s_bitcmp1_b32 s{sW}, 0
        s_cselect_b64 vcc, -1, 0
        v_add_u32 v104, 0x80, v{vWV}
        v_cndmask_b32 v102, v{vW1}, v{vWV}, vcc
        v_cndmask_b32 v103, v{vW2}, v104, vcc
        s_lshr_b32 s{T0+6}, s{sW}, 1
        s_mul_i32 s{T0+6}, s{T0+6}, {8*3072}
        v_add_u32 v102, s{T0+6}, v102
        v_add_u32 v103, s{T0+6}, v103""")
        for k in range(16):
            o=(k>>1)*3072+(k&1)*512
            A(f"ds_read_b64_tr_b16 {v(112+k*4,2)}, v102 offset:{o}\nds_read_b64_tr_b16 {v(114+k*4,2)}, v103 offset:{o}")
        A(f"""s_lshl_b32 s{T0+6}, s{sTEAM}, 2
        s_add_u32 s{T0+6}, s{T0+6}, s{sW}
        s_mul_i32 s{T0+6}, s{T0+6}, 1536
        v_add_u32 v106, s{T0+6}, v{vL16}
        v_lshlrev_b32 v107, 3, v0
        v_add_u32 v107, s{T0+6}, v107
        v_add_u32 v108, {RW}, v106
        v_add_u32 v109, {RW}, v107
        ds_read_b128 v[176:179], v108
        ds_read_b64 v[180:181], v109 offset:1024""")
        for k in range(16): A(f"{MS} {v(188,4)}, {v(184,4)}, {v(112+4*k,4)}, {v(188,4) if k else '0'}")
        A(f"""s_lshl_b32 s{T0+6}, s{sW}, 8
        v_lshlrev_b32 v102, 2, v0
        v_add_u32 v103, s{T0+6}, v102
        v_add_u32 v102, s{self.sXM}, v102
        v_add_u32 v102, {self.XB-4096}, v102
        v_add_u32 v110, {2*self.XB}, v103""")
        for q in range(4): A(f"ds_write_b32 v{110 if q&2 else 103}, v188 offset:{(q&1)*self.XB+self.XB-4096}")
        A("s_waitcnt lgkmcnt(0)\ns_barrier")
        A(f"""ds_read_b32 v{CSQ}, v102
        ds_read_b32 v{CSV}, v102 offset:256
        ds_read_b32 v104, v102 offset:512
        ds_read_b32 v105, v102 offset:768""")
        self.tdump=A(f"""s_mul_i32 s{T0+6}, s{sSLOT}, 49152
        s_add_u32 s{T0+6}, s{T0+6}, {LY.WQI}
        buffer_store_dwordx4 v[176:179], v106, {WS}, s{T0+6} offen sc1
        buffer_store_dwordx2 v[180:181], v107, {WS}, s{T0+6} offen offset:1024 sc1""")
        A(f"v_add_f32 v{CSQ}, v{CSQ}, v104\nv_add_f32 v{CSV}, v{CSV}, v105")
        self.cs_pack(CSQ,104); self.cs_pack(CSV,104)
    def mode(self):
        A=self.A; PD=self.PD
        A(f"s_mov_b32 s{T0+9}, 0x40404040")
        self.try_check(srd(SDBG),'0',PD+1,PD,f"s{T0+9}",mask=True)
        A(f"""s_mul_i32 s{T0+9}, s{sXCC}, 0x01010101
        v_and_b32 v{vT0}, 0x0f0f0f0f, v{PD+1}
        v_cmp_ne_u32 vcc, s{T0+9}, v{vT0}
        s_cmp_lg_u32 vcc_lo, 0
        s_cselect_b32 s{sMODE}, 1, 0""")
        if self.force_mixed: A(f"s_mov_b32 s{sMODE}, 1")
    XR,SL,WF,AH,AL,RR,TM,MD,MT=64,104,112,128,160,192,208,220,236
    def qlead(self): return self.P('ql',8)
    def xs(self,i): return v(self.XR+(i%10)*4,4)
    def qa_prefetch(self,n):
        A=self.A
        A(f"s_add_u32 s{T0+8}, s{sHI}, {LY.STX}\ns_mov_b32 s{sXN}, s{sHI}")
        self.xl(0)
        A(f"""buffer_load_dwordx4 {v(self.RR,4)}, v{vSLD}, {WS}, s{T0+8} offen sc1
        buffer_load_dwordx4 {v(self.RR+4,4)}, v{vSLD}, {WS}, s{T0+8} offen offset:16 sc1""")
        for i in range(1,n): self.xl(i)
    def xl(self,i):
        A=self.A
        if i==32: A(f"s_mov_b32 s{sXN}, s{sLO}")
        elif i%4==0 and i: A(f"s_add_u32 s{sXN}, s{sXN}, 4096")
        A(f"buffer_load_dwordx4 {self.xs(i)}, v{vL16}, {WS}, s{sXN} offen offset:{(i%4)*1024} sc1")
    def hstore(self,AC,hi):
        A=self.A
        A(f"s_sub_u32 s{T0+2}, s{sHB}, s{sW1K}\ns_add_u32 s{T0+2}, s{T0+2}, 7168" if hi else f"s_add_u32 s{T0+2}, s{sHB}, s{sW1K}")
        A(f"s_add_u32 s{T0+3}, s{T0+2}, 8192")
        A(f"buffer_store_dwordx4 {v(AC+4,4)}, v{vL16}, {WS}, s{T0+2} offen sc1")
        return A(f"buffer_store_dwordx4 {v(AC+16,4)}, v{vL16}, {WS}, s{T0+3} offen sc1")
    def scal(self,src,tb):
        TM,RR=self.TM,self.RR
        self.A(f"v_mov_b32 v{tb}, v{src}\nv_mov_b32 v{tb+1}, v{src}\nv_permlane32_swap_b32 v{tb}, v{tb+1}")
        self.ln_scalars(tb,tb+1,TM,TM+4,tb+2)
        self.A(f"""v_mov_b32 v{TM+1}, v{TM}
        v_mov_b32 v{TM+2}, v{TM}
        v_mov_b32 v{TM+3}, v{TM}
        v_mul_f32 v{TM+5}, 0x3eb8aa3b, v{TM+4}
        v_lshrrev_b32 v{tb+3}, 5, v{vL}
        v_lshlrev_b32 v{tb+3}, 4, v{tb+3}""")
        for q in range(16): self.A(f"ds_bpermute_b32 v{RR+q}, v{tb+3}, v{TM+4} offset:{((q>>2)*8+(q&3))*4}")
    def masks(self):
        TM,MD,MT=self.TM,self.MD,self.MT
        def f():
            self.A(f"""v_and_b32 v{vT0}, 31, v0
            v_lshrrev_b32 v{vT1}, 5, v0
            v_lshlrev_b32 v{TM+10}, 2, v{vT1}
            v_sub_u32 v{TM+10}, v{vT0}, v{TM+10}
            v_mov_b32 v{TM+11}, 0xf149f2ca""")
            for r in range(16):
                self.A(f"v_cmp_le_i32 vcc, {(r//4)*8+r%4}, v{TM+10}\nv_cndmask_b32_e64 v{MD+r}, v{TM+11}, 0, vcc\nv_cndmask_b32_e64 v{MT+r}, 0, v{TM+11}, vcc")
        m3=self.cap(f)
        return [m3[:5]]+[m3[5+3*r:8+3*r] for r in range(16)]
    def epi(self,AC):
        TM,RR=self.TM,self.RR
        for b in range(2):
            for r in range(8): self.A(f"v_mul_f32 v{AC+b*8+r}, v{AC+b*8+r}, v{TM+5-b}")
            for r in range(4): self.A(f"v_cvt_pk_bf16_f32 v{AC+b*4+r}, v{AC+b*8+2*r}, v{AC+b*8+2*r+1}")
        for r in range(16): self.A(f"v_mul_f32 v{AC+16+r}, v{AC+16+r}, v{RR+r}")
        for r in range(8): self.A(f"v_cvt_pk_bf16_f32 v{AC+16+r}, v{AC+16+2*r}, v{AC+16+2*r+1}")
        for r in range(4): self.A(f"v_permlane16_swap_b32 v{AC+16+r}, v{AC+20+r}")
    def wrd(self,ks,r):
        o=(ks>>1)*3072+(ks&1)*512
        return [f"ds_read_b64_tr_b16 {v(r,2)}, v{vW1} offset:{o}",f"ds_read_b64_tr_b16 {v(r+2,2)}, v{vW2} offset:{o}",
                f"ds_read_b64_tr_b16 {v(r+4,2)}, v{vWV} offset:{o}",f"ds_read_b64_tr_b16 {v(r+6,2)}, v{vWV} offset:{o+128}"]
    def augw(self,r): return [f"v_mov_b32 v{r}, v{CSQ}",f"v_mov_b32 v{r+4}, v{CSV}"]+[f"v_mov_b32 v{r+j}, 0" for j in (1,2,3,5,6,7)]
    def qmm(self,AC,b,wr,x,first):
        acc=v(AC+b*16,16); c='0' if first else acc
        return f"{MF} {acc}, {v(wr,4)}, {x}, {c}" if b==0 else f"{MF} {acc}, {x}, {v(wr+4,4)}, {c}"
    def qa0(self):
        A=self.A; WF,TM,XF,SH,AW,XA,TB,NG=self.WF,self.TM,self.XF,self.SH,self.AW,self.XA,self.TB,self.NG
        def xrd(i):
            g=i//4
            if i%4==0:
                assert i<2 or not any(q[0]<=g for q in xq+xp)
                if g<NG: A.wait_vm(self.xtag[g])
            A(f"ds_read_b128 {v(XF+(i%3)*4,4)}, v{XA+i%4} offset:{(g%NG)*4096}")
        def st(p): self.scal(SH+p,TB)
        for x in self.wrd(0,WF): A(x)
        xrd(0); xrd(1)
        xq=[(g,pi) for g in range(self.P('xg0',3),16) for pi in range(4)]; xp=[q for q in xq if q[0]>=NG]
        fill=self.augw(AW)+self.masks(); ht=[None]; fr=self.P('qf0',3)
        bs=self.S('qs','1-29/4+30-63')
        for i in range(64):
            p,ks=divmod(i,32); AC=self.AL if p else self.AH; wr=WF+(i&1)*8; xf=XF+(i%3)*4
            self.fine('qa',i)
            nx=self.wrd((i+1)%32,WF+((i+1)&1)*8) if i<63 else []
            if i==32:
                assert not fill
                self.stamp('qa.h')
                fill=self.cap(lambda: st(0))+[self.qmm(self.AH,b,AW,v(TM,4),False) for b in range(2)]+self.cap(self.att_addr)
                fill+=self.cap(lambda: self.epi(self.AH))+[lambda: ht.__setitem__(0,self.hstore(self.AH,True))]+self.cap(lambda: st(1))
            for b in range(2):
                A(self.qmm(AC,b,wr,v(xf,4),ks==0))
                self.pop(nx,2)
                if b==0:
                    if i+2<64: xrd(i+2)
                    for _ in range(self.P('xr',2)):
                        if xq: g,pi=xq.pop(0); self.xtag[g]=self.xdma(g,pi) if g<NG else self.xld(g,pi)
                if b==1 and xp and 4*(xp[0][0]-NG+1)+self.P('xlag',12)+xp[0][1]<=i:
                    g,pi=xp.pop(0); assert (g,pi) not in xq
                    A(f"ds_write_b128 v{self.XP}, {self.xreg(g,pi)} offset:{(g%NG)*4096+pi*1024}"); self.xfree=112+4*(4*(g-NG)+pi)+4
                if i!=32 or b: self.pop(fill,fr if p else 1)
            if i==self.P('qr',8):
                A(f"""buffer_load_dwordx4 {v(RES,4)}, v{vROW}, {srd(SX)}, s{T0+4} offen
                buffer_load_dwordx4 {v(RES+4,4)}, v{vROW}, {srd(SX)}, s{T0+5} offen""")
            if i==self.P('qm',12): self.try_issue(srd(SDBG),'0',self.PD+1,self.PD)
            if i==self.P('qm',12)+10:
                self.mode()
                A(f"""v_lshlrev_b32 v{SH+2}, 2, v0
                s_add_u32 s{T0+8}, s{sHI}, {LY.STX}
                s_add_u32 s{T0+9}, s{sLO}, {LY.STX}
                buffer_load_dword v{SH}, v{SH+2}, {WS}, s{T0+8} offen sc1
                buffer_load_dword v{SH+1}, v{SH+2}, {WS}, s{T0+9} offen sc1""")
            if i==self.P('qh0',60): self.hpublish(1,ht[0])
            if i==self.P('qt0',62): self.halo_try()
            self.bg(bs.get(i,0))
        assert not fill
        self.stamp('qa.mm')
        for b in range(2): A(self.qmm(self.AL,b,AW,v(TM,4),False))
        self.epi(self.AL)
    def qa(self):
        if self.L==0: return self.qa0()
        A=self.A; SL,WF,RR,TM=self.SL,self.WF,self.RR,self.TM
        LEAD=self.qlead()
        def scal(src): self.sum8(src); self.scal(src,TM+6)
        def rd(i): return self.augw(WF+(i&1)*8) if i%33==32 else self.wrd(i%33,WF+(i&1)*8)
        mh=self.masks()
        fill=self.cap(lambda: scal(RR))
        for x in rd(0): A(x)
        ht=[None]; PX=SL+7
        KT=32-LEAD-self.P('qp',6); fr=self.P('qf',2)
        for i in range(66):
            p,ks=divmod(i,33); AC=self.AL if p else self.AH; wr=WF+(i&1)*8
            xi=p*32+ks
            self.fine('qa',i)
            x=self.xs(xi) if ks<32 else v(TM,4)
            nx=rd(i+1) if i<65 else []
            if i==9:
                self.stamp('qa.9')
                A.wait_vm(self.tlate); A("s_barrier")
                self.stamp('qa.9b')
            if i==33:
                assert not fill and not mh
                self.stamp('qa.h')
                fill=self.cap(lambda: self.epi(self.AH))+[lambda: ht.__setitem__(0,self.hstore(self.AH,True))]+self.cap(lambda: scal(SL))
                fill+=self.cap(self.att_addr)+[self.halo_try]
            if i==46: self.stamp('qa.46')
            for b in range(2):
                A(self.qmm(AC,b,wr,x,ks==0))
                self.pop(nx,len(nx)//(2-b) if len(nx)<8 else 4)
                if b==0 and ks<32 and xi+LEAD<64:
                    if xi+LEAD==32:
                        self.try_check(WS,f"s{sTF}",PX,vPX,self.F(F_X2)); self.acquire()
                    self.xl(xi+LEAD)
                    if xi+LEAD==32:
                        A(f"""s_add_u32 s{T0+8}, s{sLO}, {LY.STX}
                        buffer_load_dwordx4 {v(SL,4)}, v{vSLD}, {WS}, s{T0+8} offen sc1
                        buffer_load_dwordx4 {v(SL+4,4)}, v{vSLD}, {WS}, s{T0+8} offen offset:16 sc1""")
                if i>=2 and not (i==33 and b==0): self.pop(fill,fr if p else 2)
                if p==0 and not fill: self.pop(mh)
            if i==10: self.publish(self.F(F_X2),self.txlo)
            if i==KT: self.try_issue(WS,f"s{sTF}",PX,vPX)
            if i==self.P('qh',58): self.hpublish(1,ht[0])
        self.pop(fill,99)
        self.stamp('qa.mm')
        self.epi(self.AL)
    S0,P0,KFR,AD,VFR,OB,OA,HPA,HPD,PLA=64,96,112,216,144,176,192,214,215,120
    OF=[132,136,140,164,168,172,208,212]
    def att_addr(self):
        AD=self.AD
        self.A(f"""s_sub_u32 s{T0+3}, 7168, s{sW1K}
        v_add_u32 v{AD}, {AK}, v{vL16}
        v_add_u32 v{AD+1}, s{T0+3}, v{AD}
        v_add_u32 v{AD}, s{sW1K}, v{AD}
        v_and_b32 v{AD+2}, 15, v0
        v_lshlrev_b32 v{AD+2}, 4, v{AD+2}
        v_lshrrev_b32 v{vT0}, 5, v0
        v_lshl_add_u32 v{AD+2}, v{vT0}, 9, v{AD+2}
        v_bfe_u32 v{vT0}, v0, 4, 1
        v_lshl_add_u32 v{AD+2}, v{vT0}, 14, v{AD+2}
        v_add_u32 v{AD+2}, {AV}, v{AD+2}
        v_add_u32 v{AD+3}, s{T0+3}, v{AD+2}
        v_add_u32 v{AD+2}, s{sW1K}, v{AD+2}
        v_and_b32 v{self.HPA}, 3, v0
        v_lshlrev_b32 v{self.HPA}, 2, v{self.HPA}""")
    def halo_try(self): self.try_issue(WS,f"s{sHF}",self.HPD,self.HPA)
    def halo_get(self,hi):
        A=self.A; r=[None]
        def f():
            self.try_check(WS,f"s{sHF}",self.HPD,self.HPA,2*self.L+(1 if hi else 2)); self.acquire()
            o=4096 if hi else 0
            r[0]=A(f"""s_add_u32 s{T0+5}, s{sHB}, s{sW1K}
            s_sub_u32 s{T0+5}, s{T0+5}, {524288-o}
            s_add_u32 s{T0+6}, s{T0+5}, 8192
            s_add_u32 m0, s{sW1K}, {AK+o}
            buffer_load_dwordx4 v{vL16}, {WS}, s{T0+5} offen sc1 lds
            s_add_u32 m0, s{sW1K}, {AV+o}
            buffer_load_dwordx4 v{vL16}, {WS}, s{T0+6} offen sc1 lds""")
        self.cond(f"s_cmp_eq_u32 s{sTEAM}, 0",f)
        return r[0]
    def wo_fetch(self,B,rec,regs_):
        B(f"s_lshl_b32 s{T0+8}, s{sW}, 13\ns_add_u32 s{T0+8}, s{T0+8}, s{rec}\ns_add_u32 s{T0+8}, s{T0+8}, {LY.HOFF}\ns_add_u32 s{T0+9}, s{T0+8}, 4096")
        for k in range(8): B(f"buffer_load_dwordx4 {v(regs_[k],4)}, v{vL16}, {WS}, s{T0+8+k//4} offen offset:{(k%4)*1024} sc1")
    def att(self):
        A=self.A; L=self.L
        S0,P0,KFR,AD,VFR,OB,OA,MD,MT=self.S0,self.P0,self.KFR,self.AD,self.VFR,self.OB,self.OA,self.MD,self.MT
        QB,QA=self.AH,self.AL
        A(f"""s_cmp_eq_u32 s{sTEAM}, 0
        s_cselect_b32 s{T0+3}, 0, s{sONE}
        s_lshl_b32 s{T0+2}, s{sW}, 11
        s_add_u32 s{T0+2}, s{T0+2}, {AO}
        v_add_u32 v{S0+8}, s{T0+2}, v{vL16}
        s_mov_b32 s{sSLOW}, 0""")
        for r in range(4): A(f"v_mov_b32 v{S0+r}, s{sONE}\nv_mov_b32 v{S0+4+r}, s{T0+3}")
        if L==0: A.wait_vm(self.tdump)
        A("s_barrier")
        hg=self.halo_get(True)
        A(f"""ds_write_b128 v{AD+1}, {v(QB+4,4)} offset:8192
        ds_write_b128 v{AD+1}, {v(QB+16,4)} offset:{8192+16384}
        ds_write_b128 v{S0+8}, {v(S0,4)} offset:8192
        ds_write_b128 v{S0+8}, {v(S0,4)} offset:9216
        ds_write_b128 v{AD}, {v(QA+4,4)} offset:8192
        ds_write_b128 v{AD}, {v(QA+16,4)} offset:{8192+16384}
        ds_write_b128 v{S0+8}, {v(S0+4,4)}
        ds_write_b128 v{S0+8}, {v(S0+4,4)} offset:1024""")
        def z():
            A(f"v_subrev_u32 v{S0+8}, {AO-AK}, v{S0+8}")
            for j in range(2):
                A(f"ds_write_b128 v{S0+8}, {v(S0+4,4)} offset:{j*1024}\nds_write_b128 v{S0+8}, {v(S0+4,4)} offset:{16384+j*1024}")
        self.cond(f"s_cmp_lg_u32 s{sTEAM}, 0",z)
        hl=self.hstore(self.AL,False)
        if L==0: self.cond(f"s_cmp_lg_u32 s{sW}, 0",self.mark(0xe0))
        A(f"""s_lshl_b32 s{T0+4}, s{sSLOT}, 10
        s_add_u32 s{T0+4}, s{T0+4}, {LY.HOFF}
        s_add_u32 s{T0+2}, s{T0+4}, s{sHI}
        s_add_u32 s{T0+3}, s{T0+4}, s{sLO}""")
        sOBa,sOAa=T0+2,T0+3
        A("s_waitcnt lgkmcnt(0)\ns_barrier")
        self.stamp('att.kv')
        order=[('b',d) for d in range(9)]+[('a',d) for d in range(9)]
        N=len(order); seen=set(); HW=(4,13)
        def rk(n):
            q,d=order[n]; A(f"ds_read_b128 {v(KFR+(n&1)*4,4)}, v{AD+(q=='b')} offset:{(8-d)*1024}")
        def rv(n,f):
            q,d=order[n]
            A(f"ds_read_b128 {v(VFR+(n&1)*8+f*4,4)}, v{AD+2+(q=='b')} offset:{(8-d)*1024+f*256}")
        def sm(n):
            q,d=order[n]; c=v(MD,16) if d==0 else (v(MT,16) if d==8 else '0')
            A(f"{MF} {v(S0+(n&1)*16,16)}, {v(KFR+(n&1)*4,4)}, {v(QB if q=='b' else QA,4)}, {c}")
        def pv(n,f):
            q,d=order[n]; O=OB if q=='b' else OA
            c=v(O,16) if (q in seen) else '0'; seen.add(q)
            A(f"{MF} {v(O,16)}, {v(VFR+(n&1)*8+f*4,4)}, {v(P0+(n&1)*8+f*4,4)}, {c}")
        def fin(O,so):
            A(f"v_rcp_f32 v{O+9}, v{O+8}")
            for r in range(8): A(f"v_mul_f32 v{O+r}, v{O+r}, v{O+9}")
            for r in range(4): A(f"v_cvt_pk_bf16_f32 v{O+12+r}, v{O+2*r}, v{O+2*r+1}")
            tg=A(f"buffer_store_dwordx4 {v(O+12,4)}, v{vL16}, {WS}, s{so} offen")
            A(f"v_mov_b32 v{O+10}, 0")
            for r in range(4): A(f"v_dot2c_f32_bf16 v{O+10}, s{sONE}, v{O+12+r}")
            A(f"v_fma_f32 v{O+10}, v{O+10}, 0, v{O+8}\nv_subrev_u32 v{O+10}, 0x30800000, v{O+10}\nv_cmp_le_u32 vcc, 0x28000000, v{O+10}")
            A(f"s_cmp_lg_u64 vcc, 0\ns_cselect_b32 s{sSLOW}, 1, s{sSLOW}")
            if self.P('fb',0): A(f"s_mov_b32 s{sSLOW}, 1")
            return tg
        bs=self.S('as',''); os_=self.S('ao','0-17*2'); tb=None
        def bgn(n,k):
            c=bs.get(n,0); self.bg((c+2-k)//3)
            c=os_.get(n,0); self.wout((c+2-k)//3)
        rk(0); rk(1); rv(0,0); rv(0,1); sm(0)
        for n in range(N):
            S=S0+(n&1)*16; P=P0+(n&1)*8
            self.fine('att',n,1)
            ex=lambda a_,b_: [A(f"v_exp_f32 v{S+r}, v{S+r}") for r in range(a_,b_)]
            cv=lambda a_,b_: [A(f"v_cvt_pk_bf16_f32 v{P+r}, v{S+2*r}, v{S+2*r+1}") for r in range(a_,b_)]
            if n in HW:
                A.wait_vm(hg); A("s_barrier"); rk(n+1)
                self.stamp('att.hw')
            elif n+1<N: sm(n+1)
            if n+2<N and n+1 not in HW: rk(n+2)
            if n+1<N: rv(n+1,0)
            ex(0,4)
            if n>0: pv(n-1,1)
            if n+1<N: rv(n+1,1)
            ex(4,8)
            if n in HW: sm(n+1)
            bgn(n,0)
            cv(0,4); ex(8,12); pv(n,0)
            bgn(n,1)
            ex(12,16)
            bgn(n,2)
            cv(4,8)
            if n==self.P('ap',5): self.hpublish(2,hl)
            if n==self.P('ah',8): self.halo_try()
            if n==9: tb=fin(OB,sOBa)
            if n==self.P('ag',10): hg=self.halo_get(False)
            if n==self.P('aq',13): self.cond(f"s_cmp_lg_u32 s{sSLOW}, 0",lambda: self.publish(self.F(F_ATB),tb))
            if n==self.P('aw',15): self.try_issue(WS,f"s{sTF}",self.PLA,vPA)
        def wf():
            self.try_check(WS,f"s{sTF}",self.PLA,vPA,self.F(F_ATB)); self.acquire()
            self.wo_fetch(A,sRHI,self.OF)
        A(f"s_mov_b32 s{T0+7}, s{sSLOW}")
        self.cond(f"s_cmp_lg_u32 s{sSLOW}, 0",wf)
        pv(N-1,1)
        self.stamp('att.mm')
        self.ta=fin(OA,sOAa)
        A(f"s_cmp_lg_u32 s{sSLOW}, 0\ns_cbranch_scc1 L_fb{L}")
        A.label(f'L_fbr{L}')
        self.att_exact()
    def att_exact(self):
        S,P,KFR,AD,VFR,O,MD,MT=self.S0,self.P0,self.KFR,self.AD,self.VFR,self.OA,self.MD,self.MT; L=self.L
        B=Asm(); B._n=90000+1000*L; sD,sM=T0+5,T0+6; M=S+16; vK=S+17; vV=S+18; T=S+19
        B.label(f'L_fb{L}'); B("s_nop 7\ns_nop 7")
        def scores(Q):
            l0=B.newlabel('L_f0'); l8=B.newlabel('L_f8'); le=B.newlabel('L_fe')
            B(f"s_waitcnt lgkmcnt(0)\ns_cmp_eq_u32 s{sD}, 0\ns_cbranch_scc1 {l0}\ns_cmp_eq_u32 s{sD}, 8\ns_cbranch_scc1 {l8}")
            B(f"{MF} {v(S,16)}, {v(KFR,4)}, {v(Q,4)}, 0\ns_branch {le}")
            B.label(l0); B(f"{MF} {v(S,16)}, {v(KFR,4)}, {v(Q,4)}, {v(MD,16)}\ns_branch {le}")
            B.label(l8); B(f"{MF} {v(S,16)}, {v(KFR,4)}, {v(Q,4)}, {v(MT,16)}")
            B.label(le); B("s_nop 7\ns_nop 7")
        for q,Q,so in ((1,self.AH,T0+2),(0,self.AL,T0+3)):
            B(f"s_sub_u32 s{sM}, 7, s{sW}" if q else f"s_mov_b32 s{sM}, s{sW}")
            B(f"s_cmp_eq_u32 s{sTEAM}, 0\ns_cselect_b32 s{sM}, s{sM}, 8")
            B(f"s_mov_b32 s{sD}, 0\nv_mov_b32 v{M}, 0xff800000\nv_add_u32 v{vK}, 8192, v{AD+q}")
            l=B.newlabel('L_fa'); B.flush_hz(); B.label(l)
            B(f"ds_read_b128 {v(KFR,4)}, v{vK}")
            scores(Q)
            for r in range(8): B(f"v_max3_f32 v{M}, v{S+2*r}, v{S+2*r+1}, v{M}")
            B(f"v_subrev_u32 v{vK}, 1024, v{vK}\ns_add_u32 s{sD}, s{sD}, 1\ns_cmp_le_u32 s{sD}, s{sM}")
            B.flush_hz(); B(f"s_cbranch_scc1 {l}")
            B(f"v_mov_b32 v{T}, v{M}\nv_permlane32_swap_b32 v{M}, v{T}\nv_max_f32 v{M}, v{M}, v{T}")
            B(f"s_mov_b32 s{sD}, 0\nv_add_u32 v{vK}, 8192, v{AD+q}\nv_add_u32 v{vV}, 8192, v{AD+2+q}")
            for r in range(16): B(f"v_mov_b32 v{O+r}, 0")
            l=B.newlabel('L_fc'); B.flush_hz(); B.label(l)
            B(f"ds_read_b128 {v(KFR,4)}, v{vK}\nds_read_b128 {v(VFR,4)}, v{vV}\nds_read_b128 {v(VFR+4,4)}, v{vV} offset:256")
            scores(Q)
            for r in range(16): B(f"v_sub_f32 v{S+r}, v{S+r}, v{M}")
            for r in range(16): B(f"v_exp_f32 v{S+r}, v{S+r}")
            for r in range(8): B(f"v_cvt_pk_bf16_f32 v{P+r}, v{S+2*r}, v{S+2*r+1}")
            for f in range(2): B(f"{MF} {v(O,16)}, {v(VFR+f*4,4)}, {v(P+f*4,4)}, {v(O,16)}")
            B(f"v_subrev_u32 v{vK}, 1024, v{vK}\nv_subrev_u32 v{vV}, 1024, v{vV}\ns_add_u32 s{sD}, s{sD}, 1\ns_cmp_le_u32 s{sD}, s{sM}")
            B.flush_hz(); B(f"s_cbranch_scc1 {l}")
            B(f"v_rcp_f32 v{O+9}, v{O+8}")
            for r in range(8): B(f"v_mul_f32 v{O+r}, v{O+r}, v{O+9}")
            for r in range(4): B(f"v_cvt_pk_bf16_f32 v{O+12+r}, v{O+2*r}, v{O+2*r+1}")
            B("s_waitcnt vmcnt(0)")
            B(f"buffer_store_dwordx4 {v(O+12,4)}, v{vL16}, {WS}, s{so} offen\ns_waitcnt vmcnt(0)")
        p1,p2,p3,p4=[B.newlabel('L_fp') for _ in range(4)]
        B(f"""v_mov_b32 v{vP1}, {self.F(F_ATA)}
        buffer_wbl2 sc1
        s_waitcnt vmcnt(0)
        s_mov_b64 exec, 1
        s_cmp_lg_u32 s{sMODE}, 0
        s_cbranch_scc1 {p1}
        buffer_store_dword v{vP1}, off, {WS}, s{sMYF}
        s_branch {p2}""")
        B.label(p1); B(f"buffer_store_dword v{vP1}, off, {WS}, s{sMYF} sc1")
        B.label(p2); B(f"s_mov_b64 exec, -1\ns_cmp_eq_u32 s{T0+7}, 0\ns_cbranch_scc1 L_fbr{L}")
        B.label(p3)
        B(f"""buffer_load_dword v{self.PLA}, v{vPA}, {WS}, s{sTF} offen sc1
        s_waitcnt vmcnt(0)
        v_cmp_gt_u32 vcc, {self.F(F_ATB)}, v{self.PLA}
        s_nop 1
        s_cbranch_vccz {p4}
        s_sub_u32 s{sTO}, s{sTO}, 1
        s_cbranch_scc0 {p3}
        s_endpgm""")
        B.label(p4); B("buffer_inv sc1\ns_waitcnt vmcnt(0)")
        self.wo_fetch(B,sRHI,self.OF)
        B(f"s_waitcnt vmcnt(0)\ns_branch L_fbr{L}")
        self.tail.append(B.text().rstrip("\n"))
    def red_write(self,acc):
        for cb in range(2):
            for rq in range(4): self.A(f"ds_write_b128 v{vRW1 if rq&1 else vRW0}, {v(acc+cb*16+rq*4,4)} offset:{cb*4096+rq*1024}")
    def red_read(self,R):
        for p in range(4):
            for e in range(2): self.A(f"ds_read_b128 {v(R+(p*2+e)*4,4)}, v{vRRD} offset:{p*8192+e*512}")
    def red_fin(self,rnd,R,scale):
        rs=RES+rnd*4; L=[]
        for n in range(8): L.append(f"v_add_f32 v{R+n}, v{R+n}, v{R+8+n}")
        for n in range(8): L.append(f"v_add_f32 v{R+16+n}, v{R+16+n}, v{R+24+n}")
        for n in range(4): L.append(f"v_lshlrev_b32 v{R+8+2*n}, 16, v{rs+n}"); L.append(f"v_and_b32 v{R+9+2*n}, 0xffff0000, v{rs+n}")
        for n in range(8): L.append(f"v_add_f32 v{R+n}, v{R+n}, v{R+16+n}")
        for n in range(8):
            L.append(f"v_fma_f32 v{R+n}, v{R+n}, v{scale}, v{R+8+n}" if scale is not None else f"v_add_f32 v{R+n}, v{R+n}, v{R+8+n}")
        for n in range(4): L.append(f"v_cvt_pk_bf16_f32 v{rs+n}, v{R+2*n}, v{R+2*n+1}")
        return L
    GA,GW,GAD,GZ,GM,GT,GX=64,128,160,164,180,184,188
    def wo(self):
        A=self.A; A1,A2,F2=64,96,[144+4*k for k in range(4)]+[176+4*k for k in range(3)]+[220]
        PL=128; L=self.L
        A("s_barrier")
        if L==0:
            assert not any(srd(SWO) in g[-1] for g in self.bgq)
            self.wout(32,32)
            self.conv_setup(96)
            for k in range(8):
                for x in self.conv_unit(v if k<4 else a,(WOV if k<4 else 224-32)+8*k,96): A(x)
        self.stamp('wo.cv')
        def mm(acc0,F):
            for k in range(8):
                for cb in range(2):
                    acc=v(acc0+cb*16,16)
                    A(f"{MF} {acc}, {woreg(k*2+cb)}, {v(F[k],4)}, {acc if k else '0'}")
        mm(A1,self.OF)
        self.publish(self.F(F_ATA),self.ta)
        self.bg(self.P('wa',0))
        self.red_write(A1); A("s_waitcnt lgkmcnt(0)\ns_barrier")
        self.red_read(A1)
        self.try_issue(WS,f"s{sTF}",PL,vPA)
        for x in self.red_fin(0,A1,None): A(x)
        self.stamp('wo.1')
        self.try_check(WS,f"s{sTF}",PL,vPA,self.F(F_ATA)); self.acquire()
        self.wo_fetch(A,sRLO,F2)
        t1=self.xstore(RES,sRHI,LY.ST1,A1)
        self.gu_addr()
        if L==0: self.gu_colsum()
        self.stamp('wo.f2')
        mm(A2,F2)
        self.publish(self.F(F_WO1),t1)
        A("s_barrier")
        self.red_write(A2); A("s_waitcnt lgkmcnt(0)\ns_barrier")
        self.red_read(A2)
        self.try_issue(WS,f"s{sTF}",PL,vPX)
        for x in self.red_fin(1,A2,None): A(x)
        self.tx2=self.xstore(RES+4,sRLO,LY.ST1,A2)
        self.stamp('wo.2')
        self.try_check(WS,f"s{sTF}",PL,vPX,self.F(F_WO1)); self.acquire()
    def gu_addr(self):
        A=self.A; g=self.GAD
        A(f"""v_lshrrev_b32 v{vT0}, 5, v0
        v_lshlrev_b32 v{g+3}, 10, v{vT0}
        v_bfe_u32 v{vT0}, v0, 4, 1
        v_lshl_add_u32 v{g+3}, v{vT0}, 11, v{g+3}
        v_bfe_u32 v{vT1}, v0, 2, 2
        v_lshl_add_u32 v{g+3}, v{vT1}, 7, v{g+3}
        v_xor_b32 v{vT0}, v{vT0}, v{vT1}
        v_lshl_add_u32 v{g+3}, v{vT0}, 5, v{g+3}
        v_and_b32 v{vT0}, 3, v0
        v_lshl_add_u32 v{g}, v{vT0}, 3, v{g+3}""")
        for j in (1,2,3): A(f"v_xor_b32 v{g+j}, {j*32}, v{g}")
    def gs(self,i):
        V=lambda k: v(self.GX+4*k,4); X=lambda k: a(128+4*k,4)
        if self.L or i>=64: return V(i%16)
        if i<24: return X(i)
        if i<32: return V(i-24)
        if i<40: return V(i-24)
        if i<48: return X(i-24)
        return V(i-48)
    def gx(self,i):
        A=self.A
        if i==0: A(f"s_mov_b32 s{sXN}, s{sHI}")
        elif i==32: A(f"s_mov_b32 s{sXN}, s{sLO}")
        elif i==64: A(f"s_mul_i32 s{sXN}, s{sW}, {28*1024}\ns_add_u32 s{sXN}, s{sXN}, s{sRHI}\ns_add_u32 s{sXN}, s{sXN}, {LY.HOFF}")
        elif i%4==0: A(f"s_add_u32 s{sXN}, s{sXN}, 4096")
        A(f"buffer_load_dwordx4 {self.gs(i)}, v{vL16}, {WS}, s{sXN} offen offset:{(i%4)*1024} sc1")
    def gstat(self,rec):
        self.A(f"""s_add_u32 s{T0+2}, s{rec}, {LY.ST1}
        buffer_load_dwordx4 {v(self.GZ,4)}, v{vSLD}, {WS}, s{T0+2} offen sc1
        buffer_load_dwordx4 {v(self.GZ+4,4)}, v{vSLD}, {WS}, s{T0+2} offen offset:16 sc1""")
    def grd(self,ks,js):
        L=[]
        for b,j in enumerate(js):
            r=self.GW+(ks&1)*16+b*4; o=(ks%16)*4096
            L+= [f"ds_read_b64_tr_b16 {v(r,2)}, v{self.GAD+j} offset:{o}",f"ds_read_b64_tr_b16 {v(r+2,2)}, v{self.GAD+j} offset:{o+512}"]
        return L
    def gu_plan(self):
        L=self.L; X={}; W={}; C={}
        def put(D,t,x): D.setdefault(t,[]).append(x)
        if L:
            LEAD=self.P('gl',12); self.gpre=LEAD; self.hpre=LEAD
            for i in range(LEAD,64+LEAD):
                j=i-LEAD; put(X,j+j//32,i)
            self.gchk=(32-LEAD,33+32-LEAD)
            for g in self.q_wgu(7): put(W,-1,(7,g))
        else:
            self.gpre=32; self.hpre=8; c=self.P('gc',8); self.gchk=(c,33+24)
            for i in range(32,64+8):
                j=i-32
                put(X,c+j if j<8 else (16+j if j<16 else (33+j-16 if j<32 else 33+24+j-32)),i)
            wd=self.bgq; self.bgq=[]; assert self.wn==32
            t=self.P('wd0',0); done=56-len(wd); r=self.P('wdr',2); n=0; tl={}
            for k,g in enumerate(wd):
                u=(done+k)//2
                lo=0 if u<16 else (2*(u-16)+2 if u<24 else 33+8+2*(u-24)+2)
                if n==r: t+=1; n=0
                if t%33==32: t+=1
                if t<lo: t=lo; n=0
                put(W,t,(None,g)); n+=1; tl[u]=t
            t=self.P('cv0',20); lag=self.P('cvl',16)
            for u in range(28):
                t=max(t,tl.get(u,0)+lag)
                if t%33==32: t+=1
                put(C,t,u); t+=1
        return X,W,C
    def conv(self,u):
        for x in self.conv_unit(a,8*u,self.GT+1): self.A(x)
    def gu_pass(self,js,p,plan,jn=None):
        nb=len(js)
        A=self.A; GA,GW,GAD,GZ,GM,GT=self.GA,self.GW,self.GAD,self.GZ,self.GM,self.GT; L=self.L
        X,W,C=plan
        def sc():
            self.sum8(GZ)
            self.A(f"v_mov_b32 v{GZ+1}, v{GZ}\nv_permlane32_swap_b32 v{GZ}, v{GZ+1}\nv_mul_f32 v{GZ}, 0x3b000000, v{GZ}\nv_cvt_pk_bf16_f32 v{GM}, -v{GZ}, -v{GZ}")
            for r in (1,2,3): self.A(f"v_mov_b32 v{GM+r}, v{GM}")
        fill=self.cap(sc)
        aug=[f"v_mov_b32 v{GZ+r}, 0" for r in range(nb*4) if r%4]
        fs=self.P('gf',3) if L else self.P('gf0',14)
        poll=(vPA,self.F(F_GU1)) if p else (vPX,self.F(F_WO2))
        for ks in range(33):
            t=33*p+ks
            self.fine('gu',ks)
            x=self.gs(32*p+ks) if ks<32 else v(GM,4)
            if ks==15: nx=[f"v_add_u32 v{GAD+j}, 0x10000, v{GAD+j}" for j in range(4)]+self.grd(16,js)
            elif ks==31: nx=[] if p else [f"v_subrev_u32 v{GAD+j}, 0x10000, v{GAD+j}" for j in range(4)]+self.grd(0,jn)
            elif ks<31: nx=self.grd(ks+1,js)
            else: nx=[]
            if p==0 and ks%4==3:
                assert not any(j is not None and j<=(ks+1)//4 for tt in W if tt>=t for j,g in W[tt])
            if p==0 and ks%4==3 and (ks+1)//4 in self.gtag:
                A.wait_vm(self.gtag[(ks+1)//4]); A("s_barrier")
            if p==0 and L==0 and ks==self.P('gb',8): A("s_barrier"); self.gbar=True; self.gu_csx(0)
            if p==0 and L==0 and ks==self.P('gb',8)+8: self.gu_csx(1)
            if ks==32:
                for b,j in enumerate(js): A(f"v_mov_b32 v{GZ+4*b}, v{CSG+j}")
            per=-(-len(nx)//nb)
            for b in range(nb):
                acc=v(GA+b*16,16); w=v(GW+(ks&1)*16+b*4,4) if ks<32 else v(GZ+4*b,4)
                A(f"{MF} {acc}, {w}, {x}, {acc if ks else '0'}")
                self.pop(nx,per)
                if b==0:
                    if t==self.gchk[p]:
                        self.try_check(WS,f"s{sTF}",GT,poll[0],poll[1]); self.acquire()
                    for i in X.get(t,[]): self.gx(i)
                if b==1 and fs<=ks: self.pop(fill,2)
                if b==1 and ks>=24: self.pop(aug,2)
                if b==2:
                    for j,g in W.get(t,[]):
                        for y in g: r=A(y)
                        if j is not None: self.gtag[j]=r
                    for u in C.get(t,[]):
                        assert self.gbar
                        self.conv(u)
            if p and ks==self.P('gp',8): self.publish(self.F(F_GU1),self.th)
            if t==self.gchk[p]-self.P('gt',4): self.try_issue(WS,f"s{sTF}",GT,poll[0])
        assert not fill and not aug
        self.stamp('gu.mm')
        if p==0: self.gstat(sLO)
        A(f"s_add_u32 s{T0+3}, s{sHS}, s{sLO if p else sHI}")
        for b in range(nb):
            g=GA+b*16; d=GW+16+b*4
            for r in range(8): A(f"v_max_f32 v{g+r}, 0, v{g+r}")
            for r in range(8): A(f"v_mul_f32 v{g+r}, v{g+r}, v{g+8+r}")
            for r in range(4): A(f"v_cvt_pk_bf16_f32 v{d+r}, v{g+2*r}, v{g+2*r+1}")
            self.th=A(f"buffer_store_dwordx4 {v(d,4)}, v{vL16}, {WS}, s{T0+3} offen offset:{js[b]*1024}")
        self.stamp('gu.st')
    def gu_colsum(self):
        A=self.A; T=192; c=208; sel=216
        self.selector(sel)
        A(f"s_lshl_b32 s{T0+2}, s{sW}, 5\nv_xor_b32 v{vT0}, s{T0+2}, v{self.GAD}")
        def rdk(k): return f"ds_read_b64_tr_b16 {v(T+(k%4)*4,2)}, v{vT0} offset:{(k%16)*4096}\nds_read_b64_tr_b16 {v(T+(k%4)*4+2,2)}, v{vT0} offset:{(k%16)*4096+512}"
        for k in range(3): A(rdk(k))
        for k in range(32):
            if k+3==16: A(f"v_add_u32 v{vT0}, 0x10000, v{vT0}")
            A(f"{MS} {v(c,4)}, {v(sel,4)}, {v(T+(k%4)*4,4)}, {v(c,4) if k else '0'}")
            if k+3<32: A(rdk(k+3))
        A(f"v_mov_b32 v{CSG+3}, v{c}")
        self.cs_pack(CSG+3,c+1)
    def gu_csx(self,stage):
        A=self.A
        A(f"v_lshlrev_b32 v{vT0}, 2, v0\nv_add_u32 v{vT0}, {SCR+4096}, v{vT0}")
        if stage==0: A(f"s_lshl_b32 s{T0+2}, s{sW}, 13\nv_add_u32 v{vT0}, s{T0+2}, v{vT0}\nds_write_b32 v{vT0}, v{CSG+3}")
        else:
            A("s_waitcnt lgkmcnt(0)\ns_barrier")
            for j in range(4): A(f"ds_read_b32 v{CSG+j}, v{vT0} offset:{j*8192}")
    def gu(self):
        A=self.A; L=self.L
        plan=self.gu_plan(); X,W,C=plan
        self.gx(0); self.gstat(sHI)
        for i in range(1,self.gpre): self.gx(i)
        tags={}
        for j,g in W.get(-1,[]):
            for y in g: tags[j]=A(y)
        A(f"s_lshr_b32 s{sHS}, s{sSLOT}, 1\ns_mul_i32 s{sHS}, s{sHS}, 7168\ns_add_u32 s{sHS}, s{sHS}, {LY.HOFF}\ns_mul_i32 s{T0+2}, s{sE}, 3072\ns_add_u32 s{sHS}, s{sHS}, s{T0+2}")
        if L==0: self.conv_setup(self.GT+1)
        self.publish(self.F(F_WO2),self.tx2)
        self.stamp('gu.in')
        A(f"s_cmp_lg_u32 s{sE}, 0\ns_cbranch_scc1 L_ge{L}")
        st=A.snap(); n=len(self.stn); Q=[]
        for e in range(2):
            if e: A.restore(st); A.label(f'L_ge{L}'); del self.stn[n:]
            self.gtag=dict(tags); self.gbar=False
            J=([0,1,2,3],[0,1,2]) if e==0 else ([1,2,3],[0,1,2,3])
            for x in self.grd(0,J[0]): A(x)
            self.gu_pass(J[0],0,plan,J[1]); self.gu_pass(J[1],1,plan)
            A("s_waitcnt lgkmcnt(0)"); A.flush_hz()
            if e==0: A(f"s_branch L_dn{L}")
            Q.append(A.snap()[0])
        A.label(f'L_dn{L}')
        A.merge(Q[1],Q[0])
        self.cleft=[u for t in sorted(C) if t>=66 for u in C[t]]
        assert not any(t>=66 for t in W)
    def down(self):
        A=self.A; A1,A2,ST,R2=64,152,96,188-4; L=self.L
        R2=104
        SLOT=[self.GX+4*i for i in range(16)]+[112+4*i for i in range(10)]
        PL=106; tpend=self.th
        self.stamp('dn.in')
        def stats(rec):
            A(f"""s_add_u32 s{T0+2}, s{rec}, {LY.ST1}
            buffer_load_dwordx4 {v(ST,4)}, v{vDSL}, {WS}, s{T0+2} offen sc1
            buffer_load_dwordx4 {v(ST+4,4)}, v{vDSL}, {WS}, s{T0+2} offen offset:16 sc1""")
        def r2(dst):
            self.sum8(ST)
            self.A(f"""v_and_b32 v{ST+4}, 8, v0
            v_mov_b32_dpp v{ST+1}, v{ST} row_ror:8 row_mask:0xf bank_mask:0xf""")
            self.A(f"v_cmp_ne_u32 vcc, 0, v{ST+4}\nv_cndmask_b32 v{ST+2}, v{ST}, v{ST+1}, vcc\nv_cndmask_b32 v{ST+3}, v{ST+1}, v{ST}, vcc")
            self.ln_scalars(ST+2,ST+3,None,dst,ST+4)
            self.A(f"v_mul_f32 v{dst}, v{dst}, v{dst}")
        def grp(Q):
            out=[];i=0
            while i<len(Q):
                if Q[i].startswith('v_cmp'): out.append(Q[i:i+3]); i+=3
                else: out.append(Q[i]); i+=1
            return out
        def ld():
            i=ln[0]; k=i%28; ln[0]+=1
            if i==28: A(f"s_mul_i32 s{sXN}, s{sW}, {28*1024}\ns_add_u32 s{sXN}, s{sXN}, s{sRLO}\ns_add_u32 s{sXN}, s{sXN}, {LY.HOFF}")
            elif k%4==0: A(f"s_add_u32 s{sXN}, s{sXN}, 4096")
            A(f"buffer_load_dwordx4 {v(SLOT[i%26],4)}, v{vL16}, {WS}, s{sXN} offen offset:{(k%4)*1024} sc1")
        ln=[self.hpre]
        for _ in range(self.P('dl',12)-self.hpre): ld()
        stats(sRHI)
        def mm(rnd,fill,hook):
            for k in range(28):
                i=rnd*28+k
                self.fine('dn',k)
                for cb in range(2):
                    acc=v((A2 if rnd else A1)+cb*16,16)
                    A(f"{MF} {acc}, {a((k*2+cb)*4,4)}, {v(SLOT[i%26],4)}, {acc if k else '0'}")
                    if k>=2: self.pop(fill,2)
                    if cb==0:
                        lim=28 if rnd==0 else 56
                        for _ in range(2 if k<self.P('dx',6) else 1):
                            if ln[0]<lim and ln[0]<i+26: ld()
                hook(k)
            assert not fill
        cl=list(self.cleft)
        def h0(k):
            if k==self.P('dp',14): self.publish(self.F(F_GU2),tpend)
            if k==self.P('dt',22): self.try_issue(WS,f"s{sTF}",PL,vPA)
            if cl and k>=self.P('dc',4):
                assert k+4<=cl[0]
                self.conv(cl.pop(0))
        mm(0,grp(self.cap(lambda: r2(R2))),h0)
        assert not cl
        self.stamp('dn.mm0')
        self.try_check(WS,f"s{sTF}",PL,vPA,self.F(F_GU2)); self.acquire()
        for _ in range(4): ld()
        stats(sRLO)
        self.red_write(A1)
        for _ in range(4): ld()
        A("s_waitcnt lgkmcnt(0)\ns_barrier")
        self.red_read(A1)
        tx=[None]
        def st1():
            if L==0: tx[0]=self.xstore(RES,sRHI,LY.STX,A1)
            else: self.out_store(RES,sRHI)
        def h1(k):
            if L: return
            if k==self.P('de',10)-6:
                A(f"v_and_b32 v{PL}, 7, v0\nv_lshlrev_b32 v{PL}, 5, v{PL}\ns_and_b32 s{T0+6}, s{sSLOT}, 28\ns_and_b32 s{T0+7}, s{sSLOT}, 3\ns_lshl_b32 s{T0+7}, s{T0+7}, 3\ns_lshl_b32 s{T0+7}, 0x20, s{T0+7}")
                self.try_issue(srd(SDBG),f"s{T0+6}",PL+1,PL)
            if k==self.P('de',10):
                self.try_check(srd(SDBG),f"s{T0+6}",PL+1,PL,f"s{T0+7}",mask=True); self.acquire()
                A(f"s_mul_i32 s{sQ}, s{sSLOT}, 49152\ns_add_u32 s{sQ}, s{sQ}, s{sLW}\ns_add_u32 s{sQ}, s{sQ}, {LY.WQI}\ns_add_u32 m0, s{sLW}, {RW}")
                for j in range(4): A(f"buffer_load_dwordx4 v{vL16}, {WS}, s{sQ} offen offset:{j*1024} sc1 lds")
            if k==self.P('dq',22): self.publish(F_N+F_X1,tx[0])
        mm(1,self.red_fin(0,A1,R2)+[st1]+grp(self.cap(lambda: r2(R2+1))),h1)
        self.stamp('dn.mm1')
        A("s_barrier")
        self.red_write(A2); A("s_waitcnt lgkmcnt(0)\ns_barrier")
        self.red_read(A2)
        if L==0: self.try_issue(WS,f"s{sTF}",PL,vPX)
        for x in self.red_fin(1,A2,R2+1): A(x)
        if L: self.out_store(RES+4,sRLO); return
        self.stamp('dn.fin')
        self.L=1
        A(f"s_add_u32 s{sHB}, s{sHB}, {LY.HALO_L}")
        self.try_check(WS,f"s{sTF}",PL,vPX,self.F(F_X1)); self.acquire()
        self.qa_prefetch(self.qlead())
        self.txlo=self.xstore(RES+4,sRLO,LY.STX,A2)
        A(f"s_barrier\ns_add_u32 s{sQ}, s{sQ}, s{sLW}\ns_add_u32 s{sQ}, s{sQ}, 16384\ns_lshl_b32 s{T0+6}, s{sW}, 13\ns_add_u32 m0, s{T0+6}, {SCR}")
        for j in range(8):
            if j==4: A(f"s_add_u32 s{sQ}, s{sQ}, 4096\ns_add_u32 m0, s{T0+6}, {SCR+4096}")
            self.tlate=A(f"buffer_load_dwordx4 v{vL16}, {WS}, s{sQ} offen offset:{(j%4)*1024} sc1 lds")
    def out_store(self,rs,rec):
        self.A(f"""s_lshl_b32 s{T0+2}, s{sTEAM}, 3
        s_{'add' if rec==sRLO else 'sub'}_u32 s{T0+2}, s{T0+2}, s{sTQ}
        s_add_u32 s{T0+2}, s{T0+2}, {0 if rec==sRLO else 7}
        s_lshl_b32 s{T0+2}, s{T0+2}, 15
        s_lshl_b32 s{T0+3}, s{sCW}, 7
        s_add_u32 s{T0+2}, s{T0+2}, s{T0+3}
        buffer_store_dwordx4 {v(rs,4)}, v{vROW}, {srd(SOUT)}, s{T0+2} offen{' sc1' if self.P('osc',0) else ''}""")
    def build(self):
        A=self.A; self.L=0
        q=self.q_wgr(); k=self.P('ord',18); o=self.q_wo(); self.bgq=q[:k]+o[:8]+q[k:]+o[8:]+self.q_wd(); self.wn=0; self.xfree=112
        self.prologue()
        seq=[(n,f,l) for l in range(2) for n,f in (('qa',self.qa),('att',self.att),('wo',self.wo),('gu',self.gu),('dn',self.down))]
        for n,f,l in seq:
            if self.P('bench',0): break
            if n=='qa': self.stamp('qa.in')
            f()
            if self.stop==f"{n}{l}": break
        A("s_waitcnt vmcnt(0)" if self.stop else "s_nop 0")
        self.end()
        A.label('L_exit'); A("s_endpgm")
        for t in self.tail: A.raw(t)
        A.label('L_end')
        hdr=f"""; generated by gen/gen3.py
; @launch grid=(256,1,1) block=(256,1,1) lds=163840
.amdgcn_target "amdgcn-amd-amdhsa--gfx950"
.text
.globl {NAME}_kernel
.p2align 8
.type {NAME}_kernel,@function
{NAME}_kernel:
"""
        kd=f""".section .rodata,"a"
.p2align 6
.amdhsa_kernel {NAME}_kernel
  .amdhsa_next_free_vgpr 512
  .amdhsa_next_free_sgpr 102
  .amdhsa_accum_offset 256
  .amdhsa_group_segment_fixed_size 0
  .amdhsa_kernarg_size 80
  .amdhsa_user_sgpr_count 2
  .amdhsa_user_sgpr_kernarg_segment_ptr 1
  .amdhsa_system_sgpr_workgroup_id_x 1
.end_amdhsa_kernel
"""
        ex='; STAMPS '+','.join(self.stn[:-1])+'\n' if self.stamps else ''
        return hdr+A.text()+kd+ex
if __name__=='__main__':
    o=dict(x.split('=') for x in sys.argv[2:])
    g=G(o)
    t=g.build(); open(sys.argv[1],'w').write(t)
    print('lines',t.count('\n'),'auto nops',g.A.nops,'stamps',len(g.stn))
```

```python
import numpy as np, os
FLAGS=0x0; HFLAGS=0x1000; STAMPS=0x10000
REC=0x100000; RS=151552; XOFF=0; HOFF=32768; STX=147456; ST1=149504
HALO=0xB00000; HALO_L=0x400000
VOFF=HOFF+32768; CSOFF=HOFF+65536
WQI=0x1300000
WS_USED=0x1480000
def f32(u): return (u.astype(np.uint32)<<16).view(np.float32)
NAT=np.array([[8*h+j for j in range(8)] for h in range(2)])
PER=np.array([[(j>>2)*8+4*h+(j&3) for j in range(8)] for h in range(2)])
def unfrag(F,m):
    sh=F.shape[:-3]; out=np.zeros(sh+(F.shape[-2],16),np.float32)
    for h in range(2):
        for j in range(8): out[...,m[h][j]]=F[...,h,:,j]
    return out
def recs(w,off,n):
    R=w[REC:REC+64*RS].reshape(64,RS)[:,off:off+n*1024].copy()
    return f32(R.view(np.uint16)).reshape(64,n,2,32,8)
def decode(w,n,L,I):
    R=[]
    if n=='qkv':
        qkv=I[f'qkv{L}'].float().numpy()
        H=w[HALO+L*HALO_L:HALO+(L+1)*HALO_L].reshape(8,32,2,8192)
        F=unfrag(f32(H[:,:,0].copy().view(np.uint16)).reshape(8,32,8,2,32,8),PER)
        R.append(('KH',F.transpose(0,2,3,1,4).reshape(2048,512),qkv[:,512:1024]))
        F=f32(H[:,:,1].copy().view(np.uint16)).reshape(8,32,8,2,2,16,8).transpose(0,1,2,4,3,5,6)
        U=unfrag(F,PER)
        R.append(('VH',U.transpose(0,2,3,5,1,4).reshape(2048,512),qkv[:,1024:]))
    elif n=='o':
        F=unfrag(recs(w,HOFF,32),PER)
        R.append(('O',F.transpose(0,2,1,3).reshape(2048,512),I[f'o{L}']))
    elif n in('x1','x'):
        so=ST1 if n=='x1' else STX
        F=unfrag(recs(w,XOFF,32),NAT)
        M=F.transpose(0,2,1,3).reshape(2048,512)
        R.append((n,M,I[f'{n}{L}']))
        st=w[REC:REC+64*RS].reshape(64,RS)[:,so:so+2048].copy().view(np.float32).reshape(2048,2,8).sum(-1)
        R.append(('stats',st,np.stack([M.sum(1),(M*M).sum(1)],1)))
    elif n=='h':
        F=unfrag(recs(w,HOFF,112),PER)
        M=F.transpose(0,2,1,3).reshape(2048,1792)
        r=I[f'r1{L}'].numpy()
        R.append(('H',M*(r*r)[:,None],I[f'h{L}']))
    return R
def check_weights(w,W):
    Q=f32(w[WQI:WQI+32*49152].view(np.uint16)).reshape(32,16,3,32,16).copy()
    Q[:,:,1]=Q[:,:,1][:,:,np.arange(32)^4]
    return [('WQI',Q.transpose(1,3,2,0,4).reshape(512,1536),W['A_wqkv'])]
def stamps(w,names,cyc=False):
    names=names.split(',')
    S=w[STAMPS:STAMPS+256*4*64*4].view(np.uint32).reshape(256,4,64).astype(np.int64)
    t0=S[:,:,0].min()
    prev=None
    for i,nm in enumerate(names[:64]):
        if cyc:
            x=(S[:,:,i]-S[:,:,0])&0xffffffff
            d='' if prev is None else f'   dur min {np.min(x-prev)} med {int(np.median(x-prev))} max {np.max(x-prev)}   w0..3 '+' '.join(str(int(np.median((x-prev)[:,k]))) for k in range(4))
            print(f'  {nm:10s} {int(np.median(x)):7d}{d}')
        else:
            x=(S[:,:,i]-t0)*0.01
            d='' if prev is None else f'   dur med {np.median(x-prev):.2f} max {np.max(x-prev):.2f}'
            print(f'  {nm:10s} {x.min():7.2f} {np.median(x):7.2f} {x.max():7.2f}{d}')
        prev=x
        if nm in os.environ.get('STM','').split(','):
            m=(x.max(axis=1).reshape(32,8).T)/(1000 if cyc else 1)
            for tm in range(8): print('    t%d '%tm+' '.join('%4.1f'%y for y in m[tm]))
```

```python
import sys,re
sys.path.insert(0,'gen')
from asm2 import *
import layout4 as LY
NAME='interleave_layers__sliding_block__glu_gated_reglu__prompt'
MF='v_mfma_f32_32x32x16_bf16'; MS='v_mfma_f32_16x16x32_bf16'
SX,SWQ,SWS,SOUT,SDBG,SWO,SWG,SWU,SWD=8,12,16,20,24,28,32,36,40
sTEAM,sSLOT,sW,sTQ,sCW,sE,sMODE,sQ,sMYF,sTF,sTO,sONE,sXCC,sHS,sSTI,sHI,sLO,sRHI,sRLO,sSLOW=range(44,64)
sXN,sHB,sGB,sDB,sOB,sLW,sBT,sHF,sW1K=range(64,73)
T0=84
sST=100
vL,vL16,RES,vW1,vW2,vWV,vRRD,vRW0,vRW1,vXST,vROW,vSST,vSLD,vDSL,vPX,vPA,vSTMP=0,1,2,10,11,12,13,14,15,16,17,18,19,20,21,22,23
CSG,CSQ,CSV,vG0,vG1,WOV=24,28,29,30,31,32
vGA,vGW=24,25
vP1,vT0,vT1,vD=252,253,254,255
RW=114688; AK=RW; AV=AK+16384; AO=AV+16384; SCR=131072
F_X1,F_X2,F_ATB,F_ATA,F_WO1,F_WO2,F_GU1,F_GU2,F_N=1,2,3,4,5,6,7,8,8
def srd(i): return s(i,4)
WS=srd(SWS)
def woreg(q,n=4): return v(WOV+4*q,n) if q<8 else a(224+4*(q-8),n)

class G:
    def __init__(self,o):
        self.o=o; self.stop=o.get('stop'); self.stamps=int(o.get('stamps',0)); self.force_mixed=int(o.get('mixed',0))
        self.A=Asm(); self.tail=[]; self.tm="s_memtime" if self.stamps==2 else "s_memrealtime"; self.stn=[]
        self.nt=' nt' if int(o.get('nt',0)) else ''
    def P(self,k,d): return int(self.o.get(k,d))
    def S(self,k,d):
        r={}
        for part in self.o.get(k,d).split('+'):
            if not part: continue
            n=1; st=1
            if '*' in part: part,n=part.split('*')
            if '/' in part: part,st=part.split('/')
            a_,b_=(part.split('-')+[part])[:2]
            for i in range(int(a_),int(b_)+1,int(st)): r[i]=r.get(i,0)+int(n)
        return r
    def stamp(self,name):
        if not self.stamps: return
        A=self.A
        A(f"s_waitcnt lgkmcnt(0)\ns_mov_b32 m0, s{sSTI}\nv_writelane_b32 v{vSTMP}, s{sST}, m0\ns_add_u32 s{sSTI}, s{sSTI}, 1\n{self.tm} {s(sST,2)}")
        self.stn.append(name)
    def fine(self,ph,i,every=4):
        if self.o.get('fs')==f"{ph}{self.L}" and i%every==0: self.stamp(f"{ph}:{i}")
    def end(self):
        A=self.A
        if self.stamps:
            self.stamp('end-')
            A(f"""s_lshl_b32 s{T0}, s2, 2
            s_add_u32 s{T0}, s{T0}, s{sW}
            s_lshl_b32 s{T0}, s{T0}, 8
            s_add_u32 s{T0}, s{T0}, {LY.STAMPS}
            v_lshlrev_b32 v{vT0}, 2, v{vL}
            buffer_store_dword v{vSTMP}, v{vT0}, {WS}, s{T0} offen""")
        A("s_endpgm")
    def acquire(self):
        A=self.A; b=A.newlabel('L_acq'); r=A.newlabel('L_acr')
        A(f"s_cmp_lg_u32 s{sMODE}, 0\ns_cbranch_scc1 {b}"); A.label(r)
        self.tail.append(f"{b}:\n    buffer_inv sc1\n    s_waitcnt vmcnt(0)\n    s_branch {r}")
    def publish(self,val,tag):
        A=self.A; b=A.newlabel('L_pub'); r=A.newlabel('L_pur')
        assert tag
        A(f"v_mov_b32 v{vP1}, {val}")
        A.wait_vm(tag)
        A(f"s_mov_b64 exec, 1\ns_cmp_lg_u32 s{sMODE}, 0\ns_cbranch_scc1 {b}")
        A(f"buffer_store_dword v{vP1}, off, {WS}, s{sMYF}"); A.label(r)
        A("s_mov_b64 exec, -1")
        self.tail.append(f"{b}:\n    buffer_wbl2 sc1\n    s_waitcnt vmcnt(0)\n    buffer_store_dword v{vP1}, off, {WS}, s{sMYF} sc1\n    s_branch {r}")
    def hpublish(self,val,tag):
        A=self.A
        assert tag
        A(f"v_mov_b32 v{vP1}, {2*self.L+val}\ns_add_u32 s{T0+15}, s{sMYF}, {LY.HFLAGS}")
        A.wait_vm(tag)
        A(f"s_mov_b64 exec, 1\nbuffer_store_dword v{vP1}, off, {WS}, s{T0+15} sc1\ns_mov_b64 exec, -1")
    def F(self,f): return f+self.L*F_N
    def cap(self,fn):
        class Cap:
            def __init__(s_): s_.L=[]
            def __call__(s_,x): s_.L+= [y.strip() for y in x.split('\n') if y.strip() and not y.strip().startswith(';')]
        A=self.A; c=Cap(); self.A=c
        try: fn()
        finally: self.A=A
        return c.L
    def pop(self,q,n=1):
        for _ in range(n):
            if not q: return
            g=q.pop(0)
            if callable(g): g()
            elif isinstance(g,(list,tuple)):
                for x in g: self.A(x)
            else: self.A(g)
    def cond(self,test,fn):
        A=self.A; l=A.newlabel('L_c')
        A(f"{test}\ns_cbranch_scc1 {l}")
        A.cond_begin(); fn(); A.cond_end(); A.label(l)
    def bg(self,n):
        r=None
        for _ in range(n):
            if self.L or not self.bgq: break
            g=self.bgq[0]
            m=re.match(r'a\[(\d+):',g[-1].split()[1])
            if m and int(m.group(1))>=self.xfree: break
            if srd(SWD) in g[-1] and 56-len(self.bgq)>=min(self.wn,32): break
            for x in self.bgq.pop(0): r=self.A(x)
        return r
    def try_issue(self,srd_,soff,dst,off):
        self.A(f"buffer_load_dword v{dst}, v{off}, {srd_}, {soff} offen sc1")
    def try_check(self,srd_,soff,dst,off,target,mask=False):
        A=self.A; l=A.newlabel('L_poll'); d=A.newlabel('L_ok')
        def test():
            if mask: return f"v_and_b32 v{vT1}, {target}, v{dst}\nv_cmp_ne_u32 vcc, {target}, v{vT1}"
            return f"v_cmp_gt_u32 vcc, {target}, v{dst}"
        A(test()); A(f"s_cbranch_vccnz {l}"); A.label(d)
        body=f"""{l}:
    s_nop 4
    buffer_load_dword v{dst}, v{off}, {srd_}, {soff} offen sc1
    s_waitcnt vmcnt(0)
"""+"".join("    "+x+"\n" for x in test().split("\n"))+f"""    s_nop 1
    s_cbranch_vccz {d}
    s_sub_u32 s{sTO}, s{sTO}, 1
    s_cbranch_scc0 {l}
    s_endpgm"""
        self.tail.append(body)
    def ln_scalars(self,vs,vq,vm,vr,t):
        A=self.A
        A(f"""v_mul_f32 v{vs}, 0x3b000000, v{vs}
        v_mul_f32 v{vq}, 0x3b000000, v{vq}
        v_fma_f32 v{vq}, -v{vs}, v{vs}, v{vq}
        v_max_f32 v{vq}, 0, v{vq}""")
        if vm is not None: A(f"v_cvt_pk_bf16_f32 v{vm}, -v{vs}, -v{vs}")
        if vr is not None:
            A(f"""v_cvt_pk_bf16_f32 v{t}, v{vq}, v{vq}
            v_and_b32 v{t}, 0xffff0000, v{t}
            v_add_f32 v{t}, 0x3727c5ac, v{t}
            v_cvt_pk_bf16_f32 v{t}, v{t}, v{t}
            v_and_b32 v{t}, 0xffff0000, v{t}
            v_sqrt_f32 v{t}, v{t}
            v_cvt_pk_bf16_f32 v{t}, v{t}, v{t}
            v_and_b32 v{t}, 0xffff0000, v{t}
            v_rcp_f32 v{vr}, v{t}""")
    def sum8(self,b):
        self.A(f"""v_add_f32 v{b}, v{b}, v{b+1}
        v_add_f32 v{b+2}, v{b+2}, v{b+3}
        v_add_f32 v{b+4}, v{b+4}, v{b+5}
        v_add_f32 v{b+6}, v{b+6}, v{b+7}
        v_add_f32 v{b}, v{b}, v{b+2}
        v_add_f32 v{b+4}, v{b+4}, v{b+6}
        v_add_f32 v{b}, v{b}, v{b+4}""")
    def cs_pack(self,r,t):
        self.A(f"""v_cvt_pk_bf16_f32 v{t}, v{r}, v{r}
        v_and_b32 v{t}, 0xffff0000, v{t}
        v_sub_f32 v{t}, v{r}, v{t}
        v_cvt_pk_bf16_f32 v{r}, v{r}, v{t}""")
    def selector(self,r):
        self.A(f"""v_bfe_u32 v{r}, v0, 4, 1
        v_lshlrev_b32 v{r}, 2, v{r}
        v_and_b32 v{r+1}, 15, v0
        v_cmp_eq_u32 vcc, v{r}, v{r+1}
        v_mov_b32 v{r+1}, s{sONE}
        v_cndmask_b32 v{r}, 0, v{r+1}, vcc
        v_mov_b32 v{r+1}, v{r}
        v_mov_b32 v{r+2}, v{r}
        v_mov_b32 v{r+3}, v{r}""")
    def mark(self,bits):
        A=self.A
        def f():
            A(f"""s_or_b32 s{T0+14}, s{sXCC}, {bits}
            v_mov_b32 v{vT0}, s{T0+14}
            s_lshl_b32 s{T0+14}, s{sTEAM}, 5
            s_add_u32 s{T0+14}, s{T0+14}, s{sSLOT}
            s_mov_b64 exec, 1
            buffer_store_byte v{vT0}, off, {srd(SDBG)}, s{T0+14} sc1
            s_mov_b64 exec, -1""")
        return f
    def q_wo(self):
        return [[f"s_add_u32 s{sBT}, s{sOB}, {q*8192}",f"buffer_load_dwordx4 {woreg(q)}, v{vD}, {srd(SWO)}, s{sBT} offen{self.nt}"] for q in range(16)]
    def q_wd(self):
        return [[f"s_add_u32 s{sBT}, s{sDB}, {q*8192}",f"buffer_load_dwordx4 {a(4*q,4)}, v{vD}, {srd(SWD)}, s{sBT} offen{self.nt}"] for q in range(56)]
    def q_wgu(self,j):
        L=[]
        for gu in range(2):
            for rh in range(2):
                L.append([f"s_add_u32 s{sBT}, s{sGB}, {j*64*3584+rh*8*3584}",f"s_add_u32 m0, s{sLW}, {j*16384+gu*2048+rh*1024}",
                          f"buffer_load_dwordx4 v{vG0+gu}, {srd(SWU if gu else SWG)}, s{sBT} offen{self.nt} lds"])
        return L
    def q_wgr(self):
        return [[f"s_add_u32 s{sBT}, s{sGB}, {(n>>2)*64*3584+(n&1)*8*3584}",
                 f"buffer_load_dwordx4 {a(4*n,4)}, v{vGA}, {srd(SWU if n&2 else SWG)}, s{sBT} offen"] for n in range(32)]
    def wout(self,k,lim=28):
        for _ in range(k):
            n=self.wn
            if self.L or n>=lim: return
            if any(g[-1].split()[1]==a(4*n,4)+',' and srd(SWD) not in g[-1] for g in self.bgq):
                assert lim==28
                return
            if n==16: self.A(f"v_add_u32 v{vGW}, 0x10000, v{vGW}\nv_add_u32 v{vGW+1}, 0x10000, v{vGW+1}")
            self.A(f"ds_write_b128 v{vGW+((n>>1)&1)}, {a(4*n,4)} offset:{((n>>2)&3)*16384+(n&3)*1024}")
            self.wn+=1
    def conv_setup(self,r):
        self.A(f"""v_lshrrev_b32 v{r}, 5, v{vL}
        v_bfe_u32 v{r+1}, v{vL}, 2, 2
        v_lshl_add_u32 v{r+1}, v{r}, 2, v{r+1}
        v_lshlrev_b32 v{r+1}, 7, v{r+1}
        v_bfe_u32 v{r}, v{vL}, 4, 1
        v_lshl_add_u32 v{r+1}, v{r}, 5, v{r+1}
        v_lshlrev_b32 v{r}, 6, v{r}
        v_and_b32 v{r+2}, 3, v{vL}
        v_lshl_add_u32 v{r+1}, v{r+2}, 3, v{r+1}
        v_bfe_u32 v{r+2}, v{vL}, 3, 1
        v_lshl_add_u32 v{r+1}, v{r+2}, 6, v{r+1}
        v_sub_u32 v{r+2}, v{vRW0}, v{vL16}
        v_add_u32 v{r+1}, v{r+1}, v{r+2}
        v_xor_b32 v{r+2}, 64, v{r+1}
        v_xor_b32 v{r}, v{r}, v{vRW0}""")
    def conv_unit(self,reg,b,r):
        L=[f"ds_write_b128 v{r}, {reg(b,4)}",f"ds_write_b128 v{r}, {reg(b+4,4)} offset:1024"]
        for cb in range(2):
            L+= [f"ds_read_b64_tr_b16 {reg(b+4*cb,2)}, v{r+1+cb}",f"ds_read_b64_tr_b16 {reg(b+4*cb+2,2)}, v{r+1+cb} offset:1024"]
        return L
    def xstore(self,rs,srec,so,R,woff=0):
        A=self.A
        A(f"""s_lshl_b32 s{T0+3}, s{sCW}, 12
        s_add_u32 s{T0+2}, s{srec}, s{T0+3}
        buffer_store_dwordx4 {v(rs,4)}, v{vXST}, {WS}, s{T0+2} offen offset:{woff*128}
        v_mov_b32 v{R}, 0
        v_mov_b32 v{R+1}, 0""")
        for n in range(4): A(f"v_dot2c_f32_bf16 v{R}, s{sONE}, v{rs+n}\nv_dot2c_f32_bf16 v{R+1}, v{rs+n}, v{rs+n}")
        A(f"""s_lshl_b32 s{T0+3}, s{sCW}, 2
        s_add_u32 s{T0+2}, s{srec}, s{T0+3}
        s_add_u32 s{T0+2}, s{T0+2}, {so}
        v_add_f32_dpp v{R}, v{R}, v{R} row_ror:8 row_mask:0xf bank_mask:0xf
        v_add_f32_dpp v{R+1}, v{R+1}, v{R+1} row_ror:8 row_mask:0xf bank_mask:0xf
        v_permlane16_swap_b32 v{R}, v{R+1}
        v_add_f32 v{R}, v{R}, v{R+1}
        v_mov_b32 v{R+1}, v{R}
        v_permlane32_swap_b32 v{R}, v{R+1}
        v_add_f32 v{R}, v{R}, v{R+1}""")
        return A(f"buffer_store_dword v{R}, v{vSST}, {WS}, s{T0+2} offen offset:{woff*512}")
    WR,WG_,NR,STA=65536,12672,7,154624
    XF,AW,XA,XD,PD,WA,WD,TN=64,80,88,92,98,100,104,106
    CQ,CV,SEL=176,180,184
    sWS,sWL,sWK=(T0+10,T0+11,T0+12),(3,6,7),T0+13
    sCK,sCV=sHS,sQ
    def wgrp(self,q=None):
        A=self.A; G_=self.wg; self.wg+=1
        def piece(i):
            if G_ and not i: A(f"s_add_u32 s{self.sWK}, s{self.sWK}, 98304\ns_cmp_eq_u32 s{self.sWK}, {16*98304}\ns_cselect_b32 s{self.sWK}, 0, s{self.sWK}")
            self.wtag[G_]=A(f"""s_add_u32 m0, s{self.sWL[i]}, {(G_%self.NR)*self.WG_}
            s_add_u32 s{sBT}, s{self.sWK}, s{self.sWS[i]}
            buffer_load_dwordx4 v{self.WD+(i>0)}, {srd(SWQ)}, s{sBT} offen lds""")
        for i in range(3):
            if q is None: piece(i)
            else: q.append(lambda i=i: piece(i))
    def prologue(self):
        A=self.A; XD,WD=self.XD,self.WD; sWS,sWL,sWK=self.sWS,self.sWL,self.sWK
        A(f"""s_cmp_ge_u32 s2, 256
        s_cbranch_scc1 L_exit
        s_load_dwordx16 s[64:79], s[0:1], 0
        s_load_dwordx4 s[80:83], s[0:1], 64""")
        A("s_getpc_b64 s[4:5]"); A.label("L_pc")
        if self.stamps: A(f"{self.tm} {s(sST,2)}\ns_mov_b32 s{sSTI}, 0\nv_mov_b32 v{vSTMP}, 0"); self.stn.append('start')
        R=self.P('rot',4); MX=self.P('mx',3); sCK,sCV=self.sCK,self.sCV
        A(f"""v_lshrrev_b32 v2, 6, v0
        v_and_b32 v0, 63, v0
        v_readfirstlane_b32 s{sW}, v2
        v_lshlrev_b32 v{vL16}, 4, v0
        s_and_b32 s{sTEAM}, s2, 7
        s_lshr_b32 s{sSLOT}, s2, 3
        {f's_xor_b32 s{sSLOT}, s{sSLOT}, '+str(self.P('sx',0)) if self.P('sx',0) else ''}
        s_and_b32 s{sTQ}, s{sSLOT}, 3
        s_lshr_b32 s{sCW}, s{sSLOT}, 2
        s_lshl_b32 s{T0}, s{sSLOT}, 2
        s_add_u32 s{T0}, s{T0}, s{sW}
        s_lshl_b32 s{T0}, s{T0}, 10
        v_and_b32 v4, 7, v0
        v_lshlrev_b32 v3, 7, v4
        v_add_u32 v3, s{T0}, v3
        v_min_u32 v3, L_end-L_pc-4, v3
        {'global_load_dword v251, v3, s[4:5]' if self.P('ct',1) else ''}
        v_lshrrev_b32 v9, 3, v0
        v_xor_b32 v5, v4, v9
        v_lshlrev_b32 v{XD}, 10, v9
        v_lshl_add_u32 v{XD}, v5, 4, v{XD}
        v_xor_b32 v{XD+1}, 0x410, v{XD}
        v_lshrrev_b32 v5, 4, v0
        v_mul_u32_u24 v5, {4*3072}, v5
        v_lshl_add_u32 v5, v4, 4, v5
        v_and_b32 v6, 1, v9
        s_add_u32 s{sCK}, s{sCW}, {MX}
        s_and_b32 s{sCK}, s{sCK}, 7
        s_add_u32 s{sCV}, s{sCW}, {2*MX}
        s_and_b32 s{sCV}, s{sCV}, 7
        s_sub_u32 s{T0+1}, s{sCK}, s{sCW}
        s_lshl_b32 s{T0+1}, s{T0+1}, 7
        s_add_u32 s{T0+1}, s{T0+1}, 1024
        v_mul_u32_u24 v{WD}, s{T0+1}, v6
        s_lshl_b32 s{T0+1}, s{sCW}, 7
        v_add3_u32 v{WD}, v{WD}, v5, s{T0+1}
        v_mul_u32_u24 v6, 3072, v6
        s_lshl_b32 s{T0+1}, s{sCV}, 7
        v_add3_u32 v6, v6, v5, s{T0+1}
        s_bitcmp1_b32 s{sW}, 0
        s_cselect_b64 vcc, -1, 0
        s_cselect_b32 s{sWS[0]}, {3*3072}, 0
        s_mov_b32 s{sWS[1]}, 3072
        s_mov_b32 s{sWS[2]}, 6144
        s_mov_b32 s{sWL[1]}, 1056
        s_mov_b32 s{sWL[2]}, 2112
        s_cselect_b32 s{sWS[1]}, 2048, s{sWS[1]}
        s_cselect_b32 s{sWS[2]}, {2048+6144}, s{sWS[2]}
        s_cselect_b32 s{sWL[0]}, {3*1056}, 0
        s_cselect_b32 s{sWL[1]}, 4224, s{sWL[1]}
        s_cselect_b32 s{sWL[2]}, 5312, s{sWL[2]}
        v_cndmask_b32 v{WD+1}, v{WD}, v6, vcc
        s_lshr_b32 s{T0+1}, s{sW}, 1
        s_mul_i32 s{T0+2}, s{T0+1}, 49152
        s_mul_i32 s{T0+3}, s{T0+1}, 6336
        s_add_u32 s{T0+3}, s{T0+3}, {self.WR}""")
        for i in range(3): A(f"s_add_u32 s{sWS[i]}, s{sWS[i]}, s{T0+2}\ns_add_u32 s{sWL[i]}, s{sWL[i]}, s{T0+3}")
        A(f"""s_mul_i32 s{T0+2}, s{sTQ}, {R}
        s_and_b32 s{T0+2}, s{T0+2}, 15
        s_mul_i32 s{sWK}, s{T0+2}, 98304
        s_lshl_b32 s{T0+6}, s{T0+2}, 6
        s_lshl_b32 s{T0+7}, s{sTEAM}, 4
        s_lshl_b32 s{T0+2}, s{sTQ}, 2
        s_add_u32 s{T0+7}, s{T0+7}, s{T0+2}
        s_add_u32 s{T0+7}, s{T0+7}, s{sW}
        s_lshl_b32 s{T0+7}, s{T0+7}, 14
        s_lshl_b32 s{T0+9}, s{T0+1}, 15
        s_and_b32 s{T0+2}, s{sW}, 1
        s_lshl_b32 s{T0+2}, s{T0+2}, 11
        s_add_u32 s{T0+9}, s{T0+9}, s{T0+2}
        s_lshl_b32 s{sTF}, s{sTEAM}, 9
        s_lshl_b32 s{T0+8}, s{sSLOT}, 4
        s_add_u32 s{T0+8}, s{T0+8}, s{sTF}
        v_mov_b32 v112, 0
        v_mov_b32 v113, 0
        v_mov_b32 v114, 0
        v_mov_b32 v115, 0
        s_waitcnt lgkmcnt(0)""")
        self.stamp('p.ka')
        def mk(sr,p,sz): A(f"s_mov_b32 s{sr}, s{p}\ns_mov_b32 s{sr+1}, s{p+1}\ns_mov_b32 s{sr+2}, {sz}\ns_mov_b32 s{sr+3}, 0x20000")
        mk(SWS,82,LY.WS_USED)
        tf=[None]
        def fz():
            A(f"""s_mov_b64 exec, 1
            buffer_store_dwordx4 v[112:115], off, {WS}, s{T0+8} sc1
            s_add_u32 s{T0+8}, s{T0+8}, {LY.HFLAGS}""")
            tf[0]=A(f"buffer_store_dwordx4 v[112:115], off, {WS}, s{T0+8} sc1")
            A("s_mov_b64 exec, -1")
        self.cond(f"s_cmp_lg_u32 s{sW}, 0",fz)
        mk(SX,64,2097152); mk(SWQ,66,1572864)
        self.wg=0; self.wtag={}
        xn=[0]; tx=[None]; sXS,sXD,sXR,sXL=T0+6,T0+14,T0+7,T0+9
        A(f"""s_mul_i32 s{sXD}, s{sCW}, {self.P('xro',1)*4096}
        s_lshr_b32 s{T0+2}, s{sXD}, 5
        s_add_u32 s{sXS}, s{sXS}, s{T0+2}
        s_and_b32 s{sXS}, s{sXS}, 1023""")
        def px(n):
            for _ in range(n):
                g,q=divmod(xn[0],2); xn[0]+=1
                if g and not q: A(f"s_add_u32 s{sXS}, s{sXS}, 128\ns_and_b32 s{sXS}, s{sXS}, 1023\ns_add_u32 s{sXD}, s{sXD}, 4096\ns_and_b32 s{sXD}, s{sXD}, 0x7fff")
                tx[0]=A(f"""s_add_u32 s{sBT}, s{sXS}, s{sXR}
                {f's_add_u32 s{sBT}, s{sBT}, 8192' if q else ''}
                s_add_u32 m0, s{sXL}, s{sXD}
                {'s_add_u32 m0, m0, 1024' if q else ''}
                buffer_load_dwordx4 v{XD+q}, {srd(SX)}, s{sBT} offen lds""")
        def seq(k,d):
            for x in self.o.get(k,d).split('.'):
                if x[0]=='x': px(int(x[1:]))
                elif x[0]=='w':
                    for _ in range(int(x[1:])): self.wgrp()
                elif x[0]=='c': self.tcl=self.clear(112)
        self.tcl=None; seq('p1','x8.w1')
        A(f"s_mov_b32 s{sSLOW}, s{sXS}\ns_mov_b32 s5, s{sXR}\ns_mov_b32 s4, s{sXL}")
        sXS,sXR,sXL=sSLOW,5,4
        self.stamp('p.x')
        for sr,p_,sz in ((SDBG,80,256),(SOUT,78,2097152),(SWO,68,524288),(SWG,72,1835008),(SWU,74,1835008),(SWD,76,1835008)): mk(sr,p_,sz)
        A(f"""s_and_b32 s{sE}, s{sSLOT}, 1
        s_lshr_b32 s{T0+1}, s{sSLOT}, 1
        s_mul_i32 s{T0+1}, s{T0+1}, 224
        s_mul_i32 s{T0+2}, s{sE}, 96
        s_add_u32 s{T0+1}, s{T0+1}, s{T0+2}
        s_mul_i32 s{sGB}, s{sW}, {16*3584}
        s_add_u32 s{sGB}, s{sGB}, s{T0+1}
        v_mul_u32_u24 v{vGA}, 3584, v9
        v_lshl_add_u32 v{vGA}, v4, 4, v{vGA}
        s_lshl_b32 s{T0}, s{sTEAM}, 3
        s_add_u32 s{T0+1}, s{T0}, s{sW}
        s_sub_u32 s{T0+2}, s{T0}, s{sW}
        s_add_u32 s{T0+2}, s{T0+2}, 7
        s_mul_i32 s{sHI}, s{T0+2}, {LY.RS}
        s_mul_i32 s{sLO}, s{T0+1}, {LY.RS}
        s_add_u32 s{sHI}, s{sHI}, {LY.REC}
        s_add_u32 s{sLO}, s{sLO}, {LY.REC}
        s_mov_b32 s{sONE}, 0x3f803f80""")
        A(f"""s_getreg_b32 s{sXCC}, hwreg(HW_REG_XCC_ID)
        s_and_b32 s{sXCC}, s{sXCC}, 15
        s_add_u32 s{T0+1}, s{T0}, s{sTQ}
        s_sub_u32 s{T0+2}, s{T0}, s{sTQ}
        s_add_u32 s{T0+2}, s{T0+2}, 7
        v_bfe_u32 v5, v0, 3, 1
        v_lshrrev_b32 v6, 4, v0
        s_lshl_b32 s{T0+3}, s{sW}, 3
        v_add_u32 v4, s{T0+3}, v4
        v_lshlrev_b32 v{vROW}, 10, v4
        v_lshl_add_u32 v{vROW}, v6, 5, v{vROW}
        v_lshl_add_u32 v{vROW}, v5, 4, v{vROW}
        s_lshl_b32 s{T0+3}, s{sCW}, 7
        s_lshl_b32 s{T0+4}, s{T0+2}, 15
        s_add_u32 s{T0+4}, s{T0+4}, s{T0+3}
        s_lshl_b32 s{T0+5}, s{T0+1}, 15
        s_add_u32 s{T0+5}, s{T0+5}, s{T0+3}""")
        A(f"""s_mov_b32 s{sTO}, 200000
        s_lshl_b32 s{T0+6}, s{sSLOT}, 4
        s_add_u32 s{T0+7}, s{sTF}, s{T0+6}
        s_lshl_b32 s{T0+8}, s{sW}, 2
        s_add_u32 s{sMYF}, s{T0+7}, s{T0+8}
        s_max_i32 s{sHF}, s{sTF}, 512
        s_add_u32 s{sHF}, s{sHF}, s{T0+6}
        s_add_u32 s{sHF}, s{sHF}, {LY.HFLAGS-512}
        s_mul_i32 s{sRHI}, s{T0+2}, {LY.RS}
        s_add_u32 s{sRHI}, s{sRHI}, {LY.REC}
        s_mul_i32 s{sRLO}, s{T0+1}, {LY.RS}
        s_add_u32 s{sRLO}, s{sRLO}, {LY.REC}
        s_lshl_b32 s{sHB}, s{sTEAM}, 19
        s_lshl_b32 s{T0+6}, s{sSLOT}, 14
        s_add_u32 s{sHB}, s{sHB}, s{T0+6}
        s_add_u32 s{sHB}, s{sHB}, {LY.HALO}
        s_lshl_b32 s{sW1K}, s{sW}, 10
        s_lshl_b32 s{sLW}, s{sW}, 12
        s_lshl_b32 s{sOB}, s{sW}, 17
        s_add_u32 s{sOB}, s{sOB}, s{T0+3}
        s_mul_i32 s{sDB}, s{sW}, {448*1024}
        s_add_u32 s{sDB}, s{sDB}, s{T0+3}""")
        A(f"""v_lshrrev_b32 v2, 5, v0
        v_bfe_u32 v3, v0, 4, 1
        v_bfe_u32 v8, v0, 2, 2
        v_lshl_add_u32 v9, v2, 3, v8
        v_lshlrev_b32 v9, 5, v9
        v_and_b32 v7, 3, v0
        v_lshl_add_u32 v9, v7, 3, v9
        v_add_u32 v{vWV}, {RW+2048}, v9
        v_mul_u32_u24 v{vW1}, 1152, v3
        v_add3_u32 v{vW1}, v{vW1}, v9, v9
        v_sub_u32 v{vW1}, v{vW1}, v9
        v_add_u32 v{vW1}, {RW}, v{vW1}
        v_xor_b32 v{vW2}, 0x80, v{vW1}
        v_and_b32 v9, 31, v0
        v_lshlrev_b32 v{vSLD}, 6, v9
        v_lshl_add_u32 v{vSLD}, v2, 5, v{vSLD}
        v_lshlrev_b32 v9, 3, v5
        v_xor_b32 v9, v9, v4
        v_lshlrev_b32 v{vRRD}, 4, v9
        v_lshl_add_u32 v{vRRD}, v2, 12, v{vRRD}
        v_lshl_add_u32 v9, v3, 1, v5
        v_lshl_add_u32 v{vRRD}, v9, 10, v{vRRD}
        v_add_u32 v{vRRD}, {SCR}, v{vRRD}
        s_lshl_b32 s{T0+6}, s{sW}, 13
        s_add_u32 s{T0+6}, s{T0+6}, {SCR}
        v_add_u32 v{vRW0}, s{T0+6}, v{vL16}
        v_xor_b32 v{vRW1}, 0x80, v{vRW0}
        v_lshlrev_b32 v{vXST}, 4, v4
        v_lshl_add_u32 v{vXST}, v5, 9, v{vXST}
        v_lshl_add_u32 v{vXST}, v6, 10, v{vXST}
        v_lshlrev_b32 v{vSST}, 6, v4
        v_lshl_add_u32 v{vDSL}, v5, 5, v{vSST}
        v_lshl_add_u32 v{vSST}, v3, 5, v{vSST}
        v_bfe_u32 v9, v0, 2, 3
        v_lshlrev_b32 v{vPX}, 6, v9
        v_lshl_add_u32 v{vPX}, v7, 2, v{vPX}
        s_lshl_b32 s{T0+6}, s{sW}, 4
        v_add_u32 v{vPX}, s{T0+6}, v{vPX}
        v_and_b32 v9, 7, v0
        v_lshlrev_b32 v{vPA}, 4, v9
        s_lshl_b32 s{T0+6}, s{sW}, 7
        s_lshl_b32 s{T0+8}, s{sTQ}, 2
        s_add_u32 s{T0+6}, s{T0+6}, s{T0+8}
        v_add_u32 v{vPA}, s{T0+6}, v{vPA}
        v_lshrrev_b32 v8, 3, v0
        v_lshlrev_b32 v{vD}, 10, v8
        v_lshl_add_u32 v{vD}, v9, 4, v{vD}""")
        for gu in range(2):
            A(f"""v_bfe_u32 v9, v0, 1, 2
            v_and_b32 v7, 3, v8
            v_xor_b32 v9, v9, v7
            v_xor_b32 v9, {gu}, v9
            v_and_b32 v7, 1, v0
            v_lshlrev_b32 v7, 4, v7
            v_lshl_add_u32 v9, v9, 5, v7
            v_mul_u32_u24 v{vG0+gu}, 3584, v8
            v_add_u32 v{vG0+gu}, v{vG0+gu}, v9
            v_lshl_add_u32 v{vGW+gu}, v8, 7, v9
            v_add_u32 v{vGW+gu}, s{sLW}, v{vGW+gu}""")
        XA,WA=self.XA,self.WA
        A(f"""v_and_b32 v9, 7, v0
        v_bfe_u32 v7, v0, 3, 2
        v_lshlrev_b32 v{XA}, 10, v7
        v_and_b32 v7, 1, v7
        v_xor_b32 v7, v7, v9
        v_lshl_add_u32 v{XA}, v7, 7, v{XA}
        v_xor_b32 v7, v2, v9
        v_lshl_add_u32 v{XA}, v7, 4, v{XA}
        s_and_b32 s{T0+6}, s{sW}, 1
        s_lshl_b32 s{T0+6}, s{T0+6}, 15
        v_add_u32 v{XA}, s{T0+6}, v{XA}""")
        for k in (1,2,3): A(f"v_xor_b32 v{XA+k}, {k*32}, v{XA}")
        for k in range(4): A(f"v_xor_b32 v{XA+6+k}, 0x8000, v{XA+k}")
        A(f"""v_and_b32 v7, 3, v0
        v_lshlrev_b32 v7, 3, v7
        v_lshl_add_u32 v7, v2, 9, v7
        v_bfe_u32 v8, v0, 2, 2
        v_mul_u32_u24 v{WA}, 1056, v8
        v_lshl_add_u32 v{WA}, v3, 7, v{WA}
        s_lshl_b32 s{T0+6}, s{sW}, 5
        s_add_u32 s{T0+6}, s{T0+6}, {self.WR}
        v_add3_u32 v{WA}, v{WA}, v7, s{T0+6}
        v_mul_u32_u24 v{WA+1}, 1088, v5
        v_and_b32 v8, 1, v8
        v_lshl_add_u32 v{WA+1}, v8, 7, v{WA+1}
        v_lshl_add_u32 v{WA+1}, v3, 5, v{WA+1}
        s_lshr_b32 s{T0+6}, s{sW}, 1
        s_lshl_b32 s{T0+6}, s{T0+6}, 6
        s_add_u32 s{T0+6}, s{T0+6}, {self.WR+4224}
        v_add3_u32 v{WA+1}, v{WA+1}, v7, s{T0+6}
        v_add_u32 v{WA+2}, {8*6336}, v{WA}
        v_add_u32 v{WA+3}, {8*6336}, v{WA+1}""")
        PD=self.PD
        A(f"""s_sub_u32 s{T0+6}, s{sTEAM}, 1
        s_max_i32 s{T0+6}, s{T0+6}, 0
        s_lshl_b32 s{T0+6}, s{T0+6}, 5
        s_lshl_b32 s{T0+8}, s{sTEAM}, 5
        v_and_b32 v{PD}, 7, v0
        v_lshlrev_b32 v{PD}, 2, v{PD}
        v_mov_b32 v{vT0}, s{T0+8}
        v_mov_b32 v{vT1}, s{T0+6}
        v_cmp_gt_u32 vcc, 32, v0
        v_cndmask_b32 v{vT0}, v{vT1}, v{vT0}, vcc
        v_add_u32 v{PD}, v{PD}, v{vT0}""")
        self.selector(self.SEL)
        self.stamp('p.iss')
        seq('p2','x8.w3'); assert xn[0]==16
        self.stamp('p.wi')
        self.cond(f"s_cmp_lg_u32 s{sW}, 0",lambda: (A.wait_vm(tf[0]),self.mark(0xc0)()))
        TN=self.TN; S_=120; ON=116
        A(f"""v_bfe_u32 v7, v0, 3, 1
        v_and_b32 v8, 7, v0
        v_xor_b32 v9, v7, v8
        v_lshlrev_b32 v9, 7, v9
        v_lshl_add_u32 v9, v7, 10, v9
        v_lshrrev_b32 v7, 4, v0
        v_xor_b32 v7, v7, v8
        v_lshl_add_u32 v9, v7, 4, v9
        v_add_u32 v{TN}, s4, v9
        v_xor_b32 v{TN+1}, 64, v{TN}""")
        for r in range(4): A(f"v_mov_b32 v{ON+r}, s{sONE}")
        A.wait_vm(tx[0])
        self.stamp('p.xw')
        def rd(n): A(f"ds_read_b128 {v(128+(n%12)*4,4)}, v{TN+(n&1)} offset:{(n>>1)*4096}")
        for n in range(8): rd(n)
        for n in range(16):
            if n+8<16: rd(n+8)
            x=v(128+(n%12)*4,4)
            A(f"{MS} {v(S_,4)}, {v(ON,4)}, {x}, {v(S_,4) if n else '0'}\n{MS} {v(S_+4,4)}, {x}, {x}, {v(S_+4,4) if n else '0'}")
            if n%6==5 and self.wg<self.P('w1',6): self.wgrp()
        A(f"""v_and_b32 v{TN}, 15, v0
        v_lshlrev_b32 v{TN}, 3, v{TN}
        s_lshl_b32 s{T0+6}, s{sW}, 7
        s_add_u32 s{T0+6}, s{T0+6}, {self.STA}
        v_add_u32 v{TN}, s{T0+6}, v{TN}
        s_mov_b32 vcc_lo, 0xaaaaaaaa
        s_mov_b32 vcc_hi, 0xaaaaaaaa
        v_cndmask_b32 v{S_+4}, v{S_+4}, v{S_+5}, vcc
        v_cndmask_b32 v{S_+6}, v{S_+6}, v{S_+7}, vcc
        s_mov_b32 vcc_lo, 0xcccccccc
        s_mov_b32 vcc_hi, 0xcccccccc
        v_cndmask_b32 v{S_+1}, v{S_+4}, v{S_+6}, vcc
        s_mov_b32 exec_lo, 0x00f0000f
        s_mov_b32 exec_hi, 0xf0000f00
        ds_write_b64 v{TN}, {v(S_,2)}
        s_mov_b64 exec, -1""")
        self.stamp('p.st')
    def share(self,part):
        self.A(f"""s_lshl_b32 s{T0+3}, s{sTEAM}, 3
        s_add_u32 s{T0+3}, s{T0+3}, s{sCW}
        s_mul_i32 s{T0+3}, s{T0+3}, {LY.RS}
        s_lshl_b32 s{T0+15}, s{sTQ}, 2
        s_add_u32 s{T0+15}, s{T0+15}, s{sW}
        s_mul_i32 s{T0+15}, s{T0+15}, {1280 if part else 8192}
        s_add_u32 s{T0+3}, s{T0+3}, s{T0+15}
        s_add_u32 s{T0+3}, s{T0+3}, {LY.REC+(131072 if part else 0)}""")
    def clear(self,Z):
        A=self.A
        self.share(0)
        for j in range(8):
            if j==4: A(f"s_add_u32 s{T0+3}, s{T0+3}, 4096")
            A(f"buffer_store_dwordx4 {v(Z,4)}, v{vL16}, {WS}, s{T0+3} offen offset:{(j%4)*1024} sc1")
        self.share(1)
        A(f"buffer_store_dwordx4 {v(Z,4)}, v{vL16}, {WS}, s{T0+3} offen sc1\ns_mov_b64 exec, 0xffff")
        t=A(f"buffer_store_dwordx4 {v(Z,4)}, v{vL16}, {WS}, s{T0+3} offen offset:1024 sc1")
        A("s_mov_b64 exec, -1")
        return t
    def touch(self,part):
        A=self.A
        A(f"s_mov_b32 s{T0+14}, s{T0+15}")
        self.share(part)
        A(f"s_mov_b32 s{T0+15}, s{T0+14}\nv_lshlrev_b32 v{vT0}, 7, v0")
        if part: A("s_mov_b64 exec, 0x3ff")
        A(f"buffer_load_dword v250, v{vT0}, {WS}, s{T0+3} offen")
        if part: A("s_mov_b64 exec, -1")
    def mode(self):
        A=self.A; PD=self.PD
        A(f"s_mov_b32 s{T0+9}, 0x40404040")
        self.try_check(srd(SDBG),'0',PD+1,PD,f"s{T0+9}",mask=True)
        A(f"""s_mul_i32 s{T0+9}, s{sXCC}, 0x01010101
        v_and_b32 v{vT0}, 0x0f0f0f0f, v{PD+1}
        v_cmp_ne_u32 vcc, s{T0+9}, v{vT0}
        s_cmp_lg_u32 vcc_lo, 0
        s_cselect_b32 s{sMODE}, 1, 0""")
        if self.force_mixed: A(f"s_mov_b32 s{sMODE}, 1")
    XR,SL,WF,AH,AL,RR,TM,MD,MT=64,104,112,128,160,192,208,220,236
    def qlead(self): return self.P('ql',8)
    def xs(self,i): return v(self.XR+(i%10)*4,4)
    def qa_prefetch(self,n):
        A=self.A
        A(f"s_add_u32 s{T0+8}, s{sHI}, {LY.STX}\ns_mov_b32 s{sXN}, s{sHI}")
        self.xl(0)
        A(f"""buffer_load_dwordx4 {v(self.RR,4)}, v{vSLD}, {WS}, s{T0+8} offen sc1
        buffer_load_dwordx4 {v(self.RR+4,4)}, v{vSLD}, {WS}, s{T0+8} offen offset:16 sc1""")
        for i in range(1,n): self.xl(i)
    def xl(self,i):
        A=self.A
        if i==32: A(f"s_mov_b32 s{sXN}, s{sLO}")
        elif i%4==0 and i: A(f"s_add_u32 s{sXN}, s{sXN}, 4096")
        A(f"buffer_load_dwordx4 {self.xs(i)}, v{vL16}, {WS}, s{sXN} offen offset:{(i%4)*1024} sc1")
    def hstore(self,AC,hi):
        A=self.A
        A(f"s_sub_u32 s{T0+2}, s{sHB}, s{sW1K}\ns_add_u32 s{T0+2}, s{T0+2}, 7168" if hi else f"s_add_u32 s{T0+2}, s{sHB}, s{sW1K}")
        A(f"s_add_u32 s{T0+3}, s{T0+2}, 8192")
        A(f"buffer_store_dwordx4 {v(AC+4,4)}, v{vL16}, {WS}, s{T0+2} offen sc1")
        return A(f"buffer_store_dwordx4 {v(AC+16,4)}, v{vL16}, {WS}, s{T0+3} offen sc1")
    def scal(self,src,tb):
        TM,RR=self.TM,self.RR
        self.A(f"v_mov_b32 v{tb}, v{src}\nv_mov_b32 v{tb+1}, v{src}\nv_permlane32_swap_b32 v{tb}, v{tb+1}")
        self.ln_scalars(tb,tb+1,TM,TM+4,tb+2)
        self.A(f"""v_mov_b32 v{TM+1}, v{TM}
        v_mov_b32 v{TM+2}, v{TM}
        v_mov_b32 v{TM+3}, v{TM}
        v_mul_f32 v{TM+5}, 0x3eb8aa3b, v{TM+4}
        v_lshrrev_b32 v{tb+3}, 5, v{vL}
        v_lshlrev_b32 v{tb+3}, 4, v{tb+3}""")
        for q in range(16): self.A(f"ds_bpermute_b32 v{RR+q}, v{tb+3}, v{TM+4} offset:{((q>>2)*8+(q&3))*4}")
    def masks(self):
        TM,MD,MT=self.TM,self.MD,self.MT
        def f():
            self.A(f"""v_and_b32 v{vT0}, 31, v0
            v_lshrrev_b32 v{vT1}, 5, v0
            v_lshlrev_b32 v{TM+10}, 2, v{vT1}
            v_sub_u32 v{TM+10}, v{vT0}, v{TM+10}
            v_mov_b32 v{TM+11}, 0xf149f2ca""")
            for r in range(16):
                self.A(f"v_cmp_le_i32 vcc, {(r//4)*8+r%4}, v{TM+10}\nv_cndmask_b32_e64 v{MD+r}, v{TM+11}, 0, vcc\nv_cndmask_b32_e64 v{MT+r}, 0, v{TM+11}, vcc")
        m3=self.cap(f)
        return [m3[:5]]+[m3[5+3*r:8+3*r] for r in range(16)]
    def epi(self,AC):
        TM,RR=self.TM,self.RR
        for b in range(2):
            for r in range(8): self.A(f"v_mul_f32 v{AC+b*8+r}, v{AC+b*8+r}, v{TM+5-b}")
            for r in range(4): self.A(f"v_cvt_pk_bf16_f32 v{AC+b*4+r}, v{AC+b*8+2*r}, v{AC+b*8+2*r+1}")
        for r in range(16): self.A(f"v_mul_f32 v{AC+16+r}, v{AC+16+r}, v{RR+r}")
        for r in range(8): self.A(f"v_cvt_pk_bf16_f32 v{AC+16+r}, v{AC+16+2*r}, v{AC+16+2*r+1}")
        for r in range(4): self.A(f"v_permlane16_swap_b32 v{AC+16+r}, v{AC+20+r}")
    def wrd(self,ks,r):
        o=(ks>>1)*3072+(ks&1)*512
        return [f"ds_read_b64_tr_b16 {v(r,2)}, v{vW1} offset:{o}",f"ds_read_b64_tr_b16 {v(r+2,2)}, v{vW2} offset:{o}",
                f"ds_read_b64_tr_b16 {v(r+4,2)}, v{vWV} offset:{o}",f"ds_read_b64_tr_b16 {v(r+6,2)}, v{vWV} offset:{o+128}"]
    def augw(self,r): return [f"v_mov_b32 v{r}, v{CSQ}",f"v_mov_b32 v{r+4}, v{CSV}"]+[f"v_mov_b32 v{r+j}, 0" for j in (1,2,3,5,6,7)]
    def qmm(self,AC,b,wr,x,first):
        acc=v(AC+b*16,16); c='0' if first else acc
        return f"{MF} {acc}, {v(wr,4)}, {x}, {c}" if b==0 else f"{MF} {acc}, {x}, {v(wr+4,4)}, {c}"
    def qa0(self):
        A=self.A; WF,TM,RR,XF,AW,XA,WA,TN=self.WF,self.TM,self.RR,self.XF,self.AW,self.XA,self.WA,self.TN
        CQ,CV,SEL=self.CQ,self.CV,self.SEL; Q0,VV,Q1=128,144,160; T2=188; TB=108
        def rds(i):
            n=((i>>1)%self.NR)*2+(i&1); r=WF+(i&1)*8; b=WA+2*(n>=8); o=(n%8)*6336; x=XF+(i&1)*8
            return [f"ds_read_b64_tr_b16 {v(r,2)}, v{b} offset:{o}",f"ds_read_b64_tr_b16 {v(r+2,2)}, v{b} offset:{o+256}",
                    f"ds_read_b128 {v(x,4)}, v{XA+i%4} offset:{(i>>2)*4096}",f"ds_read_b128 {v(x+4,4)}, v{XA+6+i%4} offset:{(i>>2)*4096}",
                    f"ds_read_b64_tr_b16 {v(r+4,2)}, v{b+1} offset:{o}",f"ds_read_b64_tr_b16 {v(r+6,2)}, v{b+1} offset:{o+256}"]
        def sync(G_): A.wait_vm(self.wtag[G_]); A("s_barrier")
        def st():
            self.A(f"""v_and_b32 v{TB}, 31, v0
            v_lshlrev_b32 v{TB}, 3, v{TB}
            s_and_b32 s{T0+6}, s{sW}, 1
            s_lshl_b32 s{T0+6}, s{T0+6}, 8
            s_add_u32 s{T0+6}, s{T0+6}, {self.STA}
            v_add_u32 v{TB}, s{T0+6}, v{TB}
            v_xor_b32 v{TB+1}, 0x100, v{TB}
            ds_read_b64 {v(RR,2)}, v{TB}
            ds_read_b64 {v(RR+2,2)}, v{TB+1}""")
            self.ln_scalars(RR,RR+1,TM,TM+4,TB); self.ln_scalars(RR+2,RR+3,T2,TB+2,TB+1)
            for r in (1,2,3): self.A(f"v_mov_b32 v{TM+r}, v{TM}\nv_mov_b32 v{T2+r}, v{T2}")
            self.A(f"""v_mul_f32 v{TM+5}, 0x3eb8aa3b, v{TM+4}
            v_mul_f32 v{TB+3}, 0x3eb8aa3b, v{TB+2}
            s_lshl_b32 s{T0+6}, s{sW}, 8
            s_add_u32 s{T0+6}, s{T0+6}, {self.STA+512}
            v_lshlrev_b32 v{TB}, 2, v0
            v_add_u32 v{TB}, s{T0+6}, v{TB}
            ds_write_b32 v{TB}, v{TM+4}
            v_lshrrev_b32 v{TB+1}, 5, v{vL}
            v_lshlrev_b32 v{TB+1}, 4, v{TB+1}
            v_add_u32 v{TB+1}, s{T0+6}, v{TB+1}""")
            for q in range(4): self.A(f"ds_read_b128 {v(RR+4*q,4)}, v{TB+1} offset:{q*32}")
        A("s_waitcnt lgkmcnt(0)")
        sync(0)
        for x in rds(0): A(x)
        fill=self.cap(st)+[f"v_mov_b32 v{AW+j}, 0" for j in (1,2,3,5,6,7)]; wq=[]
        bs=self.S('qs','20-29'); fr=self.P('qf0',1)
        sK,sV,sR0,sR1=T0+6,T0+7,T0+1,T0+15
        fill+=self.cap(lambda: self.A(f"""s_lshl_b32 s{T0+8}, s{sSLOT}, 14
        s_sub_u32 s{T0+2}, s{sHB}, s{T0+8}
        s_lshl_b32 s{T0+8}, s{sTQ}, 11
        s_add_u32 s{sV}, s{T0+2}, s{T0+8}
        s_and_b32 s{T0+8}, s{sW}, 1
        s_lshl_b32 s{T0+8}, s{T0+8}, 10
        s_add_u32 s{sV}, s{sV}, s{T0+8}
        s_lshl_b32 s{T0+8}, s{sW}, 14
        s_add_u32 s{sK}, s{sV}, s{T0+8}
        s_and_b32 s{T0+8}, s{T0+8}, 0x8000
        s_add_u32 s{sV}, s{sV}, s{T0+8}
        s_lshl_b32 s{T0+8}, s{self.sCV}, 16
        s_add_u32 s{sV}, s{sV}, s{T0+8}
        s_add_u32 s{sV}, s{sV}, 8192
        s_lshl_b32 s{T0+8}, s{self.sCK}, 16
        s_add_u32 s{sK}, s{sK}, s{T0+8}
        s_lshl_b32 s{T0+2}, s{sTEAM}, 2
        s_add_u32 s{T0+2}, s{T0+2}, s{sTQ}
        s_lshl_b32 s{T0+2}, s{T0+2}, 1
        s_and_b32 s{T0+8}, s{sW}, 1
        s_add_u32 s{T0+2}, s{T0+2}, s{T0+8}
        s_mul_i32 s{sR0}, s{T0+2}, {LY.RS}
        s_xor_b32 s{T0+2}, s{T0+2}, 1
        s_mul_i32 s{sR1}, s{T0+2}, {LY.RS}
        s_add_u32 s{T0+8}, s{sW1K}, {LY.REC}
        s_add_u32 s{sR0}, s{sR0}, s{T0+8}
        s_add_u32 s{sR1}, s{sR1}, s{T0+8}
        v_mov_b32 v{TN}, s{sCW}
        v_mov_b32 v{TN+1}, s{self.sCK}
        v_bfe_u32 v{TB}, v0, 4, 2
        v_cmp_eq_u32 vcc, 1, v{TB}
        v_cndmask_b32 v{TN}, v{TN}, v{TN+1}, vcc
        v_lshlrev_b32 v{TN}, 11, v{TN}
        v_lshl_add_u32 v{TN}, v0, 2, v{TN}
        v_lshlrev_b32 v{TN+1}, 2, v0
        s_mul_i32 s{T0+2}, s{sTEAM}, {8*LY.RS}
        s_lshl_b32 s{T0+8}, s{sW}, 9
        s_add_u32 s{T0+2}, s{T0+2}, s{T0+8}
        s_add_u32 s{T0+2}, s{T0+2}, {LY.REC+LY.CSOFF}
        s_lshl_b32 s{T0+8}, s{self.sCV}, 11
        s_add_u32 s{T0+8}, s{T0+8}, s{T0+2}"""))
        fl=[]
        for x in fill: fl+= x if isinstance(x,list) else [x]
        fill=fl
        for i in range(32):
            self.fine('qa',i,2)
            r=WF+(i&1)*8; x=XF+(i&1)*8; c=lambda acc,n: v(acc,n) if i else '0'
            big=[f"{MF} {v(Q0,16)}, {v(r,4)}, {v(x,4)}, {c(Q0,16)}",f"{MF} {v(Q1,16)}, {v(r,4)}, {v(x+4,4)}, {c(Q1,16)}",f"{MF} {v(VV,16)}, {v(x,4)}, {v(r+4,4)}, {c(VV,16)}"]
            small=[f"{MS} {v(CQ,4)}, {v(SEL,4)}, {v(r,4)}, {c(CQ,4)}",f"{MS} {v(CV,4)}, {v(SEL,4)}, {v(r+4,4)}, {c(CV,4)}"]
            if i==31:
                assert not fill
                for y in small+big[:1]: A(y)
                self.cs_pack(CQ,CQ+1); A(f"v_mov_b32 v{AW}, v{CQ}"); A(big[1])
                self.cs_pack(CV,CV+1); A(f"v_mov_b32 v{AW+4}, v{CV}"); A(big[2])
                break
            nx=rds(i+1)
            A(big[0])
            if i&1:
                assert not any(g<=(i+1)>>1 for g in range(self.wg) if g not in self.wtag)
                sync((i+1)>>1)
                if self.wg<16 and self.wg<=(i>>1)+self.NR-1: self.wgrp(wq)
            self.pop(nx,4)
            if i>=1: self.pop(fill,fr)
            A(big[1]); self.pop(nx,2)
            if not i&1: self.pop(wq)
            if i>=1: self.pop(fill,fr)
            A(big[2])
            self.pop(wq)
            if i==self.P('qr',18):
                A(f"""buffer_load_dwordx4 {v(RES,4)}, v{vROW}, {srd(SX)}, s{T0+4} offen
                buffer_load_dwordx4 {v(RES+4,4)}, v{vROW}, {srd(SX)}, s{T0+5} offen""")
            if i==self.P('qm',19): self.try_issue(srd(SDBG),'0',self.PD+1,self.PD)
            if i==self.P('pt',99): self.touch(0)
            if i==self.P('pt2',99): self.touch(1)
            self.bg(bs.get(i,0))
            if i>=1: self.pop(fill,fr)
            A(small[0])
            if i>=1: self.pop(fill,1)
            A(small[1])
        assert self.wg==16
        A(f"{MF} {v(Q0,16)}, {v(AW,4)}, {v(TM,4)}, {v(Q0,16)}")
        A(f"{MF} {v(Q1,16)}, {v(AW,4)}, {v(T2,4)}, {v(Q1,16)}")
        A(f"{MF} {v(VV,16)}, {v(TM,4)}, {v(AW+4,4)}, {v(VV,16)}")
        self.stamp('qa.mm')
        self.mode()
        self.stamp('qa.md')
        def stq(reg,so,fl=''): return A(f"buffer_store_dwordx4 {v(reg,4)}, v{vL16}, {WS}, s{so} offen{fl}")
        A(f"""buffer_store_dword v{CQ}, v{TN}, {WS}, s{T0+2} offen
        buffer_store_dword v{CV}, v{TN+1}, {WS}, s{T0+8} offen offset:256
        s_xor_b32 s{T0+9}, s{sK}, 1024
        s_add_u32 s{T0+12}, s{sV}, 16384
        s_lshl_b32 s{T0+10}, s{self.sCK}, 12
        s_lshl_b32 s{T0+11}, s{sCW}, 12
        s_add_u32 s{T0+11}, s{T0+11}, {LY.HOFF}""")
        xv=self.P('xv',2); xf=' sc1' if xv in (2,3) else ''
        for AC,sc,rec in ((Q0,TM+4,sR0),(Q1,TB+2,sR1)):
            for b in (1,0):
                for r in range(8): A(f"v_mul_f32 v{AC+b*8+r}, v{AC+b*8+r}, v{sc+1-b}")
                for r in range(4): A(f"v_cvt_pk_bf16_f32 v{AC+b*8+r}, v{AC+b*8+2*r}, v{AC+b*8+2*r+1}")
                A(f"s_add_u32 s{T0+13}, s{rec}, s{T0+11-b}")
                if b and xv==3: stq(AC+8,sK if AC==Q0 else T0+9,' sc1')
                else: stq(AC+b*8,T0+13,xf)
        for r in range(16): A(f"v_mul_f32 v{VV+r}, v{VV+r}, v{RR+r}")
        for r in range(8): A(f"v_cvt_pk_bf16_f32 v{VV+r}, v{VV+2*r}, v{VV+2*r+1}")
        for r in range(4): A(f"v_permlane16_swap_b32 v{VV+r}, v{VV+4+r}")
        A(f"""s_and_b32 s{T0+10}, s{sW1K}, 1024
        s_sub_u32 s{T0+13}, s{sR0}, s{T0+10}
        s_lshl_b32 s{T0+10}, s{self.sCV}, 12
        s_add_u32 s{T0+13}, s{T0+13}, s{T0+10}
        s_add_u32 s{T0+13}, s{T0+13}, {LY.VOFF}""")
        if xv==3: stq(VV,sV,' sc1'); tp=stq(VV+4,T0+12,' sc1')
        else: stq(VV,T0+13,xf); tp=stq(VV+4,T0+13,' offset:1024'+xf)
        self.th0=tp
        def dup():
            for reg,so in ((Q0+8,sK),(Q1+8,T0+9),(VV,sV),(VV+4,T0+12)): self.th0=stq(reg,so,' sc1')
        if xv in (1,2): dup()
        self.tq0=tp
        self.stamp('qa.st')
        self.pop(self.masks(),99); self.att_addr()
    def qa(self):
        if self.L==0: return self.qa0()
        A=self.A; SL,WF,RR,TM=self.SL,self.WF,self.RR,self.TM
        LEAD=self.qlead()
        def scal(src): self.sum8(src); self.scal(src,TM+6)
        def rd(i): return self.augw(WF+(i&1)*8) if i%33==32 else self.wrd(i%33,WF+(i&1)*8)
        mh=self.masks()
        fill=self.cap(lambda: scal(RR))
        for x in rd(0): A(x)
        ht=[None]; PX=SL+7
        KT=32-LEAD-self.P('qp',6); fr=self.P('qf',2)
        for i in range(66):
            p,ks=divmod(i,33); AC=self.AL if p else self.AH; wr=WF+(i&1)*8
            xi=p*32+ks
            self.fine('qa',i)
            x=self.xs(xi) if ks<32 else v(TM,4)
            nx=rd(i+1) if i<65 else []
            if i==9:
                self.stamp('qa.9')
                A.wait_vm(self.tlate); A("s_barrier")
                self.stamp('qa.9b')
            if i==33:
                assert not fill and not mh
                self.stamp('qa.h')
                fill=self.cap(lambda: self.epi(self.AH))+[lambda: ht.__setitem__(0,self.hstore(self.AH,True))]+self.cap(lambda: scal(SL))
                fill+=self.cap(self.att_addr)+[self.halo_try]
            if i==46: self.stamp('qa.46')
            for b in range(2):
                A(self.qmm(AC,b,wr,x,ks==0))
                self.pop(nx,len(nx)//(2-b) if len(nx)<8 else 4)
                if b==0 and ks<32 and xi+LEAD<64:
                    if xi+LEAD==32:
                        self.try_check(WS,f"s{sTF}",PX,vPX,self.F(F_X2)); self.acquire()
                    self.xl(xi+LEAD)
                    if xi+LEAD==32:
                        A(f"""s_add_u32 s{T0+8}, s{sLO}, {LY.STX}
                        buffer_load_dwordx4 {v(SL,4)}, v{vSLD}, {WS}, s{T0+8} offen sc1
                        buffer_load_dwordx4 {v(SL+4,4)}, v{vSLD}, {WS}, s{T0+8} offen offset:16 sc1""")
                if i>=2 and not (i==33 and b==0): self.pop(fill,fr if p else 2)
                if p==0 and not fill: self.pop(mh)
            if i==10: self.publish(self.F(F_X2),self.txlo)
            if i==KT: self.try_issue(WS,f"s{sTF}",PX,vPX)
            if i==self.P('qh',58): self.hpublish(1,ht[0])
        self.pop(fill,99)
        self.stamp('qa.mm')
        self.epi(self.AL)
    S0,P0,KFR,AD,VFR,OB,OA,HPA,HPD,PLA=64,96,112,216,144,176,192,214,215,120
    OF=[132,136,140,164,168,172,208,212]
    def att_addr(self):
        AD=self.AD
        self.A(f"""s_sub_u32 s{T0+3}, 7168, s{sW1K}
        v_add_u32 v{AD}, {AK}, v{vL16}
        v_add_u32 v{AD+1}, s{T0+3}, v{AD}
        v_add_u32 v{AD}, s{sW1K}, v{AD}
        v_and_b32 v{AD+2}, 15, v0
        v_lshlrev_b32 v{AD+2}, 4, v{AD+2}
        v_lshrrev_b32 v{vT0}, 5, v0
        v_lshl_add_u32 v{AD+2}, v{vT0}, 9, v{AD+2}
        v_bfe_u32 v{vT0}, v0, 4, 1
        v_lshl_add_u32 v{AD+2}, v{vT0}, 14, v{AD+2}
        v_add_u32 v{AD+2}, {AV}, v{AD+2}
        v_add_u32 v{AD+3}, s{T0+3}, v{AD+2}
        v_add_u32 v{AD+2}, s{sW1K}, v{AD+2}
        v_and_b32 v{self.HPA}, 3, v0
        v_lshlrev_b32 v{self.HPA}, 2, v{self.HPA}""")
    def halo_try(self): self.try_issue(WS,f"s{sHF}",self.HPD,self.HPA)
    def halo_get(self,hi):
        A=self.A; r=[None]
        def f():
            self.try_check(WS,f"s{sHF}",self.HPD,self.HPA,2*self.L+(1 if hi else 2)); self.acquire()
            o=4096 if hi else 0
            r[0]=A(f"""s_add_u32 s{T0+5}, s{sHB}, s{sW1K}
            s_sub_u32 s{T0+5}, s{T0+5}, {524288-o}
            s_add_u32 s{T0+6}, s{T0+5}, 8192
            s_add_u32 m0, s{sW1K}, {AK+o}
            buffer_load_dwordx4 v{vL16}, {WS}, s{T0+5} offen sc1 lds
            s_add_u32 m0, s{sW1K}, {AV+o}
            buffer_load_dwordx4 v{vL16}, {WS}, s{T0+6} offen sc1 lds""")
        self.cond(f"s_cmp_eq_u32 s{sTEAM}, 0",f)
        return r[0]
    def halo_all(self):
        A=self.A; r=[None]
        def f():
            self.try_check(WS,f"s{T0+13}",self.HPD,self.HPA,2); self.acquire()
            A(f"s_add_u32 s{T0+5}, s{sHB}, s{sW1K}")
            for o,d in ((4096,AK+4096),(8192+4096,AV+4096),(0,AK),(8192,AV)):
                r[0]=A(f"s_sub_u32 s{T0+6}, s{T0+5}, {524288-o}\ns_add_u32 m0, s{sW1K}, {d}\nbuffer_load_dwordx4 v{vL16}, {WS}, s{T0+6} offen sc1 lds")
        self.cond(f"s_cmp_eq_u32 s{sTEAM}, 0",f)
        return r[0]
    def dump(self,stage):
        A=self.A; D=self.OF[0]; T=121
        A(f"""s_lshl_b32 s{T0+8}, s{sTEAM}, 1
        s_lshr_b32 s{T0+9}, s{sW}, 1
        s_add_u32 s{T0+8}, s{T0+8}, s{T0+9}
        s_and_b32 s{T0+9}, s{sW}, 1""")
        if stage==0:
            A(f"""s_mul_i32 s{T0+8}, s{T0+8}, 98304
            s_lshl_b32 s{T0+10}, s{sSLOT}, 5
            s_add_u32 s{T0+8}, s{T0+8}, s{T0+10}
            s_lshl_b32 s{T0+10}, s{T0+9}, 11
            s_add_u32 s{T0+10}, s{T0+10}, s{T0+8}
            s_mul_i32 s{T0+9}, s{T0+9}, 49152
            s_add_u32 s{T0+9}, s{T0+9}, s{T0+8}
            v_lshrrev_b32 v{T}, 1, v0
            v_xor_b32 v{T+1}, 4, v{T}
            v_mul_u32_u24 v{T}, 3072, v{T}
            v_mul_u32_u24 v{T+1}, 3072, v{T+1}
            v_and_b32 v{T+2}, 1, v0
            v_lshl_add_u32 v{T}, v{T+2}, 4, v{T}
            v_lshl_add_u32 v{T+1}, v{T+2}, 4, v{T+1}
            buffer_load_dwordx4 {v(D,4)}, v{T}, {srd(SWQ)}, s{T0+10} offen
            s_mov_b64 exec, 0xffffffff
            buffer_load_dwordx4 {v(D+4,4)}, v{T+1}, {srd(SWQ)}, s{T0+9} offen offset:1024
            s_mov_b64 exec, -1""")
        else:
            A(f"""s_mul_i32 s{T0+8}, s{T0+8}, 3072
            s_mul_i32 s{T0+10}, s{sSLOT}, 49152
            s_add_u32 s{T0+8}, s{T0+8}, s{T0+10}
            s_add_u32 s{T0+8}, s{T0+8}, {LY.WQI}
            s_lshl_b32 s{T0+10}, s{T0+9}, 11
            s_add_u32 s{T0+10}, s{T0+10}, s{T0+8}
            s_lshl_b32 s{T0+9}, s{T0+9}, 9
            s_add_u32 s{T0+9}, s{T0+9}, s{T0+8}
            buffer_store_dwordx4 {v(D,4)}, v{vL16}, {WS}, s{T0+10} offen sc1
            s_mov_b64 exec, 0xffffffff""")
            self.tdump=A(f"buffer_store_dwordx4 {v(D+4,4)}, v{vL16}, {WS}, s{T0+9} offen offset:1024 sc1")
            A("s_mov_b64 exec, -1")
    def wo_fetch(self,B,rec,regs_):
        B(f"s_lshl_b32 s{T0+8}, s{sW}, 13\ns_add_u32 s{T0+8}, s{T0+8}, s{rec}\ns_add_u32 s{T0+8}, s{T0+8}, {LY.HOFF}\ns_add_u32 s{T0+9}, s{T0+8}, 4096")
        for k in range(8): B(f"buffer_load_dwordx4 {v(regs_[k],4)}, v{vL16}, {WS}, s{T0+8+k//4} offen offset:{(k%4)*1024} sc1")
    def att(self):
        A=self.A; L=self.L
        S0,P0,KFR,AD,VFR,OB,OA,MD,MT=self.S0,self.P0,self.KFR,self.AD,self.VFR,self.OB,self.OA,self.MD,self.MT
        QB,QA=self.AH,self.AL
        A(f"""s_cmp_eq_u32 s{sTEAM}, 0
        s_cselect_b32 s{T0+3}, 0, s{sONE}
        s_lshl_b32 s{T0+2}, s{sW}, 11
        s_add_u32 s{T0+2}, s{T0+2}, {AO}
        v_add_u32 v{S0+8}, s{T0+2}, v{vL16}
        s_mov_b32 s{sSLOW}, 0""")
        for r in range(4): A(f"v_mov_b32 v{S0+r}, s{sONE}\nv_mov_b32 v{S0+4+r}, s{T0+3}")
        A("s_barrier")
        if L: hg=self.halo_get(True)
        if L: A(f"""ds_write_b128 v{AD+1}, {v(QB+4,4)} offset:8192
        ds_write_b128 v{AD+1}, {v(QB+16,4)} offset:{8192+16384}""")
        A(f"""ds_write_b128 v{S0+8}, {v(S0,4)} offset:8192
        ds_write_b128 v{S0+8}, {v(S0,4)} offset:9216""")
        if L: A(f"""ds_write_b128 v{AD}, {v(QA+4,4)} offset:8192
        ds_write_b128 v{AD}, {v(QA+16,4)} offset:{8192+16384}""")
        A(f"""ds_write_b128 v{S0+8}, {v(S0+4,4)}
        ds_write_b128 v{S0+8}, {v(S0+4,4)} offset:1024""")
        def z():
            A(f"v_subrev_u32 v{S0+8}, {AO-AK}, v{S0+8}")
            for j in range(2):
                A(f"ds_write_b128 v{S0+8}, {v(S0+4,4)} offset:{j*1024}\nds_write_b128 v{S0+8}, {v(S0+4,4)} offset:{16384+j*1024}")
        self.cond(f"s_cmp_lg_u32 s{sTEAM}, 0",z)
        if L: hl=self.hstore(self.AL,False)
        else:
            HPA,HPD=self.HPA,self.HPD
            A(f"""v_and_b32 v{S0+9}, 15, v0
            v_lshlrev_b32 v{S0+9}, 2, v{S0+9}
            v_lshrrev_b32 v{HPA}, 4, v0
            v_min_u32 v{HPA}, 2, v{HPA}
            v_mul_u32_u24 v{HPA}, {8-self.P('mx',3)}, v{HPA}
            v_add_u32 v{HPA}, s{sCW}, v{HPA}
            v_and_b32 v{HPA}, 7, v{HPA}
            v_lshl_add_u32 v{HPA}, v{HPA}, 6, v{S0+9}
            s_lshl_b32 s{T0+9}, s{sSLOT}, 4
            s_sub_u32 s{T0+13}, s{sHF}, s{T0+9}
            s_lshl_b32 s{T0+9}, s{sE}, 6
            v_add_u32 v{S0+9}, s{T0+9}, v{S0+9}
            v_lshlrev_b32 v{S0+10}, 2, v0
            v_cmp_gt_u32 vcc, 32, v0
            v_cndmask_b32 v{S0+9}, v{S0+10}, v{S0+9}, vcc
            s_lshl_b32 s{T0+4}, s{sSLOT}, 10
            s_add_u32 s{T0+5}, s{T0+4}, s{sLO}
            s_add_u32 s{T0+6}, s{T0+5}, {4*LY.RS}
            s_add_u32 s{T0+9}, s{T0+5}, {LY.VOFF}
            s_add_u32 s{T0+10}, s{T0+6}, {LY.VOFF}
            s_add_u32 s{T0+11}, s{T0+5}, {LY.HOFF}""")
            if self.P('xv',2)==3: A(f"""s_add_u32 s{T0+5}, s{sHB}, s{sW1K}
            s_add_u32 s{T0+6}, s{T0+5}, 4096
            s_add_u32 s{T0+9}, s{T0+5}, 8192
            s_add_u32 s{T0+10}, s{T0+5}, {8192+4096}""")
            A(f"""s_add_u32 s{T0+12}, s{T0+4}, s{sHI}
            s_add_u32 s{T0+12}, s{T0+12}, {LY.HOFF}
            s_mul_i32 s{T0+8}, s{sTEAM}, {8*LY.RS}
            s_lshr_b32 s{T0+4}, s{T0+4}, 1
            s_add_u32 s{T0+8}, s{T0+8}, s{T0+4}
            s_add_u32 s{T0+8}, s{T0+8}, {LY.REC+LY.CSOFF}""")
            self.publish(self.F(F_X1),self.tq0)
            self.hpublish(2,self.th0)
            self.stamp('att.p')
            self.try_issue(WS,f"s{sTF}",HPD,HPA)
            self.try_check(WS,f"s{sTF}",HPD,HPA,self.F(F_X1)); self.acquire()
            self.stamp('att.c')
            A(f"buffer_load_dwordx4 {v(QB,4)}, v{vL16}, {WS}, s{T0+12} offen sc1")
            for so,o in ((T0+6,AK+8192+4096),(T0+10,AV+8192+4096),(T0+5,AK+8192),(T0+9,AV+8192)):
                tk=A(f"s_add_u32 m0, s{sW1K}, {o}\nbuffer_load_dwordx4 v{vL16}, {WS}, s{so} offen sc1 lds")
            A(f"""buffer_load_dwordx4 {v(QA,4)}, v{vL16}, {WS}, s{T0+11} offen sc1
            buffer_load_dword v{CSQ}, v{S0+10}, {WS}, s{T0+8} offen sc1
            buffer_load_dword v{CSV}, v{S0+9}, {WS}, s{T0+8} offen offset:256 sc1""")
            self.try_issue(WS,f"s{T0+13}",HPD,HPA)
            if self.P('ag0',-1)<0: hg=self.halo_all()
            self.stamp('att.h')
            A.wait_vm(tk)
            self.stamp('att.w')
        A(f"""s_lshl_b32 s{T0+4}, s{sSLOT}, 10
        s_add_u32 s{T0+4}, s{T0+4}, {LY.HOFF}
        s_add_u32 s{T0+2}, s{T0+4}, s{sHI}
        s_add_u32 s{T0+3}, s{T0+4}, s{sLO}""")
        sOBa,sOAa=T0+2,T0+3
        A("s_waitcnt lgkmcnt(0)\ns_barrier")
        self.stamp('att.kv')
        order=[('b',d) for d in range(9)]+[('a',d) for d in range(9)]
        N=len(order); seen=set(); HW=(4,13) if L else (4,)
        def rk(n):
            q,d=order[n]; A(f"ds_read_b128 {v(KFR+(n&1)*4,4)}, v{AD+(q=='b')} offset:{(8-d)*1024}")
        def rv(n,f):
            q,d=order[n]
            A(f"ds_read_b128 {v(VFR+(n&1)*8+f*4,4)}, v{AD+2+(q=='b')} offset:{(8-d)*1024+f*256}")
        def sm(n):
            q,d=order[n]; c=v(MD,16) if d==0 else (v(MT,16) if d==8 else '0')
            A(f"{MF} {v(S0+(n&1)*16,16)}, {v(KFR+(n&1)*4,4)}, {v(QB if q=='b' else QA,4)}, {c}")
        def pv(n,f):
            q,d=order[n]; O=OB if q=='b' else OA
            c=v(O,16) if (q in seen) else '0'; seen.add(q)
            A(f"{MF} {v(O,16)}, {v(VFR+(n&1)*8+f*4,4)}, {v(P0+(n&1)*8+f*4,4)}, {c}")
        def fin(O,so):
            A(f"v_rcp_f32 v{O+9}, v{O+8}")
            for r in range(8): A(f"v_mul_f32 v{O+r}, v{O+r}, v{O+9}")
            for r in range(4): A(f"v_cvt_pk_bf16_f32 v{O+12+r}, v{O+2*r}, v{O+2*r+1}")
            tg=A(f"buffer_store_dwordx4 {v(O+12,4)}, v{vL16}, {WS}, s{so} offen")
            A(f"v_mov_b32 v{O+10}, 0")
            for r in range(4): A(f"v_dot2c_f32_bf16 v{O+10}, s{sONE}, v{O+12+r}")
            A(f"v_fma_f32 v{O+10}, v{O+10}, 0, v{O+8}\nv_subrev_u32 v{O+10}, 0x30800000, v{O+10}\nv_cmp_le_u32 vcc, 0x28000000, v{O+10}")
            A(f"s_cmp_lg_u64 vcc, 0\ns_cselect_b32 s{sSLOW}, 1, s{sSLOW}")
            if self.P('fb',0): A(f"s_mov_b32 s{sSLOW}, 1")
            return tg
        bs=self.S('as','3-17*3'); os_=self.S('ao','0-17*2'); tb=None
        def bgn(n,k):
            c=bs.get(n,0); self.bg((c+2-k)//3)
            c=os_.get(n,0); self.wout((c+2-k)//3)
        rk(0); rk(1); rv(0,0); rv(0,1); sm(0)
        for n in range(N):
            S=S0+(n&1)*16; P=P0+(n&1)*8
            self.fine('att',n,1)
            ex=lambda a_,b_: [A(f"v_exp_f32 v{S+r}, v{S+r}") for r in range(a_,b_)]
            cv=lambda a_,b_: [A(f"v_cvt_pk_bf16_f32 v{P+r}, v{S+2*r}, v{S+2*r+1}") for r in range(a_,b_)]
            if n in HW:
                A.wait_vm(hg); A("s_barrier"); rk(n+1)
                self.stamp('att.hw')
            elif n+1<N: sm(n+1)
            if n+2<N and n+1 not in HW: rk(n+2)
            if n+1<N: rv(n+1,0)
            ex(0,4)
            if n>0: pv(n-1,1)
            if n+1<N: rv(n+1,1)
            ex(4,8)
            if n in HW: sm(n+1)
            bgn(n,0)
            cv(0,4); ex(8,12); pv(n,0)
            bgn(n,1)
            ex(12,16)
            bgn(n,2)
            cv(4,8)
            if L:
                if n==self.P('ap',5): self.hpublish(2,hl)
                if n==self.P('ah',8): self.halo_try()
                if n==self.P('ag',10): hg=self.halo_get(False)
            else:
                if n==self.P('ag0',-1): hg=self.halo_all()
                if n==self.P('ad0',5): self.dump(0)
                if n==self.P('ad0',5)+3: self.dump(1)
            if n==9: tb=fin(OB,sOBa)
            if n==self.P('aq',13): self.cond(f"s_cmp_lg_u32 s{sSLOW}, 0",lambda: self.publish(self.F(F_ATB),tb))
            if n==self.P('aw',15): self.try_issue(WS,f"s{sTF}",self.PLA,vPA)
        def wf():
            self.try_check(WS,f"s{sTF}",self.PLA,vPA,self.F(F_ATB)); self.acquire()
            self.wo_fetch(A,sRHI,self.OF)
        A(f"s_mov_b32 s{T0+7}, s{sSLOW}")
        self.cond(f"s_cmp_lg_u32 s{sSLOW}, 0",wf)
        pv(N-1,1)
        self.stamp('att.mm')
        self.ta=fin(OA,sOAa)
        A(f"s_cmp_lg_u32 s{sSLOW}, 0\ns_cbranch_scc1 L_fb{L}")
        A.label(f'L_fbr{L}')
        self.att_exact()
    def att_exact(self):
        S,P,KFR,AD,VFR,O,MD,MT=self.S0,self.P0,self.KFR,self.AD,self.VFR,self.OA,self.MD,self.MT; L=self.L
        B=Asm(); B._n=90000+1000*L; sD,sM=T0+5,T0+6; M=S+16; vK=S+17; vV=S+18; T=S+19
        B.label(f'L_fb{L}'); B("s_nop 7\ns_nop 7")
        def scores(Q):
            l0=B.newlabel('L_f0'); l8=B.newlabel('L_f8'); le=B.newlabel('L_fe')
            B(f"s_waitcnt lgkmcnt(0)\ns_cmp_eq_u32 s{sD}, 0\ns_cbranch_scc1 {l0}\ns_cmp_eq_u32 s{sD}, 8\ns_cbranch_scc1 {l8}")
            B(f"{MF} {v(S,16)}, {v(KFR,4)}, {v(Q,4)}, 0\ns_branch {le}")
            B.label(l0); B(f"{MF} {v(S,16)}, {v(KFR,4)}, {v(Q,4)}, {v(MD,16)}\ns_branch {le}")
            B.label(l8); B(f"{MF} {v(S,16)}, {v(KFR,4)}, {v(Q,4)}, {v(MT,16)}")
            B.label(le); B("s_nop 7\ns_nop 7")
        for q,Q,so in ((1,self.AH,T0+2),(0,self.AL,T0+3)):
            B(f"s_sub_u32 s{sM}, 7, s{sW}" if q else f"s_mov_b32 s{sM}, s{sW}")
            B(f"s_cmp_eq_u32 s{sTEAM}, 0\ns_cselect_b32 s{sM}, s{sM}, 8")
            B(f"s_mov_b32 s{sD}, 0\nv_mov_b32 v{M}, 0xff800000\nv_add_u32 v{vK}, 8192, v{AD+q}")
            l=B.newlabel('L_fa'); B.flush_hz(); B.label(l)
            B(f"ds_read_b128 {v(KFR,4)}, v{vK}")
            scores(Q)
            for r in range(8): B(f"v_max3_f32 v{M}, v{S+2*r}, v{S+2*r+1}, v{M}")
            B(f"v_subrev_u32 v{vK}, 1024, v{vK}\ns_add_u32 s{sD}, s{sD}, 1\ns_cmp_le_u32 s{sD}, s{sM}")
            B.flush_hz(); B(f"s_cbranch_scc1 {l}")
            B(f"v_mov_b32 v{T}, v{M}\nv_permlane32_swap_b32 v{M}, v{T}\nv_max_f32 v{M}, v{M}, v{T}")
            B(f"s_mov_b32 s{sD}, 0\nv_add_u32 v{vK}, 8192, v{AD+q}\nv_add_u32 v{vV}, 8192, v{AD+2+q}")
            for r in range(16): B(f"v_mov_b32 v{O+r}, 0")
            l=B.newlabel('L_fc'); B.flush_hz(); B.label(l)
            B(f"ds_read_b128 {v(KFR,4)}, v{vK}\nds_read_b128 {v(VFR,4)}, v{vV}\nds_read_b128 {v(VFR+4,4)}, v{vV} offset:256")
            scores(Q)
            for r in range(16): B(f"v_sub_f32 v{S+r}, v{S+r}, v{M}")
            for r in range(16): B(f"v_exp_f32 v{S+r}, v{S+r}")
            for r in range(8): B(f"v_cvt_pk_bf16_f32 v{P+r}, v{S+2*r}, v{S+2*r+1}")
            for f in range(2): B(f"{MF} {v(O,16)}, {v(VFR+f*4,4)}, {v(P+f*4,4)}, {v(O,16)}")
            B(f"v_subrev_u32 v{vK}, 1024, v{vK}\nv_subrev_u32 v{vV}, 1024, v{vV}\ns_add_u32 s{sD}, s{sD}, 1\ns_cmp_le_u32 s{sD}, s{sM}")
            B.flush_hz(); B(f"s_cbranch_scc1 {l}")
            B(f"v_rcp_f32 v{O+9}, v{O+8}")
            for r in range(8): B(f"v_mul_f32 v{O+r}, v{O+r}, v{O+9}")
            for r in range(4): B(f"v_cvt_pk_bf16_f32 v{O+12+r}, v{O+2*r}, v{O+2*r+1}")
            B("s_waitcnt vmcnt(0)")
            B(f"buffer_store_dwordx4 {v(O+12,4)}, v{vL16}, {WS}, s{so} offen\ns_waitcnt vmcnt(0)")
        p1,p2,p3,p4=[B.newlabel('L_fp') for _ in range(4)]
        B(f"""v_mov_b32 v{vP1}, {self.F(F_ATA)}
        buffer_wbl2 sc1
        s_waitcnt vmcnt(0)
        s_mov_b64 exec, 1
        s_cmp_lg_u32 s{sMODE}, 0
        s_cbranch_scc1 {p1}
        buffer_store_dword v{vP1}, off, {WS}, s{sMYF}
        s_branch {p2}""")
        B.label(p1); B(f"buffer_store_dword v{vP1}, off, {WS}, s{sMYF} sc1")
        B.label(p2); B(f"s_mov_b64 exec, -1\ns_cmp_eq_u32 s{T0+7}, 0\ns_cbranch_scc1 L_fbr{L}")
        B.label(p3)
        B(f"""buffer_load_dword v{self.PLA}, v{vPA}, {WS}, s{sTF} offen sc1
        s_waitcnt vmcnt(0)
        v_cmp_gt_u32 vcc, {self.F(F_ATB)}, v{self.PLA}
        s_nop 1
        s_cbranch_vccz {p4}
        s_sub_u32 s{sTO}, s{sTO}, 1
        s_cbranch_scc0 {p3}
        s_endpgm""")
        B.label(p4); B("buffer_inv sc1\ns_waitcnt vmcnt(0)")
        self.wo_fetch(B,sRHI,self.OF)
        B(f"s_waitcnt vmcnt(0)\ns_branch L_fbr{L}")
        self.tail.append(B.text().rstrip("\n"))
    def red_write(self,acc):
        for cb in range(2):
            for rq in range(4): self.A(f"ds_write_b128 v{vRW1 if rq&1 else vRW0}, {v(acc+cb*16+rq*4,4)} offset:{cb*4096+rq*1024}")
    def red_read(self,R):
        for p in range(4):
            for e in range(2): self.A(f"ds_read_b128 {v(R+(p*2+e)*4,4)}, v{vRRD} offset:{p*8192+e*512}")
    def red_fin(self,rnd,R,scale):
        rs=RES+rnd*4; L=[]
        for n in range(8): L.append(f"v_add_f32 v{R+n}, v{R+n}, v{R+8+n}")
        for n in range(8): L.append(f"v_add_f32 v{R+16+n}, v{R+16+n}, v{R+24+n}")
        for n in range(4): L.append(f"v_lshlrev_b32 v{R+8+2*n}, 16, v{rs+n}"); L.append(f"v_and_b32 v{R+9+2*n}, 0xffff0000, v{rs+n}")
        for n in range(8): L.append(f"v_add_f32 v{R+n}, v{R+n}, v{R+16+n}")
        for n in range(8):
            L.append(f"v_fma_f32 v{R+n}, v{R+n}, v{scale}, v{R+8+n}" if scale is not None else f"v_add_f32 v{R+n}, v{R+n}, v{R+8+n}")
        for n in range(4): L.append(f"v_cvt_pk_bf16_f32 v{rs+n}, v{R+2*n}, v{R+2*n+1}")
        return L
    GA,GW,GAD,GZ,GM,GT,GX=64,128,160,164,180,184,188
    def wo(self):
        A=self.A; A1,A2,F2=64,96,[144+4*k for k in range(4)]+[176+4*k for k in range(3)]+[220]
        PL=128; L=self.L
        if L==0: A.wait_vm(self.tdump)
        A("s_barrier")
        if L==0:
            self.cond(f"s_cmp_lg_u32 s{sW}, 0",self.mark(0xe0))
            assert not any(srd(SWO) in g[-1] for g in self.bgq)
            self.wout(32,32)
            self.conv_setup(96)
            for k in range(8):
                for x in self.conv_unit(v if k<4 else a,(WOV if k<4 else 224-32)+8*k,96): A(x)
        self.stamp('wo.cv')
        def mm(acc0,F):
            for k in range(8):
                for cb in range(2):
                    acc=v(acc0+cb*16,16)
                    A(f"{MF} {acc}, {woreg(k*2+cb)}, {v(F[k],4)}, {acc if k else '0'}")
        mm(A1,self.OF)
        self.publish(self.F(F_ATA),self.ta)
        self.bg(self.P('wa',0))
        self.red_write(A1); A("s_waitcnt lgkmcnt(0)\ns_barrier")
        self.red_read(A1)
        self.try_issue(WS,f"s{sTF}",PL,vPA)
        for x in self.red_fin(0,A1,None): A(x)
        self.stamp('wo.1')
        self.try_check(WS,f"s{sTF}",PL,vPA,self.F(F_ATA)); self.acquire()
        self.wo_fetch(A,sRLO,F2)
        t1=self.xstore(RES,sRHI,LY.ST1,A1)
        self.gu_addr()
        if L==0: self.gu_colsum()
        self.stamp('wo.f2')
        mm(A2,F2)
        self.publish(self.F(F_WO1),t1)
        A("s_barrier")
        self.red_write(A2); A("s_waitcnt lgkmcnt(0)\ns_barrier")
        self.red_read(A2)
        self.try_issue(WS,f"s{sTF}",PL,vPX)
        for x in self.red_fin(1,A2,None): A(x)
        self.tx2=self.xstore(RES+4,sRLO,LY.ST1,A2)
        self.stamp('wo.2')
        self.try_check(WS,f"s{sTF}",PL,vPX,self.F(F_WO1)); self.acquire()
    def gu_addr(self):
        A=self.A; g=self.GAD
        A(f"""v_lshrrev_b32 v{vT0}, 5, v0
        v_lshlrev_b32 v{g+3}, 10, v{vT0}
        v_bfe_u32 v{vT0}, v0, 4, 1
        v_lshl_add_u32 v{g+3}, v{vT0}, 11, v{g+3}
        v_bfe_u32 v{vT1}, v0, 2, 2
        v_lshl_add_u32 v{g+3}, v{vT1}, 7, v{g+3}
        v_xor_b32 v{vT0}, v{vT0}, v{vT1}
        v_lshl_add_u32 v{g+3}, v{vT0}, 5, v{g+3}
        v_and_b32 v{vT0}, 3, v0
        v_lshl_add_u32 v{g}, v{vT0}, 3, v{g+3}""")
        for j in (1,2,3): A(f"v_xor_b32 v{g+j}, {j*32}, v{g}")
    def gs(self,i):
        V=lambda k: v(self.GX+4*k,4); X=lambda k: a(128+4*k,4)
        if self.L or i>=64: return V(i%16)
        if i<24: return X(i)
        if i<32: return V(i-24)
        if i<40: return V(i-24)
        if i<48: return X(i-24)
        return V(i-48)
    def gx(self,i):
        A=self.A
        if i==0: A(f"s_mov_b32 s{sXN}, s{sHI}")
        elif i==32: A(f"s_mov_b32 s{sXN}, s{sLO}")
        elif i==64: A(f"s_mul_i32 s{sXN}, s{sW}, {28*1024}\ns_add_u32 s{sXN}, s{sXN}, s{sRHI}\ns_add_u32 s{sXN}, s{sXN}, {LY.HOFF}")
        elif i%4==0: A(f"s_add_u32 s{sXN}, s{sXN}, 4096")
        A(f"buffer_load_dwordx4 {self.gs(i)}, v{vL16}, {WS}, s{sXN} offen offset:{(i%4)*1024} sc1")
    def gstat(self,rec):
        self.A(f"""s_add_u32 s{T0+2}, s{rec}, {LY.ST1}
        buffer_load_dwordx4 {v(self.GZ,4)}, v{vSLD}, {WS}, s{T0+2} offen sc1
        buffer_load_dwordx4 {v(self.GZ+4,4)}, v{vSLD}, {WS}, s{T0+2} offen offset:16 sc1""")
    def grd(self,ks,js):
        L=[]
        for b,j in enumerate(js):
            r=self.GW+(ks&1)*16+b*4; o=(ks%16)*4096
            L+= [f"ds_read_b64_tr_b16 {v(r,2)}, v{self.GAD+j} offset:{o}",f"ds_read_b64_tr_b16 {v(r+2,2)}, v{self.GAD+j} offset:{o+512}"]
        return L
    def gu_plan(self):
        L=self.L; X={}; W={}; C={}
        def put(D,t,x): D.setdefault(t,[]).append(x)
        if L:
            LEAD=self.P('gl',12); self.gpre=LEAD; self.hpre=LEAD
            for i in range(LEAD,64+LEAD):
                j=i-LEAD; put(X,j+j//32,i)
            self.gchk=(32-LEAD,33+32-LEAD)
            for g in self.q_wgu(7): put(W,-1,(7,g))
        else:
            self.gpre=32; self.hpre=8; c=self.P('gc',8); self.gchk=(c,33+24)
            for i in range(32,64+8):
                j=i-32
                put(X,c+j if j<8 else (16+j if j<16 else (33+j-16 if j<32 else 33+24+j-32)),i)
            wd=self.bgq; self.bgq=[]; assert self.wn==32
            t=self.P('wd0',0); done=56-len(wd); r=self.P('wdr',2); n=0; tl={}
            for k,g in enumerate(wd):
                u=(done+k)//2
                lo=0 if u<16 else (2*(u-16)+2 if u<24 else 33+8+2*(u-24)+2)
                if n==r: t+=1; n=0
                if t%33==32: t+=1
                if t<lo: t=lo; n=0
                put(W,t,(None,g)); n+=1; tl[u]=t
            t=self.P('cv0',20); lag=self.P('cvl',16)
            for u in range(28):
                t=max(t,tl.get(u,0)+lag)
                if t%33==32: t+=1
                put(C,t,u); t+=1
        return X,W,C
    def conv(self,u):
        for x in self.conv_unit(a,8*u,self.GT+1): self.A(x)
    def gu_pass(self,js,p,plan,jn=None):
        nb=len(js)
        A=self.A; GA,GW,GAD,GZ,GM,GT=self.GA,self.GW,self.GAD,self.GZ,self.GM,self.GT; L=self.L
        X,W,C=plan
        def sc():
            self.sum8(GZ)
            self.A(f"v_mov_b32 v{GZ+1}, v{GZ}\nv_permlane32_swap_b32 v{GZ}, v{GZ+1}\nv_mul_f32 v{GZ}, 0x3b000000, v{GZ}\nv_cvt_pk_bf16_f32 v{GM}, -v{GZ}, -v{GZ}")
            for r in (1,2,3): self.A(f"v_mov_b32 v{GM+r}, v{GM}")
        fill=self.cap(sc)
        aug=[f"v_mov_b32 v{GZ+r}, 0" for r in range(nb*4) if r%4]
        fs=self.P('gf',3) if L else self.P('gf0',14)
        poll=(vPA,self.F(F_GU1)) if p else (vPX,self.F(F_WO2))
        for ks in range(33):
            t=33*p+ks
            self.fine('gu',ks)
            x=self.gs(32*p+ks) if ks<32 else v(GM,4)
            if ks==15: nx=[f"v_add_u32 v{GAD+j}, 0x10000, v{GAD+j}" for j in range(4)]+self.grd(16,js)
            elif ks==31: nx=[] if p else [f"v_subrev_u32 v{GAD+j}, 0x10000, v{GAD+j}" for j in range(4)]+self.grd(0,jn)
            elif ks<31: nx=self.grd(ks+1,js)
            else: nx=[]
            if p==0 and ks%4==3:
                assert not any(j is not None and j<=(ks+1)//4 for tt in W if tt>=t for j,g in W[tt])
            if p==0 and ks%4==3 and (ks+1)//4 in self.gtag:
                A.wait_vm(self.gtag[(ks+1)//4]); A("s_barrier")
            if p==0 and L==0 and ks==self.P('gb',8): A("s_barrier"); self.gbar=True; self.gu_csx(0)
            if p==0 and L==0 and ks==self.P('gb',8)+8: self.gu_csx(1)
            if ks==32:
                for b,j in enumerate(js): A(f"v_mov_b32 v{GZ+4*b}, v{CSG+j}")
            per=-(-len(nx)//nb)
            for b in range(nb):
                acc=v(GA+b*16,16); w=v(GW+(ks&1)*16+b*4,4) if ks<32 else v(GZ+4*b,4)
                A(f"{MF} {acc}, {w}, {x}, {acc if ks else '0'}")
                self.pop(nx,per)
                if b==0:
                    if t==self.gchk[p]:
                        self.try_check(WS,f"s{sTF}",GT,poll[0],poll[1]); self.acquire()
                    for i in X.get(t,[]): self.gx(i)
                if b==1 and fs<=ks: self.pop(fill,2)
                if b==1 and ks>=24: self.pop(aug,2)
                if b==2:
                    for j,g in W.get(t,[]):
                        for y in g: r=A(y)
                        if j is not None: self.gtag[j]=r
                    for u in C.get(t,[]):
                        assert self.gbar
                        self.conv(u)
            if p and ks==self.P('gp',8): self.publish(self.F(F_GU1),self.th)
            if t==self.gchk[p]-self.P('gt',4): self.try_issue(WS,f"s{sTF}",GT,poll[0])
        assert not fill and not aug
        self.stamp('gu.mm')
        if p==0: self.gstat(sLO)
        A(f"s_add_u32 s{T0+3}, s{sHS}, s{sLO if p else sHI}")
        for b in range(nb):
            g=GA+b*16; d=GW+16+b*4
            for r in range(8): A(f"v_max_f32 v{g+r}, 0, v{g+r}")
            for r in range(8): A(f"v_mul_f32 v{g+r}, v{g+r}, v{g+8+r}")
            for r in range(4): A(f"v_cvt_pk_bf16_f32 v{d+r}, v{g+2*r}, v{g+2*r+1}")
            self.th=A(f"buffer_store_dwordx4 {v(d,4)}, v{vL16}, {WS}, s{T0+3} offen offset:{js[b]*1024}")
        self.stamp('gu.st')
    def gu_colsum(self):
        A=self.A; T=192; c=208; sel=216
        self.selector(sel)
        A(f"s_lshl_b32 s{T0+2}, s{sW}, 5\nv_xor_b32 v{vT0}, s{T0+2}, v{self.GAD}")
        def rdk(k): return f"ds_read_b64_tr_b16 {v(T+(k%4)*4,2)}, v{vT0} offset:{(k%16)*4096}\nds_read_b64_tr_b16 {v(T+(k%4)*4+2,2)}, v{vT0} offset:{(k%16)*4096+512}"
        for k in range(3): A(rdk(k))
        for k in range(32):
            if k+3==16: A(f"v_add_u32 v{vT0}, 0x10000, v{vT0}")
            A(f"{MS} {v(c,4)}, {v(sel,4)}, {v(T+(k%4)*4,4)}, {v(c,4) if k else '0'}")
            if k+3<32: A(rdk(k+3))
        A(f"v_mov_b32 v{CSG+3}, v{c}")
        self.cs_pack(CSG+3,c+1)
    def gu_csx(self,stage):
        A=self.A
        A(f"v_lshlrev_b32 v{vT0}, 2, v0\nv_add_u32 v{vT0}, {SCR+4096}, v{vT0}")
        if stage==0: A(f"s_lshl_b32 s{T0+2}, s{sW}, 13\nv_add_u32 v{vT0}, s{T0+2}, v{vT0}\nds_write_b32 v{vT0}, v{CSG+3}")
        else:
            A("s_waitcnt lgkmcnt(0)\ns_barrier")
            for j in range(4): A(f"ds_read_b32 v{CSG+j}, v{vT0} offset:{j*8192}")
    def gu(self):
        A=self.A; L=self.L
        plan=self.gu_plan(); X,W,C=plan
        self.gx(0); self.gstat(sHI)
        for i in range(1,self.gpre): self.gx(i)
        tags={}
        for j,g in W.get(-1,[]):
            for y in g: tags[j]=A(y)
        A(f"s_lshr_b32 s{sHS}, s{sSLOT}, 1\ns_mul_i32 s{sHS}, s{sHS}, 7168\ns_add_u32 s{sHS}, s{sHS}, {LY.HOFF}\ns_mul_i32 s{T0+2}, s{sE}, 3072\ns_add_u32 s{sHS}, s{sHS}, s{T0+2}")
        if L==0: self.conv_setup(self.GT+1)
        self.publish(self.F(F_WO2),self.tx2)
        self.stamp('gu.in')
        A(f"s_cmp_lg_u32 s{sE}, 0\ns_cbranch_scc1 L_ge{L}")
        st=A.snap(); n=len(self.stn); Q=[]
        for e in range(2):
            if e: A.restore(st); A.label(f'L_ge{L}'); del self.stn[n:]
            self.gtag=dict(tags); self.gbar=False
            J=([0,1,2,3],[0,1,2]) if e==0 else ([1,2,3],[0,1,2,3])
            for x in self.grd(0,J[0]): A(x)
            self.gu_pass(J[0],0,plan,J[1]); self.gu_pass(J[1],1,plan)
            A("s_waitcnt lgkmcnt(0)"); A.flush_hz()
            if e==0: A(f"s_branch L_dn{L}")
            Q.append(A.snap()[0])
        A.label(f'L_dn{L}')
        A.merge(Q[1],Q[0])
        self.cleft=[u for t in sorted(C) if t>=66 for u in C[t]]
        assert not any(t>=66 for t in W)
    def down(self):
        A=self.A; A1,A2,ST,R2=64,152,96,188-4; L=self.L
        R2=104
        SLOT=[self.GX+4*i for i in range(16)]+[112+4*i for i in range(10)]
        PL=106; tpend=self.th
        self.stamp('dn.in')
        def stats(rec):
            A(f"""s_add_u32 s{T0+2}, s{rec}, {LY.ST1}
            buffer_load_dwordx4 {v(ST,4)}, v{vDSL}, {WS}, s{T0+2} offen sc1
            buffer_load_dwordx4 {v(ST+4,4)}, v{vDSL}, {WS}, s{T0+2} offen offset:16 sc1""")
        def r2(dst):
            self.sum8(ST)
            self.A(f"""v_and_b32 v{ST+4}, 8, v0
            v_mov_b32_dpp v{ST+1}, v{ST} row_ror:8 row_mask:0xf bank_mask:0xf""")
            self.A(f"v_cmp_ne_u32 vcc, 0, v{ST+4}\nv_cndmask_b32 v{ST+2}, v{ST}, v{ST+1}, vcc\nv_cndmask_b32 v{ST+3}, v{ST+1}, v{ST}, vcc")
            self.ln_scalars(ST+2,ST+3,None,dst,ST+4)
            self.A(f"v_mul_f32 v{dst}, v{dst}, v{dst}")
        def grp(Q):
            out=[];i=0
            while i<len(Q):
                if Q[i].startswith('v_cmp'): out.append(Q[i:i+3]); i+=3
                else: out.append(Q[i]); i+=1
            return out
        def ld():
            i=ln[0]; k=i%28; ln[0]+=1
            if i==28: A(f"s_mul_i32 s{sXN}, s{sW}, {28*1024}\ns_add_u32 s{sXN}, s{sXN}, s{sRLO}\ns_add_u32 s{sXN}, s{sXN}, {LY.HOFF}")
            elif k%4==0: A(f"s_add_u32 s{sXN}, s{sXN}, 4096")
            A(f"buffer_load_dwordx4 {v(SLOT[i%26],4)}, v{vL16}, {WS}, s{sXN} offen offset:{(k%4)*1024} sc1")
        ln=[self.hpre]
        for _ in range(self.P('dl',12)-self.hpre): ld()
        stats(sRHI)
        def mm(rnd,fill,hook):
            for k in range(28):
                i=rnd*28+k
                self.fine('dn',k)
                for cb in range(2):
                    acc=v((A2 if rnd else A1)+cb*16,16)
                    A(f"{MF} {acc}, {a((k*2+cb)*4,4)}, {v(SLOT[i%26],4)}, {acc if k else '0'}")
                    if k>=2: self.pop(fill,2)
                    if cb==0:
                        lim=28 if rnd==0 else 56
                        for _ in range(2 if k<self.P('dx',6) else 1):
                            if ln[0]<lim and ln[0]<i+26: ld()
                hook(k)
            assert not fill
        cl=list(self.cleft)
        def h0(k):
            if k==self.P('dp',14): self.publish(self.F(F_GU2),tpend)
            if k==self.P('dt',22): self.try_issue(WS,f"s{sTF}",PL,vPA)
            if cl and k>=self.P('dc',4):
                assert k+4<=cl[0]
                self.conv(cl.pop(0))
        mm(0,grp(self.cap(lambda: r2(R2))),h0)
        assert not cl
        self.stamp('dn.mm0')
        self.try_check(WS,f"s{sTF}",PL,vPA,self.F(F_GU2)); self.acquire()
        for _ in range(4): ld()
        stats(sRLO)
        self.red_write(A1)
        for _ in range(4): ld()
        A("s_waitcnt lgkmcnt(0)\ns_barrier")
        self.red_read(A1)
        tx=[None]
        def st1():
            if L==0: tx[0]=self.xstore(RES,sRHI,LY.STX,A1)
            else: self.out_store(RES,sRHI)
        def h1(k):
            if L: return
            if k==self.P('de',10)-6:
                A(f"v_and_b32 v{PL}, 7, v0\nv_lshlrev_b32 v{PL}, 5, v{PL}\ns_and_b32 s{T0+6}, s{sSLOT}, 28\ns_and_b32 s{T0+7}, s{sSLOT}, 3\ns_lshl_b32 s{T0+7}, s{T0+7}, 3\ns_lshl_b32 s{T0+7}, 0x20, s{T0+7}")
                self.try_issue(srd(SDBG),f"s{T0+6}",PL+1,PL)
            if k==self.P('de',10):
                self.try_check(srd(SDBG),f"s{T0+6}",PL+1,PL,f"s{T0+7}",mask=True); self.acquire()
                A(f"s_mul_i32 s{sQ}, s{sSLOT}, 49152\ns_add_u32 s{sQ}, s{sQ}, s{sLW}\ns_add_u32 s{sQ}, s{sQ}, {LY.WQI}\ns_add_u32 m0, s{sLW}, {RW}")
                for j in range(4): A(f"buffer_load_dwordx4 v{vL16}, {WS}, s{sQ} offen offset:{j*1024} sc1 lds")
            if k==self.P('dq',22): self.publish(F_N+F_X1,tx[0])
        mm(1,self.red_fin(0,A1,R2)+[st1]+grp(self.cap(lambda: r2(R2+1))),h1)
        self.stamp('dn.mm1')
        A("s_barrier")
        self.red_write(A2); A("s_waitcnt lgkmcnt(0)\ns_barrier")
        self.red_read(A2)
        if L==0: self.try_issue(WS,f"s{sTF}",PL,vPX)
        for x in self.red_fin(1,A2,R2+1): A(x)
        if L: self.out_store(RES+4,sRLO); return
        self.stamp('dn.fin')
        self.L=1
        A(f"s_add_u32 s{sHB}, s{sHB}, {LY.HALO_L}")
        self.try_check(WS,f"s{sTF}",PL,vPX,self.F(F_X1)); self.acquire()
        self.qa_prefetch(self.qlead())
        self.txlo=self.xstore(RES+4,sRLO,LY.STX,A2)
        A(f"s_barrier\ns_add_u32 s{sQ}, s{sQ}, s{sLW}\ns_add_u32 s{sQ}, s{sQ}, 16384\ns_lshl_b32 s{T0+6}, s{sW}, 13\ns_add_u32 m0, s{T0+6}, {SCR}")
        for j in range(8):
            if j==4: A(f"s_add_u32 s{sQ}, s{sQ}, 4096\ns_add_u32 m0, s{T0+6}, {SCR+4096}")
            self.tlate=A(f"buffer_load_dwordx4 v{vL16}, {WS}, s{sQ} offen offset:{(j%4)*1024} sc1 lds")
    def out_store(self,rs,rec):
        self.A(f"""s_lshl_b32 s{T0+2}, s{sTEAM}, 3
        s_{'add' if rec==sRLO else 'sub'}_u32 s{T0+2}, s{T0+2}, s{sTQ}
        s_add_u32 s{T0+2}, s{T0+2}, {0 if rec==sRLO else 7}
        s_lshl_b32 s{T0+2}, s{T0+2}, 15
        s_lshl_b32 s{T0+3}, s{sCW}, 7
        s_add_u32 s{T0+2}, s{T0+2}, s{T0+3}
        buffer_store_dwordx4 {v(rs,4)}, v{vROW}, {srd(SOUT)}, s{T0+2} offen{' sc1' if self.P('osc',0) else ''}""")
    def build(self):
        A=self.A; self.L=0
        q=self.q_wgr(); k=self.P('ord',18); o=self.q_wo(); self.bgq=q[:k]+o[:8]+q[k:]+o[8:]+self.q_wd(); self.wn=0; self.xfree=256
        self.prologue()
        seq=[(n,f,l) for l in range(2) for n,f in (('qa',self.qa),('att',self.att),('wo',self.wo),('gu',self.gu),('dn',self.down))]
        for n,f,l in seq:
            if self.P('bench',0): break
            if n=='qa': self.stamp('qa.in')
            f()
            if self.stop==f"{n}{l}": break
        A("s_waitcnt vmcnt(0)" if self.stop else "s_nop 0")
        self.end()
        A.label('L_exit'); A("s_endpgm")
        for t in self.tail: A.raw(t)
        A.label('L_end')
        hdr=f"""; generated by gen/gen4.py
; @launch grid=(256,1,1) block=(256,1,1) lds=163840
.amdgcn_target "amdgcn-amd-amdhsa--gfx950"
.text
.globl {NAME}_kernel
.p2align 8
.type {NAME}_kernel,@function
{NAME}_kernel:
"""
        kd=f""".section .rodata,"a"
.p2align 6
.amdhsa_kernel {NAME}_kernel
  .amdhsa_next_free_vgpr 512
  .amdhsa_next_free_sgpr 102
  .amdhsa_accum_offset 256
  .amdhsa_group_segment_fixed_size 0
  .amdhsa_kernarg_size 80
  .amdhsa_user_sgpr_count 2
  .amdhsa_user_sgpr_kernarg_segment_ptr 1
  .amdhsa_system_sgpr_workgroup_id_x 1
.end_amdhsa_kernel
"""
        ex='; STAMPS '+','.join(self.stn[:-1])+'\n' if self.stamps else ''
        return hdr+A.text()+kd+ex
if __name__=='__main__':
    o=dict(x.split('=') for x in sys.argv[2:])
    g=G(o)
    t=g.build(); open(sys.argv[1],'w').write(t)
    print('lines',t.count('\n'),'auto nops',g.A.nops,'stamps',len(g.stn))
```

```python
import sys,re
sys.path.insert(0,'gen')
from asm2 import *
import layout4 as LY
NAME='interleave_layers__sliding_block__glu_gated_reglu__prompt'
MF='v_mfma_f32_32x32x16_bf16'; MS='v_mfma_f32_16x16x32_bf16'
SX,SWQ,SWS,SOUT,SDBG,SWO,SWG,SWU,SWD=8,12,16,20,24,28,32,36,40
sTEAM,sSLOT,sW,sTQ,sCW,sE,sMODE,sQ,sMYF,sTF,sTO,sONE,sXCC,sHS,sSTI,sHI,sLO,sRHI,sRLO,sSLOW=range(44,64)
sXN,sHB,sGB,sDB,sOB,sLW,sBT,sHF,sW1K=range(64,73)
sDQ,sOQ,sHW,sOF,sGG,sGL,sRT=73,74,75,76,80,81,82
T0=84
sST=100
vL,vL16,RES,vW1,vW2,vWV,vRRD,vRW0,vRW1,vXST,vROW,vSST,vSLD,vDSL,vPX,vPA,vSTMP=0,1,2,10,11,12,13,14,15,16,17,18,19,20,21,22,23
CSG,CSQ,CSV,vG0,vG1,WOV=24,28,29,30,31,32
vGA,vGW=24,25
vP1,vT0,vT1,vD=252,253,254,255
RW=114688; AK=RW; AV=AK+16384; AO=AV+16384; SCR=131072
F_X1,F_X2,F_ATB,F_ATA,F_WO1,F_WO2,F_GU1,F_GU2,F_N=1,2,3,4,5,6,7,8,8
def srd(i): return s(i,4)
WS=srd(SWS)
def woreg(q,n=4): return v(WOV+4*q,n) if q<8 else a(224+4*(q-8),n)

class G:
    def __init__(self,o):
        self.o=o; self.stop=o.get('stop'); self.stamps=int(o.get('stamps',0)); self.force_mixed=int(o.get('mixed',0))
        self.A=Asm(); self.tail=[]; self.tm="s_memtime" if self.stamps==2 else "s_memrealtime"; self.stn=[]
        self.nt=' nt' if int(o.get('nt',0)) else ''
    def P(self,k,d): return int(self.o.get(k,d))
    def S(self,k,d):
        r={}
        for part in self.o.get(k,d).split('+'):
            if not part: continue
            n=1; st=1
            if '*' in part: part,n=part.split('*')
            if '/' in part: part,st=part.split('/')
            a_,b_=(part.split('-')+[part])[:2]
            for i in range(int(a_),int(b_)+1,int(st)): r[i]=r.get(i,0)+int(n)
        return r
    def stamp(self,name):
        if not self.stamps: return
        if self.o.get('fs','x0')[-1]=='1' and self.L==0 and name not in ('qa.in','dn.fin'): return
        if self.o.get('fs') in ('gu0','dn0') and (self.L and name!='qa.9' or name[:2] in ('p.','qa','at') and name!='qa.9'): return
        A=self.A
        A(f"s_waitcnt lgkmcnt(0)\ns_mov_b32 m0, s{sSTI}\nv_writelane_b32 v{vSTMP}, s{sST}, m0\ns_add_u32 s{sSTI}, s{sSTI}, 1\n{self.tm} {s(sST,2)}")
        self.stn.append(name)
    def fine(self,ph,i,every=4):
        if self.o.get('fs')==f"{ph}{self.L}" and i%every==0: self.stamp(f"{ph}:{i}")
    def end(self):
        A=self.A
        if self.stamps:
            self.stamp('end-')
            A(f"""s_lshl_b32 s{T0}, s2, 2
            s_add_u32 s{T0}, s{T0}, s{sW}
            s_lshl_b32 s{T0}, s{T0}, 8
            s_add_u32 s{T0}, s{T0}, {LY.STAMPS}
            v_lshlrev_b32 v{vT0}, 2, v{vL}
            buffer_store_dword v{vSTMP}, v{vT0}, {WS}, s{T0} offen""")
        A("s_endpgm")
    def acquire(self):
        A=self.A; b=A.newlabel('L_acq'); r=A.newlabel('L_acr')
        A(f"s_cmp_lg_u32 s{sMODE}, 0\ns_cbranch_scc1 {b}"); A.label(r)
        self.tail.append(f"{b}:\n    buffer_inv sc1\n    s_waitcnt vmcnt(0)\n    s_branch {r}")
    def publish(self,val,tag):
        A=self.A; b=A.newlabel('L_pub'); r=A.newlabel('L_pur')
        assert tag
        A(f"v_mov_b32 v{vP1}, {val}")
        A.wait_vm(tag)
        A(f"s_mov_b64 exec, 1\ns_cmp_lg_u32 s{sMODE}, 0\ns_cbranch_scc1 {b}")
        A(f"buffer_store_dword v{vP1}, off, {WS}, s{sMYF}"); A.label(r)
        A("s_mov_b64 exec, -1")
        self.tail.append(f"{b}:\n    buffer_wbl2 sc1\n    s_waitcnt vmcnt(0)\n    buffer_store_dword v{vP1}, off, {WS}, s{sMYF} sc1\n    s_branch {r}")
    def hpublish(self,val,tag):
        A=self.A
        assert tag
        A(f"v_mov_b32 v{vP1}, {2*self.L+val}\ns_add_u32 s{T0+15}, s{sMYF}, {LY.HFLAGS}")
        A.wait_vm(tag)
        A(f"s_mov_b64 exec, 1\nbuffer_store_dword v{vP1}, off, {WS}, s{T0+15} sc1\ns_mov_b64 exec, -1")
    def F(self,f): return f+self.L*F_N
    def cap(self,fn):
        class Cap:
            def __init__(s_): s_.L=[]
            def __call__(s_,x): s_.L+= [y.strip() for y in x.split('\n') if y.strip() and not y.strip().startswith(';')]
        A=self.A; c=Cap(); self.A=c
        try: fn()
        finally: self.A=A
        return c.L
    def pop(self,q,n=1):
        for _ in range(n):
            if not q: return
            g=q.pop(0)
            if callable(g): g()
            elif isinstance(g,(list,tuple)):
                for x in g: self.A(x)
            else: self.A(g)
    def cond(self,test,fn):
        A=self.A; l=A.newlabel('L_c')
        A(f"{test}\ns_cbranch_scc1 {l}")
        A.cond_begin(); fn(); A.cond_end(); A.label(l)
    def bg(self,n):
        r=None
        for _ in range(n):
            if self.L or not self.bgq: break
            k,i,g=self.bgq[0]
            if k=='D' and not self.ldsfree: break
            if k=='W' and i>=32: break
            self.bgq.pop(0)
            if k=='D' and i in (0,24) and self.tcv: self.A.wait_lg(self.tcv)
            for x in g: r=self.A(x)
            if k=='D': self.tgu=r
        return r
    def try_issue(self,srd_,soff,dst,off):
        self.A(f"buffer_load_dword v{dst}, v{off}, {srd_}, {soff} offen sc1")
    def try_check(self,srd_,soff,dst,off,target,mask=False):
        A=self.A; l=A.newlabel('L_poll'); d=A.newlabel('L_ok')
        def test():
            if mask: return f"v_and_b32 v{vT1}, {target}, v{dst}\nv_cmp_ne_u32 vcc, {target}, v{vT1}"
            return f"v_cmp_gt_u32 vcc, {target}, v{dst}"
        A(test()); A(f"s_cbranch_vccnz {l}"); A.label(d)
        body=f"""{l}:
    s_nop 4
    buffer_load_dword v{dst}, v{off}, {srd_}, {soff} offen sc1
    s_waitcnt vmcnt(0)
"""+"".join("    "+x+"\n" for x in test().split("\n"))+f"""    s_nop 1
    s_cbranch_vccz {d}
    s_sub_u32 s{sTO}, s{sTO}, 1
    s_cbranch_scc0 {l}
    s_endpgm"""
        self.tail.append(body)
    def ln_scalars(self,vs,vq,vm,vr,t):
        A=self.A
        A(f"""v_mul_f32 v{vs}, 0x3b000000, v{vs}
        v_mul_f32 v{vq}, 0x3b000000, v{vq}
        v_fma_f32 v{vq}, -v{vs}, v{vs}, v{vq}
        v_max_f32 v{vq}, 0, v{vq}""")
        if vm is not None: A(f"v_cvt_pk_bf16_f32 v{vm}, -v{vs}, -v{vs}")
        if vr is not None:
            A(f"""v_cvt_pk_bf16_f32 v{t}, v{vq}, v{vq}
            v_and_b32 v{t}, 0xffff0000, v{t}
            v_add_f32 v{t}, 0x3727c5ac, v{t}
            v_cvt_pk_bf16_f32 v{t}, v{t}, v{t}
            v_and_b32 v{t}, 0xffff0000, v{t}
            v_sqrt_f32 v{t}, v{t}
            v_cvt_pk_bf16_f32 v{t}, v{t}, v{t}
            v_and_b32 v{t}, 0xffff0000, v{t}
            v_rcp_f32 v{vr}, v{t}""")
    def sum8(self,b):
        self.A(f"""v_add_f32 v{b}, v{b}, v{b+1}
        v_add_f32 v{b+2}, v{b+2}, v{b+3}
        v_add_f32 v{b+4}, v{b+4}, v{b+5}
        v_add_f32 v{b+6}, v{b+6}, v{b+7}
        v_add_f32 v{b}, v{b}, v{b+2}
        v_add_f32 v{b+4}, v{b+4}, v{b+6}
        v_add_f32 v{b}, v{b}, v{b+4}""")
    def cs_pack(self,r,t):
        self.A(f"""v_cvt_pk_bf16_f32 v{t}, v{r}, v{r}
        v_and_b32 v{t}, 0xffff0000, v{t}
        v_sub_f32 v{t}, v{r}, v{t}
        v_cvt_pk_bf16_f32 v{r}, v{r}, v{t}""")
    def selector(self,r):
        self.A(f"""v_bfe_u32 v{r}, v0, 4, 1
        v_lshlrev_b32 v{r}, 2, v{r}
        v_and_b32 v{r+1}, 15, v0
        v_cmp_eq_u32 vcc, v{r}, v{r+1}
        v_mov_b32 v{r+1}, s{sONE}
        v_cndmask_b32 v{r}, 0, v{r+1}, vcc
        v_mov_b32 v{r+1}, v{r}
        v_mov_b32 v{r+2}, v{r}
        v_mov_b32 v{r+3}, v{r}""")
    def mark(self,bits):
        A=self.A
        def f():
            A(f"""s_or_b32 s{T0+14}, s{sXCC}, {bits}
            v_mov_b32 v{vT0}, s{T0+14}
            s_lshl_b32 s{T0+14}, s{sTEAM}, 5
            s_add_u32 s{T0+14}, s{T0+14}, s{sSLOT}
            s_mov_b64 exec, 1
            buffer_store_byte v{vT0}, off, {srd(SDBG)}, s{T0+14} sc1
            s_mov_b64 exec, -1""")
        return f
    def rq(self,dst,Q,scale,base):
        if not self.P('kr',2): return [f"s_add_u32 s{dst}, s{base}, {Q*scale}"]
        return [f"s_add_u32 s{dst}, s{sRT}, {Q}",f"s_and_b32 s{dst}, s{dst}, 3",f"s_mul_i32 s{dst}, s{dst}, {scale}",f"s_add_u32 s{dst}, s{dst}, s{base}"]
    def q_wo(self):
        return [(self.rq(sOQ,q//4,32768,sOB) if q%4==0 else [])+
                [f"s_add_u32 s{sBT}, s{sOQ}, {(q%4)*8192}",f"buffer_load_dwordx4 {woreg(q)}, v{vD}, {srd(SWO)}, s{sBT} offen{self.nt}"] for q in range(16)]
    def q_wd(self):
        return [(self.rq(sDQ,q//14,114688,sDB) if q%14==0 else [])+
                [f"s_add_u32 s{sBT}, s{sDQ}, {(q%14)*8192}",f"buffer_load_dwordx4 {a(4*q,4)}, v{vD}, {srd(SWD)}, s{sBT} offen{self.nt}"] for q in range(56)]
    def q_wgd(self,n):
        gu,rh=(n>>1)&1,n&1
        L=[] if n&3 or not n else [f"s_add_u32 s{sGL}, s{sGL}, 16384",f"s_add_u32 s{sGG}, s{sGG}, {64*3584}",f"s_cmp_ge_u32 s{sGL}, {7*16384}",
            f"s_cselect_b32 s{sBT}, {7*16384}, 0",f"s_sub_u32 s{sGL}, s{sGL}, s{sBT}",f"s_mul_i32 s{sBT}, s{sBT}, 14",f"s_sub_u32 s{sGG}, s{sGG}, s{sBT}"]
        return L+[f"s_add_u32 s{sBT}, s{sGG}, {rh*8*3584}",f"s_add_u32 m0, s{sGL}, {gu*2048+rh*1024}",
                  f"buffer_load_dwordx4 v{vG0+gu}, {srd(SWU if gu else SWG)}, s{sBT} offen lds"]
    def hld(self,k,rec,dst):
        A=self.A; r=k%7
        if r==0:
            for x in self.rq(sXN,k//7,7168,sHW): A(x)
            A(f"s_add_u32 s{sXN}, s{sXN}, s{rec}")
        elif r==4: A(f"s_add_u32 s{sXN}, s{sXN}, 4096")
        A(f"buffer_load_dwordx4 {dst}, v{vL16}, {WS}, s{sXN} offen offset:{(r%4)*1024} sc1")
    def q_wgu(self,j):
        L=[]
        for gu in range(2):
            for rh in range(2):
                L.append([f"s_add_u32 s{sBT}, s{sGB}, {j*64*3584+rh*8*3584}",f"s_add_u32 m0, s{sLW}, {j*16384+gu*2048+rh*1024}",
                          f"buffer_load_dwordx4 v{vG0+gu}, {srd(SWU if gu else SWG)}, s{sBT} offen{self.nt} lds"])
        return L
    def q_wgr(self,n,k):
        return [f"s_add_u32 s{sBT}, s{sGB}, {(n>>2)*64*3584+(n&1)*8*3584}",
                f"buffer_load_dwordx4 {a(128+4*k,4)}, v{vGA}, {srd(SWU if n&2 else SWG)}, s{sBT} offen"]
    def mkbg(self):
        bo=self.o.get('bo','AOAOAOAO'); na=bo.count('A'); assert na>=4 or na==0
        self.al=[28,29,30,31]+list(range(na-4)) if na else []
        Q={'A':[('A',n,self.q_wgr(n,k)) for k,n in enumerate(self.al)],
           'D':[('D',n,self.q_wgd(n) if na<=4 else self.q_wgu(n>>2)[n&3]) for n in range(max(na-4,0),28)],
           'O':[('O',i,g) for i,g in enumerate(self.q_wo())],
           'W':[('W',i,g) for i,g in enumerate(self.q_wd())]}
        q=[Q[c].pop(0) for c in bo]
        self.bgq=q+Q['O']+Q['D']+Q['W']; self.wn=4; self.ldsfree=False; self.tgu=None
        self.cvq=[('O',u) for u in range(8)]+[('W',u) for u in range(16)]; self.tcv=None; self.tn=0
    def wout(self,k,last=False):
        def w(k_,n): self.A(f"ds_write_b128 v{vGW+((n>>1)&1)}, {a(128+4*k_,4)} offset:{((n>>2)&3)*16384+(n&3)*1024}")
        for _ in range(k):
            if self.L or self.wn>=len(self.al): break
            assert not any(x[0]=='A' for x in self.bgq)
            w(self.wn,self.al[self.wn]); self.wn+=1
        if last and self.al:
            self.A(f"v_add_u32 v{vGW}, 0x10000, v{vGW}\nv_add_u32 v{vGW+1}, 0x10000, v{vGW+1}")
            for k_ in range(4): w(k_,28+k_)
        elif last:
            for g in self.q_wgu(7):
                for x in g: self.tgu=self.A(x)
    CR=125
    def cv(self,n,r=None):
        for _ in range(n):
            if self.L or not self.cvq: return
            k,u=self.cvq[0]
            if any(x[0]==k and x[1]//2==u for x in self.bgq): return
            assert r or any(x[0]=='D' and x[1]==(0 if self.P('gr',1) else 24) for x in self.bgq)
            self.cvq.pop(0)
            U=self.conv_unit(a,8*u,r or self.CR) if k=='W' else self.conv_unit(v if u<4 else a,(WOV if u<4 else 224-32)+8*u,r or self.CR)
            for x in U: self.tcv=self.A(x)
    def tgw(self,n):
        for _ in range(n):
            k=self.tn
            if self.L or k>=8: return
            self.tn+=1
            self.A(f"""s_lshl_b32 s{sBT}, s{sSLOT}, 2
            s_add_u32 s{sBT}, s{sBT}, s{sW}
            s_mul_i32 s{sBT}, s{sBT}, 3584
            s_add_u32 s{sBT}, s{sBT}, {(k>>1)*128*3584}
            v_lshlrev_b32 v{vT0}, 7, v0
            s_mov_b64 exec, 0xfffffff
            buffer_load_dword v124, v{vT0}, {srd(SWU if k&1 else SWG)}, s{sBT} offen
            s_mov_b64 exec, -1""")
    def conv_setup(self,r):
        self.A(f"""v_lshrrev_b32 v{r}, 5, v{vL}
        v_bfe_u32 v{r+1}, v{vL}, 2, 2
        v_lshl_add_u32 v{r+1}, v{r}, 2, v{r+1}
        v_lshlrev_b32 v{r+1}, 7, v{r+1}
        v_bfe_u32 v{r}, v{vL}, 4, 1
        v_lshl_add_u32 v{r+1}, v{r}, 5, v{r+1}
        v_lshlrev_b32 v{r}, 6, v{r}
        v_and_b32 v{r+2}, 3, v{vL}
        v_lshl_add_u32 v{r+1}, v{r+2}, 3, v{r+1}
        v_bfe_u32 v{r+2}, v{vL}, 3, 1
        v_lshl_add_u32 v{r+1}, v{r+2}, 6, v{r+1}
        v_sub_u32 v{r+2}, v{vRW0}, v{vL16}
        v_add_u32 v{r+1}, v{r+1}, v{r+2}
        v_xor_b32 v{r+2}, 64, v{r+1}
        v_xor_b32 v{r}, v{r}, v{vRW0}""")
    def conv_unit(self,reg,b,r):
        L=[f"ds_write_b128 v{r}, {reg(b,4)}",f"ds_write_b128 v{r}, {reg(b+4,4)} offset:1024"]
        for cb in range(2):
            L+= [f"ds_read_b64_tr_b16 {reg(b+4*cb,2)}, v{r+1+cb}",f"ds_read_b64_tr_b16 {reg(b+4*cb+2,2)}, v{r+1+cb} offset:1024"]
        return L
    def xstore(self,rs,srec,so,R,woff=0):
        A=self.A
        A(f"""s_lshl_b32 s{T0+3}, s{sCW}, 12
        s_add_u32 s{T0+2}, s{srec}, s{T0+3}
        buffer_store_dwordx4 {v(rs,4)}, v{vXST}, {WS}, s{T0+2} offen{' sc1' if self.L==0 and so==LY.ST1 and self.P('x1s',1) else ''}
        v_mov_b32 v{R}, 0
        v_mov_b32 v{R+1}, 0""")
        for n in range(4): A(f"v_dot2c_f32_bf16 v{R}, s{sONE}, v{rs+n}\nv_dot2c_f32_bf16 v{R+1}, v{rs+n}, v{rs+n}")
        A(f"""s_lshl_b32 s{T0+3}, s{sCW}, 2
        s_add_u32 s{T0+2}, s{srec}, s{T0+3}
        s_add_u32 s{T0+2}, s{T0+2}, {so}
        v_add_f32_dpp v{R}, v{R}, v{R} row_ror:8 row_mask:0xf bank_mask:0xf
        v_add_f32_dpp v{R+1}, v{R+1}, v{R+1} row_ror:8 row_mask:0xf bank_mask:0xf
        v_permlane16_swap_b32 v{R}, v{R+1}
        v_add_f32 v{R}, v{R}, v{R+1}
        v_mov_b32 v{R+1}, v{R}
        v_permlane32_swap_b32 v{R}, v{R+1}
        v_add_f32 v{R}, v{R}, v{R+1}""")
        return A(f"buffer_store_dword v{R}, v{vSST}, {WS}, s{T0+2} offen offset:{woff*512}")
    WR,WG_,NR,STA=65536,12672,7,154624
    XF,AW,XA,XD,PD,WA,WD,TN=64,80,88,92,98,100,104,106
    CQ,CV,SEL=176,180,184
    sWS,sWL,sWK=(T0+10,T0+11,T0+12),(3,6,7),T0+13
    sCK,sCV=sHS,sQ
    def wgrp(self,q=None):
        A=self.A; G_=self.wg; self.wg+=1
        def piece(i):
            if G_ and not i: A(f"s_add_u32 s{self.sWK}, s{self.sWK}, 98304\ns_cmp_eq_u32 s{self.sWK}, {16*98304}\ns_cselect_b32 s{self.sWK}, 0, s{self.sWK}")
            self.wtag[G_]=A(f"""s_add_u32 m0, s{self.sWL[i]}, {(G_%self.NR)*self.WG_}
            s_add_u32 s{sBT}, s{self.sWK}, s{self.sWS[i]}
            buffer_load_dwordx4 v{self.WD+(i>0)}, {srd(SWQ)}, s{sBT} offen lds""")
        for i in range(3):
            if q is None: piece(i)
            else: q.append(lambda i=i: piece(i))
    def prologue(self):
        A=self.A; XD,WD=self.XD,self.WD; sWS,sWL,sWK=self.sWS,self.sWL,self.sWK
        A(f"""s_cmp_ge_u32 s2, 256
        s_cbranch_scc1 L_exit
        s_load_dwordx16 s[64:79], s[0:1], 0
        s_load_dwordx4 s[80:83], s[0:1], 64""")
        A("s_getpc_b64 s[4:5]"); A.label("L_pc")
        if self.stamps: A(f"{self.tm} {s(sST,2)}\ns_mov_b32 s{sSTI}, 0\nv_mov_b32 v{vSTMP}, 0"); self.stn.append('start')
        R=self.P('rot',4); MX=self.P('mx',3); sCK,sCV=self.sCK,self.sCV
        A(f"""v_lshrrev_b32 v2, 6, v0
        v_and_b32 v0, 63, v0
        v_readfirstlane_b32 s{sW}, v2
        v_lshlrev_b32 v{vL16}, 4, v0
        s_and_b32 s{sTEAM}, s2, 7
        s_lshr_b32 s{sSLOT}, s2, 3
        {f's_xor_b32 s{sSLOT}, s{sSLOT}, '+str(self.P('sx',0)) if self.P('sx',0) else ''}
        s_and_b32 s{sTQ}, s{sSLOT}, 3
        s_lshr_b32 s{sCW}, s{sSLOT}, 2
        s_lshl_b32 s{T0}, s{sSLOT}, 2
        s_add_u32 s{T0}, s{T0}, s{sW}
        s_lshl_b32 s{T0}, s{T0}, 10
        v_and_b32 v4, 7, v0
        v_lshlrev_b32 v3, 7, v4
        v_add_u32 v3, s{T0}, v3
        v_min_u32 v3, L_end-L_pc-4, v3
        {'global_load_dword v251, v3, s[4:5]' if self.P('ct',1) else ''}
        v_lshrrev_b32 v9, 3, v0
        v_xor_b32 v5, v4, v9
        v_lshlrev_b32 v{XD}, 10, v9
        v_lshl_add_u32 v{XD}, v5, 4, v{XD}
        v_xor_b32 v{XD+1}, 0x410, v{XD}
        v_lshrrev_b32 v5, 4, v0
        v_mul_u32_u24 v5, {4*3072}, v5
        v_lshl_add_u32 v5, v4, 4, v5
        v_and_b32 v6, 1, v9
        s_add_u32 s{sCK}, s{sCW}, {MX}
        s_and_b32 s{sCK}, s{sCK}, 7
        s_add_u32 s{sCV}, s{sCW}, {2*MX}
        s_and_b32 s{sCV}, s{sCV}, 7
        s_sub_u32 s{T0+1}, s{sCK}, s{sCW}
        s_lshl_b32 s{T0+1}, s{T0+1}, 7
        s_add_u32 s{T0+1}, s{T0+1}, 1024
        v_mul_u32_u24 v{WD}, s{T0+1}, v6
        s_lshl_b32 s{T0+1}, s{sCW}, 7
        v_add3_u32 v{WD}, v{WD}, v5, s{T0+1}
        v_mul_u32_u24 v6, 3072, v6
        s_lshl_b32 s{T0+1}, s{sCV}, 7
        v_add3_u32 v6, v6, v5, s{T0+1}
        s_bitcmp1_b32 s{sW}, 0
        s_cselect_b64 vcc, -1, 0
        s_cselect_b32 s{sWS[0]}, {3*3072}, 0
        s_mov_b32 s{sWS[1]}, 3072
        s_mov_b32 s{sWS[2]}, 6144
        s_mov_b32 s{sWL[1]}, 1056
        s_mov_b32 s{sWL[2]}, 2112
        s_cselect_b32 s{sWS[1]}, 2048, s{sWS[1]}
        s_cselect_b32 s{sWS[2]}, {2048+6144}, s{sWS[2]}
        s_cselect_b32 s{sWL[0]}, {3*1056}, 0
        s_cselect_b32 s{sWL[1]}, 4224, s{sWL[1]}
        s_cselect_b32 s{sWL[2]}, 5312, s{sWL[2]}
        v_cndmask_b32 v{WD+1}, v{WD}, v6, vcc
        s_lshr_b32 s{T0+1}, s{sW}, 1
        s_mul_i32 s{T0+2}, s{T0+1}, 49152
        s_mul_i32 s{T0+3}, s{T0+1}, 6336
        s_add_u32 s{T0+3}, s{T0+3}, {self.WR}""")
        for i in range(3): A(f"s_add_u32 s{sWS[i]}, s{sWS[i]}, s{T0+2}\ns_add_u32 s{sWL[i]}, s{sWL[i]}, s{T0+3}")
        A(f"""s_mul_i32 s{T0+2}, s{sTQ}, {R}
        s_and_b32 s{T0+2}, s{T0+2}, 15
        s_mul_i32 s{sWK}, s{T0+2}, 98304
        s_lshl_b32 s{T0+6}, s{T0+2}, 6
        s_lshl_b32 s{T0+7}, s{sTEAM}, 4
        s_lshl_b32 s{T0+2}, s{sTQ}, 2
        s_add_u32 s{T0+7}, s{T0+7}, s{T0+2}
        s_add_u32 s{T0+7}, s{T0+7}, s{sW}
        s_lshl_b32 s{T0+7}, s{T0+7}, 14
        s_lshl_b32 s{T0+9}, s{T0+1}, 15
        s_and_b32 s{T0+2}, s{sW}, 1
        s_lshl_b32 s{T0+2}, s{T0+2}, 11
        s_add_u32 s{T0+9}, s{T0+9}, s{T0+2}
        s_lshl_b32 s{sTF}, s{sTEAM}, 9
        s_lshl_b32 s{T0+8}, s{sSLOT}, 4
        s_add_u32 s{T0+8}, s{T0+8}, s{sTF}
        v_mov_b32 v112, 0
        v_mov_b32 v113, 0
        v_mov_b32 v114, 0
        v_mov_b32 v115, 0
        s_waitcnt lgkmcnt(0)""")
        self.stamp('p.ka')
        def mk(sr,p,sz): A(f"s_mov_b32 s{sr}, s{p}\ns_mov_b32 s{sr+1}, s{p+1}\ns_mov_b32 s{sr+2}, {sz}\ns_mov_b32 s{sr+3}, 0x20000")
        mk(SWS,82,LY.WS_USED)
        tf=[None]
        def fz():
            A(f"""s_mov_b64 exec, 1
            buffer_store_dwordx4 v[112:115], off, {WS}, s{T0+8} sc1
            s_add_u32 s{T0+8}, s{T0+8}, {LY.HFLAGS}""")
            tf[0]=A(f"buffer_store_dwordx4 v[112:115], off, {WS}, s{T0+8} sc1")
            A("s_mov_b64 exec, -1")
        self.cond(f"s_cmp_lg_u32 s{sW}, 0",fz)
        mk(SX,64,2097152); mk(SWQ,66,1572864)
        self.wg=0; self.wtag={}
        xn=[0]; tx=[None]; sXS,sXD,sXR,sXL=T0+6,T0+14,T0+7,T0+9
        A(f"""s_mul_i32 s{sXD}, s{sCW}, {self.P('xro',1)*4096}
        s_lshr_b32 s{T0+2}, s{sXD}, 5
        s_add_u32 s{sXS}, s{sXS}, s{T0+2}
        s_and_b32 s{sXS}, s{sXS}, 1023""")
        def px(n):
            for _ in range(n):
                g,q=divmod(xn[0],2); xn[0]+=1
                if g and not q: A(f"s_add_u32 s{sXS}, s{sXS}, 128\ns_and_b32 s{sXS}, s{sXS}, 1023\ns_add_u32 s{sXD}, s{sXD}, 4096\ns_and_b32 s{sXD}, s{sXD}, 0x7fff")
                tx[0]=A(f"""s_add_u32 s{sBT}, s{sXS}, s{sXR}
                {f's_add_u32 s{sBT}, s{sBT}, 8192' if q else ''}
                s_add_u32 m0, s{sXL}, s{sXD}
                {'s_add_u32 m0, m0, 1024' if q else ''}
                buffer_load_dwordx4 v{XD+q}, {srd(SX)}, s{sBT} offen lds""")
        def seq(k,d):
            for x in self.o.get(k,d).split('.'):
                if x[0]=='x': px(int(x[1:]))
                elif x[0]=='w':
                    for _ in range(int(x[1:])): self.wgrp()
                elif x[0]=='c': self.tcl=self.clear(112)
        self.tcl=None; seq('p1','x8.w1')
        A(f"s_mov_b32 s{sSLOW}, s{sXS}\ns_mov_b32 s5, s{sXR}\ns_mov_b32 s4, s{sXL}")
        sXS,sXR,sXL=sSLOW,5,4
        self.stamp('p.x')
        for sr,p_,sz in ((SDBG,80,256),(SOUT,78,2097152),(SWO,68,524288),(SWG,72,1835008),(SWU,74,1835008),(SWD,76,1835008)): mk(sr,p_,sz)
        A(f"""s_and_b32 s{sE}, s{sSLOT}, 1
        s_lshr_b32 s{T0+1}, s{sSLOT}, 1
        s_mul_i32 s{T0+1}, s{T0+1}, 224
        s_mul_i32 s{T0+2}, s{sE}, 96
        s_add_u32 s{T0+1}, s{T0+1}, s{T0+2}
        s_mul_i32 s{sGB}, s{sW}, {16*3584}
        s_add_u32 s{sGB}, s{sGB}, s{T0+1}
        v_mul_u32_u24 v{vGA}, 3584, v9
        v_lshl_add_u32 v{vGA}, v4, 4, v{vGA}
        s_lshl_b32 s{T0}, s{sTEAM}, 3
        s_add_u32 s{T0+1}, s{T0}, s{sW}
        s_sub_u32 s{T0+2}, s{T0}, s{sW}
        s_add_u32 s{T0+2}, s{T0+2}, 7
        s_mul_i32 s{sHI}, s{T0+2}, {LY.RS}
        s_mul_i32 s{sLO}, s{T0+1}, {LY.RS}
        s_add_u32 s{sHI}, s{sHI}, {LY.REC}
        s_add_u32 s{sLO}, s{sLO}, {LY.REC}
        s_mov_b32 s{sONE}, 0x3f803f80""")
        A(f"""s_getreg_b32 s{sXCC}, hwreg(HW_REG_XCC_ID)
        s_and_b32 s{sXCC}, s{sXCC}, 15
        s_add_u32 s{T0+1}, s{T0}, s{sTQ}
        s_sub_u32 s{T0+2}, s{T0}, s{sTQ}
        s_add_u32 s{T0+2}, s{T0+2}, 7
        v_bfe_u32 v5, v0, 3, 1
        v_lshrrev_b32 v6, 4, v0
        s_lshl_b32 s{T0+3}, s{sW}, 3
        v_add_u32 v4, s{T0+3}, v4
        v_lshlrev_b32 v{vROW}, 10, v4
        v_lshl_add_u32 v{vROW}, v6, 5, v{vROW}
        v_lshl_add_u32 v{vROW}, v5, 4, v{vROW}
        s_lshl_b32 s{T0+3}, s{sCW}, 7
        s_lshl_b32 s{T0+4}, s{T0+2}, 15
        s_add_u32 s{T0+4}, s{T0+4}, s{T0+3}
        s_lshl_b32 s{T0+5}, s{T0+1}, 15
        s_add_u32 s{T0+5}, s{T0+5}, s{T0+3}""")
        A(f"""s_mov_b32 s{sTO}, 200000
        s_lshl_b32 s{T0+6}, s{sSLOT}, 4
        s_add_u32 s{T0+7}, s{sTF}, s{T0+6}
        s_lshl_b32 s{T0+8}, s{sW}, 2
        s_add_u32 s{sMYF}, s{T0+7}, s{T0+8}
        s_max_i32 s{sHF}, s{sTF}, 512
        s_add_u32 s{sHF}, s{sHF}, s{T0+6}
        s_add_u32 s{sHF}, s{sHF}, {LY.HFLAGS-512}
        s_mul_i32 s{sRHI}, s{T0+2}, {LY.RS}
        s_add_u32 s{sRHI}, s{sRHI}, {LY.REC}
        s_mul_i32 s{sRLO}, s{T0+1}, {LY.RS}
        s_add_u32 s{sRLO}, s{sRLO}, {LY.REC}
        s_lshl_b32 s{sHB}, s{sTEAM}, 19
        s_lshl_b32 s{T0+6}, s{sSLOT}, 14
        s_add_u32 s{sHB}, s{sHB}, s{T0+6}
        s_add_u32 s{sHB}, s{sHB}, {LY.HALO}
        s_lshl_b32 s{sW1K}, s{sW}, 10
        s_lshl_b32 s{sLW}, s{sW}, 12
        s_lshl_b32 s{sOB}, s{sW}, 17
        s_add_u32 s{sOB}, s{sOB}, s{T0+3}
        s_mul_i32 s{sDB}, s{sW}, {448*1024}
        s_add_u32 s{sDB}, s{sDB}, s{T0+3}
        s_add_u32 s{sRT}, s{sTQ}, {f's{sCW}' if self.P('kr',2)==2 else 0}
        s_mul_i32 s{sHW}, s{sW}, {28*1024}
        s_add_u32 s{sHW}, s{sHW}, {LY.HOFF}
        s_lshl_b32 s{T0+6}, s{sW}, 13
        s_add_u32 s{T0+6}, s{T0+6}, {LY.HOFF}
        s_mul_i32 s{sGL}, s{sTQ}, {self.P('gr',1)*16384}
        s_mul_i32 s{sGG}, s{sGL}, 14
        s_add_u32 s{sGL}, s{sGL}, s{sLW}
        s_add_u32 s{sGG}, s{sGG}, s{sGB}""")
        for P_ in range(4):
            for x in self.rq(sOF+P_,P_,2048,T0+6): A(x)
        A(f"""v_lshrrev_b32 v2, 5, v0
        v_bfe_u32 v3, v0, 4, 1
        v_bfe_u32 v8, v0, 2, 2
        v_lshl_add_u32 v9, v2, 3, v8
        v_lshlrev_b32 v9, 5, v9
        v_and_b32 v7, 3, v0
        v_lshl_add_u32 v9, v7, 3, v9
        v_add_u32 v{vWV}, {RW+2048}, v9
        v_mul_u32_u24 v{vW1}, 1152, v3
        v_add3_u32 v{vW1}, v{vW1}, v9, v9
        v_sub_u32 v{vW1}, v{vW1}, v9
        v_add_u32 v{vW1}, {RW}, v{vW1}
        v_xor_b32 v{vW2}, 0x80, v{vW1}
        v_and_b32 v9, 31, v0
        v_lshlrev_b32 v{vSLD}, 6, v9
        v_lshl_add_u32 v{vSLD}, v2, 5, v{vSLD}
        v_lshlrev_b32 v9, 3, v5
        v_xor_b32 v9, v9, v4
        v_lshlrev_b32 v{vRRD}, 4, v9
        v_lshl_add_u32 v{vRRD}, v2, 12, v{vRRD}
        v_lshl_add_u32 v9, v3, 1, v5
        v_lshl_add_u32 v{vRRD}, v9, 10, v{vRRD}
        v_add_u32 v{vRRD}, {SCR}, v{vRRD}
        s_lshl_b32 s{T0+6}, s{sW}, 13
        s_add_u32 s{T0+6}, s{T0+6}, {SCR}
        v_add_u32 v{vRW0}, s{T0+6}, v{vL16}
        v_xor_b32 v{vRW1}, 0x80, v{vRW0}
        v_lshlrev_b32 v{vXST}, 4, v4
        v_lshl_add_u32 v{vXST}, v5, 9, v{vXST}
        v_lshl_add_u32 v{vXST}, v6, 10, v{vXST}
        v_lshlrev_b32 v{vSST}, 6, v4
        v_lshl_add_u32 v{vDSL}, v5, 5, v{vSST}
        v_lshl_add_u32 v{vSST}, v3, 5, v{vSST}
        v_bfe_u32 v9, v0, 2, 3
        v_lshlrev_b32 v{vPX}, 6, v9
        v_lshl_add_u32 v{vPX}, v7, 2, v{vPX}
        s_lshl_b32 s{T0+6}, s{sW}, 4
        v_add_u32 v{vPX}, s{T0+6}, v{vPX}
        v_and_b32 v9, 7, v0
        v_lshlrev_b32 v{vPA}, 4, v9
        s_lshl_b32 s{T0+6}, s{sW}, 7
        s_lshl_b32 s{T0+8}, s{sTQ}, 2
        s_add_u32 s{T0+6}, s{T0+6}, s{T0+8}
        v_add_u32 v{vPA}, s{T0+6}, v{vPA}
        v_lshrrev_b32 v8, 3, v0
        v_lshlrev_b32 v{vD}, 10, v8
        v_lshl_add_u32 v{vD}, v9, 4, v{vD}""")
        for gu in range(2):
            A(f"""v_bfe_u32 v9, v0, 1, 2
            v_and_b32 v7, 3, v8
            v_xor_b32 v9, v9, v7
            v_xor_b32 v9, {gu}, v9
            v_and_b32 v7, 1, v0
            v_lshlrev_b32 v7, 4, v7
            v_lshl_add_u32 v9, v9, 5, v7
            v_mul_u32_u24 v{vG0+gu}, 3584, v8
            v_add_u32 v{vG0+gu}, v{vG0+gu}, v9
            v_lshl_add_u32 v{vGW+gu}, v8, 7, v9
            v_add_u32 v{vGW+gu}, s{sLW}, v{vGW+gu}""")
        XA,WA=self.XA,self.WA
        A(f"""v_and_b32 v9, 7, v0
        v_bfe_u32 v7, v0, 3, 2
        v_lshlrev_b32 v{XA}, 10, v7
        v_and_b32 v7, 1, v7
        v_xor_b32 v7, v7, v9
        v_lshl_add_u32 v{XA}, v7, 7, v{XA}
        v_xor_b32 v7, v2, v9
        v_lshl_add_u32 v{XA}, v7, 4, v{XA}
        s_and_b32 s{T0+6}, s{sW}, 1
        s_lshl_b32 s{T0+6}, s{T0+6}, 15
        v_add_u32 v{XA}, s{T0+6}, v{XA}""")
        for k in (1,2,3): A(f"v_xor_b32 v{XA+k}, {k*32}, v{XA}")
        for k in range(4): A(f"v_xor_b32 v{XA+6+k}, 0x8000, v{XA+k}")
        A(f"""v_and_b32 v7, 3, v0
        v_lshlrev_b32 v7, 3, v7
        v_lshl_add_u32 v7, v2, 9, v7
        v_bfe_u32 v8, v0, 2, 2
        v_mul_u32_u24 v{WA}, 1056, v8
        v_lshl_add_u32 v{WA}, v3, 7, v{WA}
        s_lshl_b32 s{T0+6}, s{sW}, 5
        s_add_u32 s{T0+6}, s{T0+6}, {self.WR}
        v_add3_u32 v{WA}, v{WA}, v7, s{T0+6}
        v_mul_u32_u24 v{WA+1}, 1088, v5
        v_and_b32 v8, 1, v8
        v_lshl_add_u32 v{WA+1}, v8, 7, v{WA+1}
        v_lshl_add_u32 v{WA+1}, v3, 5, v{WA+1}
        s_lshr_b32 s{T0+6}, s{sW}, 1
        s_lshl_b32 s{T0+6}, s{T0+6}, 6
        s_add_u32 s{T0+6}, s{T0+6}, {self.WR+4224}
        v_add3_u32 v{WA+1}, v{WA+1}, v7, s{T0+6}
        v_add_u32 v{WA+2}, {8*6336}, v{WA}
        v_add_u32 v{WA+3}, {8*6336}, v{WA+1}""")
        PD=self.PD
        A(f"""s_sub_u32 s{T0+6}, s{sTEAM}, 1
        s_max_i32 s{T0+6}, s{T0+6}, 0
        s_lshl_b32 s{T0+6}, s{T0+6}, 5
        s_lshl_b32 s{T0+8}, s{sTEAM}, 5
        v_and_b32 v{PD}, 7, v0
        v_lshlrev_b32 v{PD}, 2, v{PD}
        v_mov_b32 v{vT0}, s{T0+8}
        v_mov_b32 v{vT1}, s{T0+6}
        v_cmp_gt_u32 vcc, 32, v0
        v_cndmask_b32 v{vT0}, v{vT1}, v{vT0}, vcc
        v_add_u32 v{PD}, v{PD}, v{vT0}""")
        self.selector(self.SEL)
        self.stamp('p.iss')
        seq('p2','x8.w3'); assert xn[0]==16
        self.stamp('p.wi')
        self.cond(f"s_cmp_lg_u32 s{sW}, 0",lambda: (A.wait_vm(tf[0]),self.mark(0xc0)()))
        TN=self.TN; S_=120; ON=116
        A(f"""v_bfe_u32 v7, v0, 3, 1
        v_and_b32 v8, 7, v0
        v_xor_b32 v9, v7, v8
        v_lshlrev_b32 v9, 7, v9
        v_lshl_add_u32 v9, v7, 10, v9
        v_lshrrev_b32 v7, 4, v0
        v_xor_b32 v7, v7, v8
        v_lshl_add_u32 v9, v7, 4, v9
        v_add_u32 v{TN}, s4, v9
        v_xor_b32 v{TN+1}, 64, v{TN}""")
        for r in range(4): A(f"v_mov_b32 v{ON+r}, s{sONE}")
        A.wait_vm(tx[0])
        self.stamp('p.xw')
        def rd(n): A(f"ds_read_b128 {v(128+(n%12)*4,4)}, v{TN+(n&1)} offset:{(n>>1)*4096}")
        for n in range(8): rd(n)
        for n in range(16):
            if n+8<16: rd(n+8)
            x=v(128+(n%12)*4,4)
            A(f"{MS} {v(S_,4)}, {v(ON,4)}, {x}, {v(S_,4) if n else '0'}\n{MS} {v(S_+4,4)}, {x}, {x}, {v(S_+4,4) if n else '0'}")
            if n%6==5 and self.wg<self.P('w1',6): self.wgrp()
        A(f"""v_and_b32 v{TN}, 15, v0
        v_lshlrev_b32 v{TN}, 3, v{TN}
        s_lshl_b32 s{T0+6}, s{sW}, 7
        s_add_u32 s{T0+6}, s{T0+6}, {self.STA}
        v_add_u32 v{TN}, s{T0+6}, v{TN}
        s_mov_b32 vcc_lo, 0xaaaaaaaa
        s_mov_b32 vcc_hi, 0xaaaaaaaa
        v_cndmask_b32 v{S_+4}, v{S_+4}, v{S_+5}, vcc
        v_cndmask_b32 v{S_+6}, v{S_+6}, v{S_+7}, vcc
        s_mov_b32 vcc_lo, 0xcccccccc
        s_mov_b32 vcc_hi, 0xcccccccc
        v_cndmask_b32 v{S_+1}, v{S_+4}, v{S_+6}, vcc
        s_mov_b32 exec_lo, 0x00f0000f
        s_mov_b32 exec_hi, 0xf0000f00
        ds_write_b64 v{TN}, {v(S_,2)}
        s_mov_b64 exec, -1""")
        self.stamp('p.st')
    def share(self,part):
        self.A(f"""s_lshl_b32 s{T0+3}, s{sTEAM}, 3
        s_add_u32 s{T0+3}, s{T0+3}, s{sCW}
        s_mul_i32 s{T0+3}, s{T0+3}, {LY.RS}
        s_lshl_b32 s{T0+15}, s{sTQ}, 2
        s_add_u32 s{T0+15}, s{T0+15}, s{sW}
        s_mul_i32 s{T0+15}, s{T0+15}, {1280 if part else 8192}
        s_add_u32 s{T0+3}, s{T0+3}, s{T0+15}
        s_add_u32 s{T0+3}, s{T0+3}, {LY.REC+(131072 if part else 0)}""")
    def clear(self,Z):
        A=self.A
        self.share(0)
        for j in range(8):
            if j==4: A(f"s_add_u32 s{T0+3}, s{T0+3}, 4096")
            A(f"buffer_store_dwordx4 {v(Z,4)}, v{vL16}, {WS}, s{T0+3} offen offset:{(j%4)*1024} sc1")
        self.share(1)
        A(f"buffer_store_dwordx4 {v(Z,4)}, v{vL16}, {WS}, s{T0+3} offen sc1\ns_mov_b64 exec, 0xffff")
        t=A(f"buffer_store_dwordx4 {v(Z,4)}, v{vL16}, {WS}, s{T0+3} offen offset:1024 sc1")
        A("s_mov_b64 exec, -1")
        return t
    def touch(self,part):
        A=self.A
        A(f"s_mov_b32 s{T0+14}, s{T0+15}")
        self.share(part)
        A(f"s_mov_b32 s{T0+15}, s{T0+14}\nv_lshlrev_b32 v{vT0}, 7, v0")
        if part: A("s_mov_b64 exec, 0x3ff")
        A(f"buffer_load_dword v250, v{vT0}, {WS}, s{T0+3} offen")
        if part: A("s_mov_b64 exec, -1")
    def touch2(self):
        A=self.A; n=self.P('tl',2)
        if not n: return
        A(f"""s_lshl_b32 s{T0+8}, s{sTEAM}, 3
        s_add_u32 s{T0+8}, s{T0+8}, s{sCW}
        s_mul_i32 s{T0+8}, s{T0+8}, {LY.RS}
        s_lshl_b32 s{T0+9}, s{sTQ}, 2
        s_add_u32 s{T0+9}, s{T0+9}, s{sW}
        s_mul_i32 s{T0+9}, s{T0+9}, {n*128}
        s_add_u32 s{T0+8}, s{T0+8}, s{T0+9}
        s_add_u32 s{T0+8}, s{T0+8}, {LY.REC+LY.RS-n*2048}
        v_lshlrev_b32 v{vT0}, 7, v0
        s_mov_b64 exec, {(1<<n)-1}
        buffer_load_dword v124, v{vT0}, {WS}, s{T0+8} offen
        s_sub_u32 s{T0+8}, s{T0+8}, {LY.RS-n*2048-LY.HOFF-32768}
        {f'buffer_load_dword v124, v{vT0}, {WS}, s{T0+8} offen' if self.P('hs',1) else ''}
        s_mov_b64 exec, -1""")
    def ctouch(self,dst,sp=T0+8):
        A=self.A; l=A.newlabel('L_ct')
        A(f"s_getpc_b64 {s(sp,2)}"); A.label(l)
        A(f"""s_lshl_b32 s{sBT}, s{sSLOT}, 2
        s_add_u32 s{sBT}, s{sBT}, s{sW}
        s_lshl_b32 s{sBT}, s{sBT}, 9
        v_and_b32 v{vT0}, 3, v0
        v_lshlrev_b32 v{vT0}, 7, v{vT0}
        v_add_u32 v{vT0}, s{sBT}, v{vT0}
        v_min_u32 v{vT0}, L_end-{l}-4, v{vT0}
        global_load_dword v{dst}, v{vT0}, {s(sp,2)}""")
    def mode(self):
        A=self.A; PD=self.PD
        A(f"s_mov_b32 s{T0+9}, 0x40404040")
        self.try_check(srd(SDBG),'0',PD+1,PD,f"s{T0+9}",mask=True)
        A(f"""s_mul_i32 s{T0+9}, s{sXCC}, 0x01010101
        v_and_b32 v{vT0}, 0x0f0f0f0f, v{PD+1}
        v_cmp_ne_u32 vcc, s{T0+9}, v{vT0}
        s_cmp_lg_u32 vcc_lo, 0
        s_cselect_b32 s{sMODE}, 1, 0""")
        if self.force_mixed: A(f"s_mov_b32 s{sMODE}, 1")
    XR,SL,WF,AH,AL,RR,TM,MD,MT=64,104,112,128,160,192,208,220,236
    def qlead(self): return self.P('ql',8)
    def xs(self,i): return v(self.XR+(i%10)*4,4)
    def qa_prefetch(self,n):
        A=self.A
        A(f"s_add_u32 s{T0+8}, s{sHI}, {LY.STX}\ns_mov_b32 s{sXN}, s{sHI}")
        self.xl(0)
        A(f"""buffer_load_dwordx4 {v(self.RR,4)}, v{vSLD}, {WS}, s{T0+8} offen sc1
        buffer_load_dwordx4 {v(self.RR+4,4)}, v{vSLD}, {WS}, s{T0+8} offen offset:16 sc1""")
        for i in range(1,n): self.xl(i)
    def xl(self,i):
        A=self.A
        if i==32: A(f"s_mov_b32 s{sXN}, s{sLO}")
        elif i%4==0 and i: A(f"s_add_u32 s{sXN}, s{sXN}, 4096")
        A(f"buffer_load_dwordx4 {self.xs(i)}, v{vL16}, {WS}, s{sXN} offen offset:{(i%4)*1024} sc1")
    def hstore(self,AC,hi):
        A=self.A
        A(f"s_sub_u32 s{T0+2}, s{sHB}, s{sW1K}\ns_add_u32 s{T0+2}, s{T0+2}, 7168" if hi else f"s_add_u32 s{T0+2}, s{sHB}, s{sW1K}")
        A(f"s_add_u32 s{T0+3}, s{T0+2}, 8192")
        A(f"buffer_store_dwordx4 {v(AC+4,4)}, v{vL16}, {WS}, s{T0+2} offen sc1")
        return A(f"buffer_store_dwordx4 {v(AC+16,4)}, v{vL16}, {WS}, s{T0+3} offen sc1")
    def scal(self,src,tb):
        TM,RR=self.TM,self.RR
        self.A(f"v_mov_b32 v{tb}, v{src}\nv_mov_b32 v{tb+1}, v{src}\nv_permlane32_swap_b32 v{tb}, v{tb+1}")
        self.ln_scalars(tb,tb+1,TM,TM+4,tb+2)
        self.A(f"""v_mov_b32 v{TM+1}, v{TM}
        v_mov_b32 v{TM+2}, v{TM}
        v_mov_b32 v{TM+3}, v{TM}
        v_mul_f32 v{TM+5}, 0x3eb8aa3b, v{TM+4}
        v_lshrrev_b32 v{tb+3}, 5, v{vL}
        v_lshlrev_b32 v{tb+3}, 4, v{tb+3}""")
        for q in range(16): self.A(f"ds_bpermute_b32 v{RR+q}, v{tb+3}, v{TM+4} offset:{((q>>2)*8+(q&3))*4}")
    def masks(self):
        TM,MD,MT=self.TM,self.MD,self.MT
        def f():
            self.A(f"""v_and_b32 v{vT0}, 31, v0
            v_lshrrev_b32 v{vT1}, 5, v0
            v_lshlrev_b32 v{TM+10}, 2, v{vT1}
            v_sub_u32 v{TM+10}, v{vT0}, v{TM+10}
            v_mov_b32 v{TM+11}, 0xf149f2ca""")
            for r in range(16):
                self.A(f"v_cmp_le_i32 vcc, {(r//4)*8+r%4}, v{TM+10}\nv_cndmask_b32_e64 v{MD+r}, v{TM+11}, 0, vcc\nv_cndmask_b32_e64 v{MT+r}, 0, v{TM+11}, vcc")
        m3=self.cap(f)
        return [m3[:5]]+[m3[5+3*r:8+3*r] for r in range(16)]
    def epi(self,AC):
        TM,RR=self.TM,self.RR
        for b in range(2):
            for r in range(8): self.A(f"v_mul_f32 v{AC+b*8+r}, v{AC+b*8+r}, v{TM+5-b}")
            for r in range(4): self.A(f"v_cvt_pk_bf16_f32 v{AC+b*4+r}, v{AC+b*8+2*r}, v{AC+b*8+2*r+1}")
        for r in range(16): self.A(f"v_mul_f32 v{AC+16+r}, v{AC+16+r}, v{RR+r}")
        for r in range(8): self.A(f"v_cvt_pk_bf16_f32 v{AC+16+r}, v{AC+16+2*r}, v{AC+16+2*r+1}")
        for r in range(4): self.A(f"v_permlane16_swap_b32 v{AC+16+r}, v{AC+20+r}")
    def wrd(self,ks,r):
        o=(ks>>1)*3072+(ks&1)*512
        return [f"ds_read_b64_tr_b16 {v(r,2)}, v{vW1} offset:{o}",f"ds_read_b64_tr_b16 {v(r+2,2)}, v{vW2} offset:{o}",
                f"ds_read_b64_tr_b16 {v(r+4,2)}, v{vWV} offset:{o}",f"ds_read_b64_tr_b16 {v(r+6,2)}, v{vWV} offset:{o+128}"]
    def augw(self,r): return [f"v_mov_b32 v{r}, v{CSQ}",f"v_mov_b32 v{r+4}, v{CSV}"]+[f"v_mov_b32 v{r+j}, 0" for j in (1,2,3,5,6,7)]
    def qmm(self,AC,b,wr,x,first):
        acc=v(AC+b*16,16); c='0' if first else acc
        return f"{MF} {acc}, {v(wr,4)}, {x}, {c}" if b==0 else f"{MF} {acc}, {x}, {v(wr+4,4)}, {c}"
    def qa0(self):
        A=self.A; WF,TM,RR,XF,AW,XA,WA,TN=self.WF,self.TM,self.RR,self.XF,self.AW,self.XA,self.WA,self.TN
        CQ,CV,SEL=self.CQ,self.CV,self.SEL; Q0,VV,Q1=128,144,160; T2=188; TB=108
        def rds(i):
            n=((i>>1)%self.NR)*2+(i&1); r=WF+(i&1)*8; b=WA+2*(n>=8); o=(n%8)*6336; x=XF+(i&1)*8
            return [f"ds_read_b64_tr_b16 {v(r,2)}, v{b} offset:{o}",f"ds_read_b64_tr_b16 {v(r+2,2)}, v{b} offset:{o+256}",
                    f"ds_read_b128 {v(x,4)}, v{XA+i%4} offset:{(i>>2)*4096}",f"ds_read_b128 {v(x+4,4)}, v{XA+6+i%4} offset:{(i>>2)*4096}",
                    f"ds_read_b64_tr_b16 {v(r+4,2)}, v{b+1} offset:{o}",f"ds_read_b64_tr_b16 {v(r+6,2)}, v{b+1} offset:{o+256}"]
        def sync(G_): A.wait_vm(self.wtag[G_]); A("s_barrier")
        def st():
            self.A(f"""v_and_b32 v{TB}, 31, v0
            v_lshlrev_b32 v{TB}, 3, v{TB}
            s_and_b32 s{T0+6}, s{sW}, 1
            s_lshl_b32 s{T0+6}, s{T0+6}, 8
            s_add_u32 s{T0+6}, s{T0+6}, {self.STA}
            v_add_u32 v{TB}, s{T0+6}, v{TB}
            v_xor_b32 v{TB+1}, 0x100, v{TB}
            ds_read_b64 {v(RR,2)}, v{TB}
            ds_read_b64 {v(RR+2,2)}, v{TB+1}""")
            self.ln_scalars(RR,RR+1,TM,TM+4,TB); self.ln_scalars(RR+2,RR+3,T2,TB+2,TB+1)
            for r in (1,2,3): self.A(f"v_mov_b32 v{TM+r}, v{TM}\nv_mov_b32 v{T2+r}, v{T2}")
            self.A(f"""v_mul_f32 v{TM+5}, 0x3eb8aa3b, v{TM+4}
            v_mul_f32 v{TB+3}, 0x3eb8aa3b, v{TB+2}
            s_lshl_b32 s{T0+6}, s{sW}, 8
            s_add_u32 s{T0+6}, s{T0+6}, {self.STA+512}
            v_lshlrev_b32 v{TB}, 2, v0
            v_add_u32 v{TB}, s{T0+6}, v{TB}
            ds_write_b32 v{TB}, v{TM+4}
            v_lshrrev_b32 v{TB+1}, 5, v{vL}
            v_lshlrev_b32 v{TB+1}, 4, v{TB+1}
            v_add_u32 v{TB+1}, s{T0+6}, v{TB+1}""")
            for q in range(4): self.A(f"ds_read_b128 {v(RR+4*q,4)}, v{TB+1} offset:{q*32}")
        A("s_waitcnt lgkmcnt(0)")
        sync(0)
        for x in rds(0): A(x)
        fill=self.cap(st)+[f"v_mov_b32 v{AW+j}, 0" for j in (1,2,3,5,6,7)]; wq=[]
        bs=self.S('qs','20-27+28-31*3'); fr=self.P('qf0',1)
        sK,sV,sR0,sR1=T0+6,T0+7,T0+1,T0+15
        fill+=self.cap(lambda: self.A(f"""s_lshl_b32 s{T0+8}, s{sSLOT}, 14
        s_sub_u32 s{T0+2}, s{sHB}, s{T0+8}
        s_lshl_b32 s{T0+8}, s{sTQ}, 11
        s_add_u32 s{sV}, s{T0+2}, s{T0+8}
        s_and_b32 s{T0+8}, s{sW}, 1
        s_lshl_b32 s{T0+8}, s{T0+8}, 10
        s_add_u32 s{sV}, s{sV}, s{T0+8}
        s_lshl_b32 s{T0+8}, s{sW}, 14
        s_add_u32 s{sK}, s{sV}, s{T0+8}
        s_and_b32 s{T0+8}, s{T0+8}, 0x8000
        s_add_u32 s{sV}, s{sV}, s{T0+8}
        s_lshl_b32 s{T0+8}, s{self.sCV}, 16
        s_add_u32 s{sV}, s{sV}, s{T0+8}
        s_add_u32 s{sV}, s{sV}, 8192
        s_lshl_b32 s{T0+8}, s{self.sCK}, 16
        s_add_u32 s{sK}, s{sK}, s{T0+8}
        s_lshl_b32 s{T0+2}, s{sTEAM}, 2
        s_add_u32 s{T0+2}, s{T0+2}, s{sTQ}
        s_lshl_b32 s{T0+2}, s{T0+2}, 1
        s_and_b32 s{T0+8}, s{sW}, 1
        s_add_u32 s{T0+2}, s{T0+2}, s{T0+8}
        s_mul_i32 s{sR0}, s{T0+2}, {LY.RS}
        s_xor_b32 s{T0+2}, s{T0+2}, 1
        s_mul_i32 s{sR1}, s{T0+2}, {LY.RS}
        s_add_u32 s{T0+8}, s{sW1K}, {LY.REC}
        s_add_u32 s{sR0}, s{sR0}, s{T0+8}
        s_add_u32 s{sR1}, s{sR1}, s{T0+8}
        v_mov_b32 v{TN}, s{sCW}
        v_mov_b32 v{TN+1}, s{self.sCK}
        v_bfe_u32 v{TB}, v0, 4, 2
        v_cmp_eq_u32 vcc, 1, v{TB}
        v_cndmask_b32 v{TN}, v{TN}, v{TN+1}, vcc
        v_lshlrev_b32 v{TN}, 11, v{TN}
        v_lshl_add_u32 v{TN}, v0, 2, v{TN}
        v_lshlrev_b32 v{TN+1}, 2, v0
        s_mul_i32 s{T0+2}, s{sTEAM}, {8*LY.RS}
        s_lshl_b32 s{T0+8}, s{sW}, 9
        s_add_u32 s{T0+2}, s{T0+2}, s{T0+8}
        s_add_u32 s{T0+2}, s{T0+2}, {LY.REC+LY.CSOFF}
        s_lshl_b32 s{T0+8}, s{self.sCV}, 11
        s_add_u32 s{T0+8}, s{T0+8}, s{T0+2}"""))
        fl=[]
        for x in fill: fl+= x if isinstance(x,list) else [x]
        fill=fl
        for i in range(32):
            self.fine('qa',i,2)
            r=WF+(i&1)*8; x=XF+(i&1)*8; c=lambda acc,n: v(acc,n) if i else '0'
            big=[f"{MF} {v(Q0,16)}, {v(r,4)}, {v(x,4)}, {c(Q0,16)}",f"{MF} {v(Q1,16)}, {v(r,4)}, {v(x+4,4)}, {c(Q1,16)}",f"{MF} {v(VV,16)}, {v(x,4)}, {v(r+4,4)}, {c(VV,16)}"]
            small=[f"{MS} {v(CQ,4)}, {v(SEL,4)}, {v(r,4)}, {c(CQ,4)}",f"{MS} {v(CV,4)}, {v(SEL,4)}, {v(r+4,4)}, {c(CV,4)}"]
            if i==31:
                assert not fill
                for y in small+big[:1]: A(y)
                self.bg(bs.get(i,0))
                self.cs_pack(CQ,CQ+1); A(f"v_mov_b32 v{AW}, v{CQ}"); A(big[1])
                self.cs_pack(CV,CV+1); A(f"v_mov_b32 v{AW+4}, v{CV}"); A(big[2])
                break
            nx=rds(i+1)
            A(big[0])
            if i&1:
                assert not any(g<=(i+1)>>1 for g in range(self.wg) if g not in self.wtag)
                sync((i+1)>>1)
                if self.wg<16 and self.wg<=(i>>1)+self.NR-1: self.wgrp(wq)
            self.pop(nx,4)
            if i>=1: self.pop(fill,fr)
            A(big[1]); self.pop(nx,2)
            if not i&1: self.pop(wq)
            if i>=1: self.pop(fill,fr)
            A(big[2])
            self.pop(wq)
            if i==self.P('qr',18):
                A(f"""buffer_load_dwordx4 {v(RES,4)}, v{vROW}, {srd(SX)}, s{T0+4} offen
                buffer_load_dwordx4 {v(RES+4,4)}, v{vROW}, {srd(SX)}, s{T0+5} offen""")
            if i==self.P('qm',19): self.try_issue(srd(SDBG),'0',self.PD+1,self.PD)
            if i==self.P('pt',99): self.touch(0)
            if i==self.P('pt2',99): self.touch(1)
            self.bg(bs.get(i,0))
            if i>=1: self.pop(fill,fr)
            A(small[0])
            if i>=1: self.pop(fill,1)
            A(small[1])
        assert self.wg==16
        A(f"{MF} {v(Q0,16)}, {v(AW,4)}, {v(TM,4)}, {v(Q0,16)}")
        A(f"{MF} {v(Q1,16)}, {v(AW,4)}, {v(T2,4)}, {v(Q1,16)}")
        A(f"{MF} {v(VV,16)}, {v(TM,4)}, {v(AW+4,4)}, {v(VV,16)}")
        self.stamp('qa.mm')
        self.mode()
        self.stamp('qa.md')
        def stq(reg,so,fl=''): return A(f"buffer_store_dwordx4 {v(reg,4)}, v{vL16}, {WS}, s{so} offen{fl}")
        cf=' sc1' if self.P('csc',1) else ''
        A(f"""buffer_store_dword v{CQ}, v{TN}, {WS}, s{T0+2} offen{cf}
        buffer_store_dword v{CV}, v{TN+1}, {WS}, s{T0+8} offen offset:256{cf}
        s_xor_b32 s{T0+9}, s{sK}, 1024
        s_add_u32 s{T0+12}, s{sV}, 16384
        s_lshl_b32 s{T0+10}, s{self.sCK}, 12
        s_lshl_b32 s{T0+11}, s{sCW}, 12
        s_add_u32 s{T0+11}, s{T0+11}, {LY.HOFF}""")
        xv=self.P('xv',3); xf=' '+self.o.get('xf','sc1').replace('_',' ') if xv in (2,3) else ''
        for AC,sc,rec in ((Q0,TM+4,sR0),(Q1,TB+2,sR1)):
            for b in (1,0):
                for r in range(8): A(f"v_mul_f32 v{AC+b*8+r}, v{AC+b*8+r}, v{sc+1-b}")
                for r in range(4): A(f"v_cvt_pk_bf16_f32 v{AC+b*8+r}, v{AC+b*8+2*r}, v{AC+b*8+2*r+1}")
                A(f"s_add_u32 s{T0+13}, s{rec}, s{T0+11-b}")
                if b and xv==3: stq(AC+8,sK if AC==Q0 else T0+9,' sc1')
                else: stq(AC+b*8,T0+13,xf)
        for r in range(16): A(f"v_mul_f32 v{VV+r}, v{VV+r}, v{RR+r}")
        for r in range(8): A(f"v_cvt_pk_bf16_f32 v{VV+r}, v{VV+2*r}, v{VV+2*r+1}")
        for r in range(4): A(f"v_permlane16_swap_b32 v{VV+r}, v{VV+4+r}")
        A(f"""s_and_b32 s{T0+10}, s{sW1K}, 1024
        s_sub_u32 s{T0+13}, s{sR0}, s{T0+10}
        s_lshl_b32 s{T0+10}, s{self.sCV}, 12
        s_add_u32 s{T0+13}, s{T0+13}, s{T0+10}
        s_add_u32 s{T0+13}, s{T0+13}, {LY.VOFF}""")
        if xv==3: stq(VV,sV,' sc1'); tp=stq(VV+4,T0+12,' sc1')
        else: stq(VV,T0+13,xf); tp=stq(VV+4,T0+13,' offset:1024'+xf)
        self.th0=tp
        def dup():
            for reg,so in ((Q0+8,sK),(Q1+8,T0+9),(VV,sV),(VV+4,T0+12)): self.th0=stq(reg,so,' sc1')
        if xv in (1,2): dup()
        self.tq0=tp
        self.bg(self.P('b1',0)); self.tgw(self.P('t1',0))
        self.stamp('qa.st')
        self.conv_setup(self.CR)
        A(f"s_add_u32 s{T0+13}, s{sLW}, 32768")
        for r in range(3): A(f"v_subrev_u32 v{self.CR+r}, s{T0+13}, v{self.CR+r}")
        self.cv(self.P('c0',0))
        self.pop(self.masks(),99); self.att_addr()
    def qa(self):
        if self.L==0: return self.qa0()
        A=self.A; SL,WF,RR,TM=self.SL,self.WF,self.RR,self.TM
        LEAD=self.qlead()
        def scal(src): self.sum8(src); self.scal(src,TM+6)
        def rd(i): return self.augw(WF+(i&1)*8) if i%33==32 else self.wrd(i%33,WF+(i&1)*8)
        mh=self.masks()
        fill=self.cap(lambda: scal(RR))
        for x in rd(0): A(x)
        ht=[None]; PX=SL+7
        KT=32-LEAD-self.P('qp',6); fr=self.P('qf',2)
        for i in range(66):
            p,ks=divmod(i,33); AC=self.AL if p else self.AH; wr=WF+(i&1)*8
            xi=p*32+ks
            self.fine('qa',i)
            x=self.xs(xi) if ks<32 else v(TM,4)
            nx=rd(i+1) if i<65 else []
            if i==9:
                self.stamp('qa.9')
                A.wait_vm(self.tlate); A("s_barrier")
                self.stamp('qa.9b')
            if i==33:
                assert not fill and not mh
                self.stamp('qa.h')
                fill=self.cap(lambda: self.epi(self.AH))+[lambda: ht.__setitem__(0,self.hstore(self.AH,True))]+self.cap(lambda: scal(SL))
                fill+=self.cap(self.att_addr)+[self.halo_try]
            if i==46: self.stamp('qa.46')
            for b in range(2):
                A(self.qmm(AC,b,wr,x,ks==0))
                self.pop(nx,len(nx)//(2-b) if len(nx)<8 else 4)
                if b==0 and ks<32 and xi+LEAD<64:
                    if xi+LEAD==32:
                        self.try_check(WS,f"s{sTF}",PX,vPX,self.F(F_X2)); self.acquire()
                    self.xl(xi+LEAD)
                    if xi+LEAD==32:
                        A(f"""s_add_u32 s{T0+8}, s{sLO}, {LY.STX}
                        buffer_load_dwordx4 {v(SL,4)}, v{vSLD}, {WS}, s{T0+8} offen sc1
                        buffer_load_dwordx4 {v(SL+4,4)}, v{vSLD}, {WS}, s{T0+8} offen offset:16 sc1""")
                if i>=2 and not (i==33 and b==0): self.pop(fill,fr if p else 2)
                if p==0 and not fill: self.pop(mh)
            if i==10: self.publish(self.F(F_X2),self.txlo)
            if i==KT: self.try_issue(WS,f"s{sTF}",PX,vPX)
            if i==self.P('qh',58): self.hpublish(1,ht[0])
        self.pop(fill,99)
        self.stamp('qa.mm')
        self.epi(self.AL)
    S0,P0,KFR,AD,VFR,OB,OA,HPA,HPD,PLA=64,96,112,216,144,176,192,214,215,120
    OF=[132,136,140,164,168,172,208,212]
    def att_addr(self):
        AD=self.AD
        self.A(f"""s_sub_u32 s{T0+3}, 7168, s{sW1K}
        v_add_u32 v{AD}, {AK}, v{vL16}
        v_add_u32 v{AD+1}, s{T0+3}, v{AD}
        v_add_u32 v{AD}, s{sW1K}, v{AD}
        v_and_b32 v{AD+2}, 15, v0
        v_lshlrev_b32 v{AD+2}, 4, v{AD+2}
        v_lshrrev_b32 v{vT0}, 5, v0
        v_lshl_add_u32 v{AD+2}, v{vT0}, 9, v{AD+2}
        v_bfe_u32 v{vT0}, v0, 4, 1
        v_lshl_add_u32 v{AD+2}, v{vT0}, 14, v{AD+2}
        v_add_u32 v{AD+2}, {AV}, v{AD+2}
        v_add_u32 v{AD+3}, s{T0+3}, v{AD+2}
        v_add_u32 v{AD+2}, s{sW1K}, v{AD+2}
        v_and_b32 v{self.HPA}, 3, v0
        v_lshlrev_b32 v{self.HPA}, 2, v{self.HPA}""")
    def halo_try(self): self.try_issue(WS,f"s{sHF}",self.HPD,self.HPA)
    def halo_get(self,hi):
        A=self.A; r=[None]
        def f():
            self.try_check(WS,f"s{sHF}",self.HPD,self.HPA,2*self.L+(1 if hi else 2)); self.acquire()
            o=4096 if hi else 0
            r[0]=A(f"""s_add_u32 s{T0+5}, s{sHB}, s{sW1K}
            s_sub_u32 s{T0+5}, s{T0+5}, {524288-o}
            s_add_u32 s{T0+6}, s{T0+5}, 8192
            s_add_u32 m0, s{sW1K}, {AK+o}
            buffer_load_dwordx4 v{vL16}, {WS}, s{T0+5} offen sc1 lds
            s_add_u32 m0, s{sW1K}, {AV+o}
            buffer_load_dwordx4 v{vL16}, {WS}, s{T0+6} offen sc1 lds""")
        self.cond(f"s_cmp_eq_u32 s{sTEAM}, 0",f)
        return r[0]
    def halo_all(self):
        A=self.A; r=[None]
        def f():
            self.try_check(WS,f"s{T0+13}",self.HPD,self.HPA,2); self.acquire()
            A(f"s_add_u32 s{T0+5}, s{sHB}, s{sW1K}")
            for o,d in ((4096,AK+4096),(8192+4096,AV+4096),(0,AK),(8192,AV)):
                r[0]=A(f"s_sub_u32 s{T0+6}, s{T0+5}, {524288-o}\ns_add_u32 m0, s{sW1K}, {d}\nbuffer_load_dwordx4 v{vL16}, {WS}, s{T0+6} offen sc1 lds")
        self.cond(f"s_cmp_eq_u32 s{sTEAM}, 0",f)
        return r[0]
    def dump(self,stage):
        A=self.A; D=216; T=121; v=a
        A(f"""s_lshl_b32 s{T0+8}, s{sTEAM}, 1
        s_lshr_b32 s{T0+9}, s{sW}, 1
        s_add_u32 s{T0+8}, s{T0+8}, s{T0+9}
        s_and_b32 s{T0+9}, s{sW}, 1""")
        if stage==0:
            A(f"""s_mul_i32 s{T0+8}, s{T0+8}, 98304
            s_lshl_b32 s{T0+10}, s{sSLOT}, 5
            s_add_u32 s{T0+8}, s{T0+8}, s{T0+10}
            s_lshl_b32 s{T0+10}, s{T0+9}, 11
            s_add_u32 s{T0+10}, s{T0+10}, s{T0+8}
            s_mul_i32 s{T0+9}, s{T0+9}, 49152
            s_add_u32 s{T0+9}, s{T0+9}, s{T0+8}
            v_lshrrev_b32 v{T}, 1, v0
            v_xor_b32 v{T+1}, 4, v{T}
            v_mul_u32_u24 v{T}, 3072, v{T}
            v_mul_u32_u24 v{T+1}, 3072, v{T+1}
            v_and_b32 v{T+2}, 1, v0
            v_lshl_add_u32 v{T}, v{T+2}, 4, v{T}
            v_lshl_add_u32 v{T+1}, v{T+2}, 4, v{T+1}
            buffer_load_dwordx4 {v(D,4)}, v{T}, {srd(SWQ)}, s{T0+10} offen
            s_mov_b64 exec, 0xffffffff
            buffer_load_dwordx4 {v(D+4,4)}, v{T+1}, {srd(SWQ)}, s{T0+9} offen offset:1024
            s_mov_b64 exec, -1""")
        else:
            A(f"""s_mul_i32 s{T0+8}, s{T0+8}, 3072
            s_mul_i32 s{T0+10}, s{sSLOT}, 49152
            s_add_u32 s{T0+8}, s{T0+8}, s{T0+10}
            s_add_u32 s{T0+8}, s{T0+8}, {LY.WQI}
            s_lshl_b32 s{T0+10}, s{T0+9}, 11
            s_add_u32 s{T0+10}, s{T0+10}, s{T0+8}
            s_lshl_b32 s{T0+9}, s{T0+9}, 9
            s_add_u32 s{T0+9}, s{T0+9}, s{T0+8}
            buffer_store_dwordx4 {v(D,4)}, v{vL16}, {WS}, s{T0+10} offen sc1
            s_mov_b64 exec, 0xffffffff""")
            self.tdump=A(f"buffer_store_dwordx4 {v(D+4,4)}, v{vL16}, {WS}, s{T0+9} offen offset:1024 sc1")
            A("s_mov_b64 exec, -1")
    def wo_fetch(self,B,rec,regs_):
        for k in range(8):
            if k%2==0: B(f"s_add_u32 s{T0+8}, s{rec}, s{sOF+k//2}")
            B(f"buffer_load_dwordx4 {v(regs_[k],4)}, v{vL16}, {WS}, s{T0+8} offen offset:{(k%2)*1024} sc1")
    def att(self):
        A=self.A; L=self.L
        S0,P0,KFR,AD,VFR,OB,OA,MD,MT=self.S0,self.P0,self.KFR,self.AD,self.VFR,self.OB,self.OA,self.MD,self.MT
        QB,QA=self.AH,self.AL
        A(f"""s_cmp_eq_u32 s{sTEAM}, 0
        s_cselect_b32 s{T0+3}, 0, s{sONE}
        s_lshl_b32 s{T0+2}, s{sW}, 11
        s_add_u32 s{T0+2}, s{T0+2}, {AO}
        v_add_u32 v{S0+8}, s{T0+2}, v{vL16}
        s_mov_b32 s{sSLOW}, 0""")
        for r in range(4): A(f"v_mov_b32 v{S0+r}, s{sONE}\nv_mov_b32 v{S0+4+r}, s{T0+3}")
        A("s_barrier"); self.ldsfree=True
        self.bg(self.P('b15',0))
        if L: hg=self.halo_get(True)
        if L: A(f"""ds_write_b128 v{AD+1}, {v(QB+4,4)} offset:8192
        ds_write_b128 v{AD+1}, {v(QB+16,4)} offset:{8192+16384}""")
        A(f"""ds_write_b128 v{S0+8}, {v(S0,4)} offset:8192
        ds_write_b128 v{S0+8}, {v(S0,4)} offset:9216""")
        if L: A(f"""ds_write_b128 v{AD}, {v(QA+4,4)} offset:8192
        ds_write_b128 v{AD}, {v(QA+16,4)} offset:{8192+16384}""")
        A(f"""ds_write_b128 v{S0+8}, {v(S0+4,4)}
        ds_write_b128 v{S0+8}, {v(S0+4,4)} offset:1024""")
        def z():
            A(f"v_subrev_u32 v{S0+8}, {AO-AK}, v{S0+8}")
            for j in range(2):
                A(f"ds_write_b128 v{S0+8}, {v(S0+4,4)} offset:{j*1024}\nds_write_b128 v{S0+8}, {v(S0+4,4)} offset:{16384+j*1024}")
        self.cond(f"s_cmp_lg_u32 s{sTEAM}, 0",z)
        if L: hl=self.hstore(self.AL,False)
        else:
            HPA,HPD=self.HPA,self.HPD
            A(f"""v_and_b32 v{S0+9}, 15, v0
            v_lshlrev_b32 v{S0+9}, 2, v{S0+9}
            v_lshrrev_b32 v{HPA}, 4, v0
            v_min_u32 v{HPA}, 2, v{HPA}
            v_mul_u32_u24 v{HPA}, {8-self.P('mx',3)}, v{HPA}
            v_add_u32 v{HPA}, s{sCW}, v{HPA}
            v_and_b32 v{HPA}, 7, v{HPA}
            v_lshl_add_u32 v{HPA}, v{HPA}, 6, v{S0+9}
            s_lshl_b32 s{T0+9}, s{sSLOT}, 4
            s_sub_u32 s{T0+13}, s{sHF}, s{T0+9}
            s_lshl_b32 s{T0+9}, s{sE}, 6
            v_add_u32 v{S0+9}, s{T0+9}, v{S0+9}
            v_lshlrev_b32 v{S0+10}, 2, v0
            v_cmp_gt_u32 vcc, 32, v0
            v_cndmask_b32 v{S0+9}, v{S0+10}, v{S0+9}, vcc
            s_lshl_b32 s{T0+4}, s{sSLOT}, 10
            s_add_u32 s{T0+5}, s{T0+4}, s{sLO}
            s_add_u32 s{T0+6}, s{T0+5}, {4*LY.RS}
            s_add_u32 s{T0+9}, s{T0+5}, {LY.VOFF}
            s_add_u32 s{T0+10}, s{T0+6}, {LY.VOFF}
            s_add_u32 s{T0+11}, s{T0+5}, {LY.HOFF}""")
            if self.P('xv',3)==3: A(f"""s_add_u32 s{T0+5}, s{sHB}, s{sW1K}
            s_add_u32 s{T0+6}, s{T0+5}, 4096
            s_add_u32 s{T0+9}, s{T0+5}, 8192
            s_add_u32 s{T0+10}, s{T0+5}, {8192+4096}""")
            A(f"""s_add_u32 s{T0+12}, s{T0+4}, s{sHI}
            s_add_u32 s{T0+12}, s{T0+12}, {LY.HOFF}
            s_mul_i32 s{T0+8}, s{sTEAM}, {8*LY.RS}
            s_lshr_b32 s{T0+4}, s{T0+4}, 1
            s_add_u32 s{T0+8}, s{T0+8}, s{T0+4}
            s_add_u32 s{T0+8}, s{T0+8}, {LY.REC+LY.CSOFF}""")
            self.publish(self.F(F_X1),self.tq0)
            self.hpublish(2,self.th0)
            self.stamp('att.p')
            self.try_issue(WS,f"s{sTF}",HPD,HPA)
            self.tgw(self.P('t2',0)); self.cv(self.P('c1',8))
            self.try_check(WS,f"s{sTF}",HPD,HPA,self.F(F_X1)); self.acquire()
            self.stamp('att.c')
            A(f"buffer_load_dwordx4 {v(QB,4)}, v{vL16}, {WS}, s{T0+12} offen sc1")
            for so,o in ((T0+6,AK+8192+4096),(T0+10,AV+8192+4096),(T0+5,AK+8192),(T0+9,AV+8192)):
                tk=A(f"s_add_u32 m0, s{sW1K}, {o}\nbuffer_load_dwordx4 v{vL16}, {WS}, s{so} offen sc1 lds")
            A(f"buffer_load_dwordx4 {v(QA,4)}, v{vL16}, {WS}, s{T0+11} offen sc1")
            def csl():
                A(f"""buffer_load_dword v{CSQ}, v{CSQ}, {WS}, s{sQ} offen sc1
                buffer_load_dword v{CSV}, v{CSV}, {WS}, s{sQ} offen offset:256 sc1""")
            A(f"v_mov_b32 v{CSQ}, v{S0+10}\nv_mov_b32 v{CSV}, v{S0+9}\ns_mov_b32 s{sQ}, s{T0+8}")
            self.try_issue(WS,f"s{T0+13}",HPD,HPA)
            self.bg(self.P('b2',0)); self.cv(self.P('c2',0))
            if self.P('ag0',-1)<0: hg=self.halo_all()
            if self.P('acs',-1)<0: csl()
            if self.P('ad0',-1)<0: self.dump(0)
            if self.P('at0',-1)<0: self.touch2()
            if self.P('ct1',0): self.ctouch(124,T0+8)
            if self.P('bw',0):
                A("s_waitcnt vmcnt(0)\ns_barrier"); self.stamp('bw.0')
                self.tgw(self.P('bw',0)-1); self.stamp('bw.ti'); A("s_waitcnt vmcnt(0)"); self.stamp('bw.t')
                for _ in range(self.P('bwd',0)): A("s_nop 15\n"*16)
                self.stamp('bw.d')
                self.bg(self.P('bwn',28)); self.stamp('bw.i'); A("s_waitcnt vmcnt(0)"); self.stamp('bw.w')
            self.bg(self.P('b3',6)); self.tgw(self.P('t3',0)); self.cv(self.P('c3',0))
            self.stamp('att.h')
            A.wait_vm(tk)
            self.stamp('att.w')
        A(f"""s_lshl_b32 s{T0+4}, s{sSLOT}, 10
        s_add_u32 s{T0+4}, s{T0+4}, {LY.HOFF}
        s_add_u32 s{T0+2}, s{T0+4}, s{sHI}
        s_add_u32 s{T0+3}, s{T0+4}, s{sLO}""")
        sOBa,sOAa=T0+2,T0+3
        A("s_waitcnt lgkmcnt(0)\ns_barrier")
        self.stamp('att.kv')
        order=[('b',d) for d in range(9)]+[('a',d) for d in range(9)]
        N=len(order); seen=set(); HW=(4,13) if L else (4,)
        def rk(n):
            q,d=order[n]; A(f"ds_read_b128 {v(KFR+(n&1)*4,4)}, v{AD+(q=='b')} offset:{(8-d)*1024}")
        def rv(n,f):
            q,d=order[n]
            A(f"ds_read_b128 {v(VFR+(n&1)*8+f*4,4)}, v{AD+2+(q=='b')} offset:{(8-d)*1024+f*256}")
        def sm(n):
            q,d=order[n]; c=v(MD,16) if d==0 else (v(MT,16) if d==8 else '0')
            A(f"{MF} {v(S0+(n&1)*16,16)}, {v(KFR+(n&1)*4,4)}, {v(QB if q=='b' else QA,4)}, {c}")
        def pv(n,f):
            q,d=order[n]; O=OB if q=='b' else OA
            c=v(O,16) if (q in seen) else '0'; seen.add(q)
            A(f"{MF} {v(O,16)}, {v(VFR+(n&1)*8+f*4,4)}, {v(P0+(n&1)*8+f*4,4)}, {c}")
        def fin(O,so):
            A(f"v_rcp_f32 v{O+9}, v{O+8}")
            for r in range(8): A(f"v_mul_f32 v{O+r}, v{O+r}, v{O+9}")
            for r in range(4): A(f"v_cvt_pk_bf16_f32 v{O+12+r}, v{O+2*r}, v{O+2*r+1}")
            tg=A(f"buffer_store_dwordx4 {v(O+12,4)}, v{vL16}, {WS}, s{so} offen")
            A(f"v_mov_b32 v{O+10}, 0")
            for r in range(4): A(f"v_dot2c_f32_bf16 v{O+10}, s{sONE}, v{O+12+r}")
            A(f"v_fma_f32 v{O+10}, v{O+10}, 0, v{O+8}\nv_subrev_u32 v{O+10}, 0x30800000, v{O+10}\nv_cmp_le_u32 vcc, 0x28000000, v{O+10}")
            A(f"s_cmp_lg_u64 vcc, 0\ns_cselect_b32 s{sSLOW}, 1, s{sSLOW}")
            if self.P('fb',0): A(f"s_mov_b32 s{sSLOW}, 1")
            return tg
        bs=self.S('as','0-8'); os_=self.S('ao','6-9'); ts=self.S('ts',''); cs_=self.S('ac',''); tb=None
        def bgn(n,k):
            c=bs.get(n,0); self.bg((c+2-k)//3)
            c=os_.get(n,0); self.wout((c+2-k)//3)
            if k==0: self.tgw(ts.get(n,0))
            if k==1: self.cv(cs_.get(n,0))
        rk(0); rk(1); rv(0,0); rv(0,1); sm(0)
        for n in range(N):
            S=S0+(n&1)*16; P=P0+(n&1)*8
            self.fine('att',n,1)
            ex=lambda a_,b_: [A(f"v_exp_f32 v{S+r}, v{S+r}") for r in range(a_,b_)]
            cv=lambda a_,b_: [A(f"v_cvt_pk_bf16_f32 v{P+r}, v{S+2*r}, v{S+2*r+1}") for r in range(a_,b_)]
            if n in HW:
                A.wait_vm(hg); A("s_barrier"); rk(n+1)
                self.stamp('att.hw')
            elif n+1<N: sm(n+1)
            if n+2<N and n+1 not in HW: rk(n+2)
            if n+1<N: rv(n+1,0)
            ex(0,4)
            if n>0: pv(n-1,1)
            if n+1<N: rv(n+1,1)
            ex(4,8)
            if n in HW: sm(n+1)
            bgn(n,0)
            cv(0,4); ex(8,12); pv(n,0)
            bgn(n,1)
            ex(12,16)
            bgn(n,2)
            cv(4,8)
            if L:
                if n==self.P('ap',5): self.hpublish(2,hl)
                if n==self.P('ah',8): self.halo_try()
                if n==self.P('ag',10): hg=self.halo_get(False)
            else:
                if n==self.P('ag0',-1): hg=self.halo_all()
                if n==self.P('acs',-1): csl()
                if n==self.P('at0',-1): self.touch2()
                if n==self.P('ad0',-1): self.dump(0)
                if n==self.P('ad1',8): self.dump(1)
            if n==9: tb=fin(OB,sOBa)
            if n==self.P('aq',13): self.cond(f"s_cmp_lg_u32 s{sSLOW}, 0",lambda: self.publish(self.F(F_ATB),tb))
            if n==self.P('aw',15): self.try_issue(WS,f"s{sTF}",self.PLA,vPA)
        def wf():
            self.try_check(WS,f"s{sTF}",self.PLA,vPA,self.F(F_ATB)); self.acquire()
            self.wo_fetch(A,sRHI,self.OF)
        A(f"s_mov_b32 s{T0+7}, s{sSLOW}")
        self.cond(f"s_cmp_lg_u32 s{sSLOW}, 0",wf)
        pv(N-1,1)
        self.stamp('att.mm')
        self.ta=fin(OA,sOAa)
        self.bg(self.P('be',5))
        A(f"s_cmp_lg_u32 s{sSLOW}, 0\ns_cbranch_scc1 L_fb{L}")
        A.label(f'L_fbr{L}')
        self.att_exact()
    def att_exact(self):
        S,P,KFR,AD,VFR,O,MD,MT=self.S0,self.P0,self.KFR,self.AD,self.VFR,self.OA,self.MD,self.MT; L=self.L
        B=Asm(); B._n=90000+1000*L; sD,sM=T0+5,T0+6; M=S+16; vK=S+17; vV=S+18; T=S+19
        B.label(f'L_fb{L}'); B("s_nop 7\ns_nop 7")
        def scores(Q):
            l0=B.newlabel('L_f0'); l8=B.newlabel('L_f8'); le=B.newlabel('L_fe')
            B(f"s_waitcnt lgkmcnt(0)\ns_cmp_eq_u32 s{sD}, 0\ns_cbranch_scc1 {l0}\ns_cmp_eq_u32 s{sD}, 8\ns_cbranch_scc1 {l8}")
            B(f"{MF} {v(S,16)}, {v(KFR,4)}, {v(Q,4)}, 0\ns_branch {le}")
            B.label(l0); B(f"{MF} {v(S,16)}, {v(KFR,4)}, {v(Q,4)}, {v(MD,16)}\ns_branch {le}")
            B.label(l8); B(f"{MF} {v(S,16)}, {v(KFR,4)}, {v(Q,4)}, {v(MT,16)}")
            B.label(le); B("s_nop 7\ns_nop 7")
        for q,Q,so in ((1,self.AH,T0+2),(0,self.AL,T0+3)):
            B(f"s_sub_u32 s{sM}, 7, s{sW}" if q else f"s_mov_b32 s{sM}, s{sW}")
            B(f"s_cmp_eq_u32 s{sTEAM}, 0\ns_cselect_b32 s{sM}, s{sM}, 8")
            B(f"s_mov_b32 s{sD}, 0\nv_mov_b32 v{M}, 0xff800000\nv_add_u32 v{vK}, 8192, v{AD+q}")
            l=B.newlabel('L_fa'); B.flush_hz(); B.label(l)
            B(f"ds_read_b128 {v(KFR,4)}, v{vK}")
            scores(Q)
            for r in range(8): B(f"v_max3_f32 v{M}, v{S+2*r}, v{S+2*r+1}, v{M}")
            B(f"v_subrev_u32 v{vK}, 1024, v{vK}\ns_add_u32 s{sD}, s{sD}, 1\ns_cmp_le_u32 s{sD}, s{sM}")
            B.flush_hz(); B(f"s_cbranch_scc1 {l}")
            B(f"v_mov_b32 v{T}, v{M}\nv_permlane32_swap_b32 v{M}, v{T}\nv_max_f32 v{M}, v{M}, v{T}")
            B(f"s_mov_b32 s{sD}, 0\nv_add_u32 v{vK}, 8192, v{AD+q}\nv_add_u32 v{vV}, 8192, v{AD+2+q}")
            for r in range(16): B(f"v_mov_b32 v{O+r}, 0")
            l=B.newlabel('L_fc'); B.flush_hz(); B.label(l)
            B(f"ds_read_b128 {v(KFR,4)}, v{vK}\nds_read_b128 {v(VFR,4)}, v{vV}\nds_read_b128 {v(VFR+4,4)}, v{vV} offset:256")
            scores(Q)
            for r in range(16): B(f"v_sub_f32 v{S+r}, v{S+r}, v{M}")
            for r in range(16): B(f"v_exp_f32 v{S+r}, v{S+r}")
            for r in range(8): B(f"v_cvt_pk_bf16_f32 v{P+r}, v{S+2*r}, v{S+2*r+1}")
            for f in range(2): B(f"{MF} {v(O,16)}, {v(VFR+f*4,4)}, {v(P+f*4,4)}, {v(O,16)}")
            B(f"v_subrev_u32 v{vK}, 1024, v{vK}\nv_subrev_u32 v{vV}, 1024, v{vV}\ns_add_u32 s{sD}, s{sD}, 1\ns_cmp_le_u32 s{sD}, s{sM}")
            B.flush_hz(); B(f"s_cbranch_scc1 {l}")
            B(f"v_rcp_f32 v{O+9}, v{O+8}")
            for r in range(8): B(f"v_mul_f32 v{O+r}, v{O+r}, v{O+9}")
            for r in range(4): B(f"v_cvt_pk_bf16_f32 v{O+12+r}, v{O+2*r}, v{O+2*r+1}")
            B("s_waitcnt vmcnt(0)")
            B(f"buffer_store_dwordx4 {v(O+12,4)}, v{vL16}, {WS}, s{so} offen\ns_waitcnt vmcnt(0)")
        p1,p2,p3,p4=[B.newlabel('L_fp') for _ in range(4)]
        B(f"""v_mov_b32 v{vP1}, {self.F(F_ATA)}
        buffer_wbl2 sc1
        s_waitcnt vmcnt(0)
        s_mov_b64 exec, 1
        s_cmp_lg_u32 s{sMODE}, 0
        s_cbranch_scc1 {p1}
        buffer_store_dword v{vP1}, off, {WS}, s{sMYF}
        s_branch {p2}""")
        B.label(p1); B(f"buffer_store_dword v{vP1}, off, {WS}, s{sMYF} sc1")
        B.label(p2); B(f"s_mov_b64 exec, -1\ns_cmp_eq_u32 s{T0+7}, 0\ns_cbranch_scc1 L_fbr{L}")
        B.label(p3)
        B(f"""buffer_load_dword v{self.PLA}, v{vPA}, {WS}, s{sTF} offen sc1
        s_waitcnt vmcnt(0)
        v_cmp_gt_u32 vcc, {self.F(F_ATB)}, v{self.PLA}
        s_nop 1
        s_cbranch_vccz {p4}
        s_sub_u32 s{sTO}, s{sTO}, 1
        s_cbranch_scc0 {p3}
        s_endpgm""")
        B.label(p4); B("buffer_inv sc1\ns_waitcnt vmcnt(0)")
        self.wo_fetch(B,sRHI,self.OF)
        B(f"s_waitcnt vmcnt(0)\ns_branch L_fbr{L}")
        self.tail.append(B.text().rstrip("\n"))
    def red_write(self,acc):
        for cb in range(2):
            for rq in range(4): self.A(f"ds_write_b128 v{vRW1 if rq&1 else vRW0}, {v(acc+cb*16+rq*4,4)} offset:{cb*4096+rq*1024}")
    def red_read(self,R):
        for p in range(4):
            for e in range(2): self.A(f"ds_read_b128 {v(R+(p*2+e)*4,4)}, v{vRRD} offset:{p*8192+e*512}")
    def red_fin(self,rnd,R,scale):
        rs=RES+rnd*4; L=[]
        for n in range(8): L.append(f"v_add_f32 v{R+n}, v{R+n}, v{R+8+n}")
        for n in range(8): L.append(f"v_add_f32 v{R+16+n}, v{R+16+n}, v{R+24+n}")
        for n in range(4): L.append(f"v_lshlrev_b32 v{R+8+2*n}, 16, v{rs+n}"); L.append(f"v_and_b32 v{R+9+2*n}, 0xffff0000, v{rs+n}")
        for n in range(8): L.append(f"v_add_f32 v{R+n}, v{R+n}, v{R+16+n}")
        for n in range(8):
            L.append(f"v_fma_f32 v{R+n}, v{R+n}, v{scale}, v{R+8+n}" if scale is not None else f"v_add_f32 v{R+n}, v{R+n}, v{R+8+n}")
        for n in range(4): L.append(f"v_cvt_pk_bf16_f32 v{rs+n}, v{R+2*n}, v{R+2*n+1}")
        return L
    GA,GW,GAD,GZ,GM,GT,GX=64,128,160,164,180,184,188
    def wo(self):
        A=self.A; A1,A2,F2=64,96,[144+4*k for k in range(4)]+[176+4*k for k in range(3)]+[220]
        PL=128; L=self.L
        if L==0: A.wait_vm(self.tdump)
        A("s_barrier")
        if L==0:
            self.cond(f"s_cmp_lg_u32 s{sW}, 0",self.mark(0xe0))
            assert not any(g[0] in 'AO' for g in self.bgq)
            self.wout(32,True)
            k=sum(1 for x in self.cvq if x[0]=='O')
            if k: self.conv_setup(96); self.cv(k,96)
        self.stamp('wo.cv')
        def mm(acc0,F):
            for k in range(8):
                for cb in range(2):
                    acc=v(acc0+cb*16,16)
                    A(f"{MF} {acc}, {woreg(k*2+cb)}, {v(F[k],4)}, {acc if k else '0'}")
        mm(A1,self.OF)
        self.publish(self.F(F_ATA),self.ta)
        self.bg(self.P('wa',4))
        self.red_write(A1)
        if L==0 and not self.P('gcl',1): A.wait_vm(self.tgu)
        A("s_waitcnt lgkmcnt(0)\ns_barrier")
        self.red_read(A1)
        self.try_issue(WS,f"s{sTF}",PL,vPA)
        for x in self.red_fin(0,A1,None): A(x)
        self.stamp('wo.1')
        self.try_check(WS,f"s{sTF}",PL,vPA,self.F(F_ATA)); self.acquire()
        self.wo_fetch(A,sRLO,F2)
        t1=self.xstore(RES,sRHI,LY.ST1,A1)
        self.bg(self.P('wb',4))
        self.gu_addr()
        if L==0 and not self.P('gcl',1): self.gu_colsum()
        self.stamp('wo.f2')
        mm(A2,F2)
        self.publish(self.F(F_WO1),t1)
        A("s_barrier")
        self.red_write(A2)
        if L==0:
            assert not any(g[0]!='W' for g in self.bgq)
            A.wait_vm(self.tgu)
        A("s_waitcnt lgkmcnt(0)\ns_barrier")
        self.red_read(A2)
        self.try_issue(WS,f"s{sTF}",PL,vPX)
        for x in self.red_fin(1,A2,None): A(x)
        self.tx2=self.xstore(RES+4,sRLO,LY.ST1,A2)
        self.bg(self.P('wc',0))
        if L==0 and self.P('gcl',1)==2: self.wqp(0); self.gu_colsum(); self.wqp(1)
        self.stamp('wo.2')
        self.try_check(WS,f"s{sTF}",PL,vPX,self.F(F_WO1)); self.acquire()
    def gu_addr(self):
        A=self.A; g=self.GAD
        A(f"""v_lshrrev_b32 v{vT0}, 5, v0
        v_lshlrev_b32 v{g+3}, 10, v{vT0}
        v_bfe_u32 v{vT0}, v0, 4, 1
        v_lshl_add_u32 v{g+3}, v{vT0}, 11, v{g+3}
        v_bfe_u32 v{vT1}, v0, 2, 2
        v_lshl_add_u32 v{g+3}, v{vT1}, 7, v{g+3}
        v_xor_b32 v{vT0}, v{vT0}, v{vT1}
        v_lshl_add_u32 v{g+3}, v{vT0}, 5, v{g+3}
        v_and_b32 v{vT0}, 3, v0
        v_lshl_add_u32 v{g}, v{vT0}, 3, v{g+3}""")
        for j in (1,2,3): A(f"v_xor_b32 v{g+j}, {j*32}, v{g}")
    def gs(self,i):
        V=lambda k: v(self.GX+4*k,4); X=lambda k: a(128+4*k,4)
        if self.L or i>=64: return V(i%16)
        if i<24: return X(i)
        if i<32: return V(i-24)
        if i<40: return V(i-24)
        if i<48: return X(i-24)
        return V(i-48)
    def gx(self,i):
        A=self.A
        if i>=64: return self.hld(i-64,sRHI,self.gs(i))
        if i==0: A(f"s_mov_b32 s{sXN}, s{sHI}")
        elif i==32: A(f"s_mov_b32 s{sXN}, s{sLO}")
        elif i%4==0: A(f"s_add_u32 s{sXN}, s{sXN}, 4096")
        A(f"buffer_load_dwordx4 {self.gs(i)}, v{vL16}, {WS}, s{sXN} offen offset:{(i%4)*1024} sc1")
    def gstat(self,rec):
        self.A(f"""s_add_u32 s{T0+2}, s{rec}, {LY.ST1}
        buffer_load_dwordx4 {v(self.GZ,4)}, v{vSLD}, {WS}, s{T0+2} offen sc1
        buffer_load_dwordx4 {v(self.GZ+4,4)}, v{vSLD}, {WS}, s{T0+2} offen offset:16 sc1""")
    def grd(self,ks,js):
        L=[]
        for b,j in enumerate(js):
            r=self.GW+(ks&1)*16+b*4; o=(ks%16)*4096
            L+= [f"ds_read_b64_tr_b16 {v(r,2)}, v{self.GAD+j} offset:{o}",f"ds_read_b64_tr_b16 {v(r+2,2)}, v{self.GAD+j} offset:{o+512}"]
        return L
    def gu_plan(self):
        L=self.L; X={}; W={}; C={}
        def put(D,t,x): D.setdefault(t,[]).append(x)
        if L:
            LEAD=self.P('gl',12); self.gpre=LEAD; self.hpre=LEAD
            for i in range(LEAD,64+LEAD):
                j=i-LEAD; put(X,j+j//32,i)
            self.gchk=(32-LEAD,33+32-LEAD)
            for g in self.q_wgu(7): put(W,-1,(7,g))
        else:
            self.gpre=32; self.hpre=8; c=self.P('gc',16); self.gchk=(c,33+24)
            for i in range(32,64+8):
                j=i-32
                put(X,c+j if j<8 else (16+j if j<16 else (33+j-16 if j<32 else 33+24+j-32)),i)
            assert c<=16
            wd=[g[2] for g in self.bgq]; self.bgq=[]
            t=self.P('wd0',0); done=56-len(wd); r=self.P('wdr',1); n=0; tl={}
            for k,g in enumerate(wd):
                u=(done+k)//2
                lo=0 if u<16 else (2*(u-16)+2 if u<24 else 33+8+2*(u-24)+2)
                if n==r: t+=1; n=0
                if t%33==32: t+=1
                if t<lo: t=lo; n=0
                put(W,t,(None,g)); n+=1; tl[u]=t
            t=self.P('cv0',20); lag=self.P('cvl',16); ng=self.P('cvn',4)
            for u in range(16-len(self.cvq),28):
                t=max(t,tl.get(u,0)+lag)
                if t%33==32: t+=1
                put(C,t if u<ng else 99,u); t+=self.P('cvr',1)
        return X,W,C
    def wqt(self,first=False,dst=107):
        self.A(f"""s_mul_i32 s{T0+6}, s{sSLOT}, 49152
        s_lshl_b32 s{T0+7}, s{sW}, {12 if first else 13}
        s_add_u32 s{T0+6}, s{T0+6}, s{T0+7}
        s_add_u32 s{T0+6}, s{T0+6}, {LY.WQI+(0 if first else 16384)}
        v_lshlrev_b32 v{vT0}, 7, v0
        {'s_mov_b64 exec, 0xffffffff' if first else ''}
        buffer_load_dword v{dst}, v{vT0}, {WS}, s{T0+6} offen{' sc1' if self.P('wqs',1) else ''}
        {'s_mov_b64 exec, -1' if first else ''}""")
    def wqp(self,stage,r=90):
        A=self.A
        if stage==0:
            A(f"v_and_b32 v{r}, 7, v0\nv_lshlrev_b32 v{r}, 5, v{r}\ns_and_b32 s{sQ}, s{sSLOT}, 28")
            self.try_issue(srd(SDBG),f"s{sQ}",r+1,r)
        else:
            A(f"s_and_b32 s{T0+7}, s{sSLOT}, 3\ns_lshl_b32 s{T0+7}, s{T0+7}, 3\ns_lshl_b32 s{T0+7}, 0x20, s{T0+7}")
            self.try_check(srd(SDBG),f"s{sQ}",r+1,r,f"s{T0+7}",mask=True); self.acquire()
    def conv(self,u):
        for x in self.conv_unit(a,8*u,self.GT+1): self.A(x)
    def gu_pass(self,js,p,plan,jn=None):
        nb=len(js)
        A=self.A; GA,GW,GAD,GZ,GM,GT=self.GA,self.GW,self.GAD,self.GZ,self.GM,self.GT; L=self.L
        X,W,C=plan
        def sc():
            self.sum8(GZ)
            self.A(f"v_mov_b32 v{GZ+1}, v{GZ}\nv_permlane32_swap_b32 v{GZ}, v{GZ+1}\nv_mul_f32 v{GZ}, 0x3b000000, v{GZ}\nv_cvt_pk_bf16_f32 v{GM}, -v{GZ}, -v{GZ}")
            for r in (1,2,3): self.A(f"v_mov_b32 v{GM+r}, v{GM}")
        fill=self.cap(sc)
        aug=[f"v_mov_b32 v{GZ+r}, 0" for r in range(nb*4) if r%4]
        fs=self.P('gf',3) if L else self.P('gf0',14)
        poll=(vPA,self.F(F_GU1)) if p else (vPX,self.F(F_WO2))
        for ks in range(33):
            t=33*p+ks
            self.fine('gu',ks)
            x=self.gs(32*p+ks) if ks<32 else v(GM,4)
            if ks==15: nx=[f"v_add_u32 v{GAD+j}, 0x10000, v{GAD+j}" for j in range(4)]+self.grd(16,js)
            elif ks==31: nx=[] if p else [f"v_subrev_u32 v{GAD+j}, 0x10000, v{GAD+j}" for j in range(4)]+self.grd(0,jn)
            elif ks<31: nx=self.grd(ks+1,js)
            else: nx=[]
            if p==0 and ks%4==3:
                assert not any(j is not None and j<=(ks+1)//4 for tt in W if tt>=t for j,g in W[tt])
            if p==0 and ks%4==3 and (ks+1)//4 in self.gtag:
                A.wait_vm(self.gtag[(ks+1)//4]); A("s_barrier")
            if p==0 and L==0 and ks==self.P('gb',8): A("s_barrier"); self.gbar=True; self.gu_csx(0)
            if p==0 and L==0 and ks==self.P('gb',8)+8: self.gu_csx(1)
            if ks==32:
                for b,j in enumerate(js): A(f"v_mov_b32 v{GZ+4*b}, v{CSG+j}")
            per=-(-len(nx)//nb)
            for b in range(nb):
                acc=v(GA+b*16,16); w=v(GW+(ks&1)*16+b*4,4) if ks<32 else v(GZ+4*b,4)
                A(f"{MF} {acc}, {w}, {x}, {acc if ks else '0'}")
                self.pop(nx,per)
                if b==0:
                    if t==self.gchk[p]:
                        self.try_check(WS,f"s{sTF}",GT,poll[0],poll[1]); self.acquire()
                    for i in X.get(t,[]): self.gx(i)
                if b==1 and fs<=ks: self.pop(fill,2)
                if b==1 and ks>=24: self.pop(aug,2)
                if b==2:
                    for j,g in W.get(t,[]):
                        for y in g: r=A(y)
                        if j is not None: self.gtag[j]=r
                    for u in C.get(t,[]):
                        assert self.gbar
                        self.conv(u)
            if L==0 and t==self.P('gq',99): self.wqt(dst=GT)
            if L==0 and t==self.P('gq1',99): self.wqt(True,dst=GT)
            if p and ks==self.P('gp',8): self.publish(self.F(F_GU1),self.th)
            if t==self.gchk[p]-self.P('gt',4 if self.L else 10): self.try_issue(WS,f"s{sTF}",GT,poll[0])
        assert not fill and not aug
        self.stamp('gu.mm')
        if p==0: self.gstat(sLO)
        A(f"s_add_u32 s{T0+3}, s{sHS}, s{sLO if p else sHI}")
        for b in range(nb):
            g=GA+b*16; d=GW+16+b*4
            for r in range(8): A(f"v_max_f32 v{g+r}, 0, v{g+r}")
            for r in range(8): A(f"v_mul_f32 v{g+r}, v{g+r}, v{g+8+r}")
            for r in range(4): A(f"v_cvt_pk_bf16_f32 v{d+r}, v{g+2*r}, v{g+2*r+1}")
            if L or not self.P('hs',1): self.th=A(f"buffer_store_dwordx4 {v(d,4)}, v{vL16}, {WS}, s{T0+3} offen offset:{js[b]*1024}")
        if L==0 and self.P('hs',1):
            def st(fl):
                for b in range(nb): self.th=A(f"buffer_store_dwordx4 {v(GW+16+b*4,4)}, v{vL16}, {WS}, s{T0+3} offen offset:{js[b]*1024}{fl}")
            self.cond(f"s_cmp_ge_u32 s{sSLOT}, 10",lambda: st(''))
            self.cond(f"s_cmp_lt_u32 s{sSLOT}, 10",lambda: st(' sc1'))
        self.stamp('gu.st')
    def gu_colsum(self):
        A=self.A; T,c,sel=(64,80,84) if self.P('gcl',1) else (192,208,216)
        self.selector(sel)
        A(f"s_lshl_b32 s{T0+2}, s{sW}, 5\nv_xor_b32 v{vT0}, s{T0+2}, v{self.GAD}")
        def rdk(k): return f"ds_read_b64_tr_b16 {v(T+(k%4)*4,2)}, v{vT0} offset:{(k%16)*4096}\nds_read_b64_tr_b16 {v(T+(k%4)*4+2,2)}, v{vT0} offset:{(k%16)*4096+512}"
        for k in range(3): A(rdk(k))
        for k in range(32):
            if k+3==16: A(f"v_add_u32 v{vT0}, 0x10000, v{vT0}")
            A(f"{MS} {v(c,4)}, {v(sel,4)}, {v(T+(k%4)*4,4)}, {v(c,4) if k else '0'}")
            if k+3<32: A(rdk(k+3))
        A(f"v_mov_b32 v{CSG+3}, v{c}")
        self.cs_pack(CSG+3,c+1)
    def gu_csx(self,stage):
        A=self.A
        A(f"v_lshlrev_b32 v{vT0}, 2, v0\nv_add_u32 v{vT0}, {SCR+4096}, v{vT0}")
        if stage==0: A(f"s_lshl_b32 s{T0+2}, s{sW}, 13\nv_add_u32 v{vT0}, s{T0+2}, v{vT0}\nds_write_b32 v{vT0}, v{CSG+3}")
        else:
            A("s_waitcnt lgkmcnt(0)\ns_barrier")
            for j in range(4): A(f"ds_read_b32 v{CSG+j}, v{vT0} offset:{j*8192}")
    def gu(self):
        A=self.A; L=self.L
        plan=self.gu_plan(); X,W,C=plan
        self.gx(0); self.gstat(sHI)
        for i in range(1,self.gpre): self.gx(i)
        tags={}
        for j,g in W.get(-1,[]):
            for y in g: tags[j]=A(y)
        A(f"s_lshr_b32 s{sHS}, s{sSLOT}, 1\ns_mul_i32 s{sHS}, s{sHS}, 7168\ns_add_u32 s{sHS}, s{sHS}, {LY.HOFF}\ns_mul_i32 s{T0+2}, s{sE}, 3072\ns_add_u32 s{sHS}, s{sHS}, s{T0+2}")
        if L==0: self.conv_setup(self.GT+1)
        self.publish(self.F(F_WO2),self.tx2)
        if L==0 and self.P('gcl',1)==1: self.wqp(0); self.stamp('gu.p'); self.gu_colsum(); self.wqp(1)
        self.stamp('gu.in')
        A(f"s_cmp_lg_u32 s{sE}, 0\ns_cbranch_scc1 L_ge{L}")
        st=A.snap(); n=len(self.stn); Q=[]
        for e in range(2):
            if e: A.restore(st); A.label(f'L_ge{L}'); del self.stn[n:]
            self.gtag=dict(tags); self.gbar=False
            J=([0,1,2,3],[0,1,2]) if e==0 else ([1,2,3],[0,1,2,3])
            for x in self.grd(0,J[0]): A(x)
            self.gu_pass(J[0],0,plan,J[1]); self.gu_pass(J[1],1,plan)
            A("s_waitcnt lgkmcnt(0)"); A.flush_hz()
            if e==0: A(f"s_branch L_dn{L}")
            Q.append(A.snap()[0])
        A.label(f'L_dn{L}')
        A.merge(Q[1],Q[0])
        self.cleft=[u for t in sorted(C) if t>=66 for u in C[t]]
        assert not any(t>=66 for t in W)
    def down(self):
        A=self.A; A1,A2,ST,R2=64,152,96,188-4; L=self.L
        R2=104
        SLOT=[self.GX+4*i for i in range(16)]+[112+4*i for i in range(10)]
        PL=106; tpend=self.th
        self.stamp('dn.in')
        def stats(rec):
            A(f"""s_add_u32 s{T0+2}, s{rec}, {LY.ST1}
            buffer_load_dwordx4 {v(ST,4)}, v{vDSL}, {WS}, s{T0+2} offen sc1
            buffer_load_dwordx4 {v(ST+4,4)}, v{vDSL}, {WS}, s{T0+2} offen offset:16 sc1""")
        def r2(dst):
            self.sum8(ST)
            self.A(f"""v_and_b32 v{ST+4}, 8, v0
            v_mov_b32_dpp v{ST+1}, v{ST} row_ror:8 row_mask:0xf bank_mask:0xf""")
            self.A(f"v_cmp_ne_u32 vcc, 0, v{ST+4}\nv_cndmask_b32 v{ST+2}, v{ST}, v{ST+1}, vcc\nv_cndmask_b32 v{ST+3}, v{ST+1}, v{ST}, vcc")
            self.ln_scalars(ST+2,ST+3,None,dst,ST+4)
            self.A(f"v_mul_f32 v{dst}, v{dst}, v{dst}")
        def grp(Q):
            out=[];i=0
            while i<len(Q):
                if Q[i].startswith('v_cmp'): out.append(Q[i:i+3]); i+=3
                else: out.append(Q[i]); i+=1
            return out
        def ld():
            i=ln[0]; k=i%28; ln[0]+=1
            self.hld(k,sRLO if i>=28 else sRHI,v(SLOT[i%26],4))
        ln=[self.hpre]
        for _ in range(self.P('dl',12)-self.hpre): ld()
        stats(sRHI)
        if L==0 and self.P('ct2',0): self.ctouch(107,T0+8)
        def mm(rnd,fill,hook):
            for k in range(28):
                i=rnd*28+k
                self.fine('dn',k,2)
                for cb in range(2):
                    acc=v((A2 if rnd else A1)+cb*16,16)
                    A(f"{MF} {acc}, {a((k*2+cb)*4,4)}, {v(SLOT[i%26],4)}, {acc if k else '0'}")
                    if k>=2: self.pop(fill,2)
                    if cb==0:
                        lim=28 if rnd==0 else 56
                        for _ in range(2 if k<self.P('dx',10) else 1):
                            if ln[0]<lim and ln[0]<i+26: ld()
                hook(k)
            assert not fill
        cl=list(self.cleft)
        def h0(k):
            if k==self.P('dp',14): self.publish(self.F(F_GU2),tpend)
            if k==self.P('dt',22): self.try_issue(WS,f"s{sTF}",PL,vPA)
            if L==0 and k==self.P('dg',5): self.wqt()
            if L==0 and k==self.P('dh',99): self.wqt(True)
            if cl and k>=self.P('dc',0):
                assert k+3<=cl[0],(k,cl)
                self.conv(cl.pop(0))
        for _ in range(self.P('dc0',3)):
            if cl: self.conv(cl.pop(0))
        mm(0,grp(self.cap(lambda: r2(R2))),h0)
        assert not cl
        self.stamp('dn.mm0')
        self.try_check(WS,f"s{sTF}",PL,vPA,self.F(F_GU2)); self.acquire()
        self.stamp('dn.c2')
        for _ in range(4): ld()
        stats(sRLO)
        self.red_write(A1)
        for _ in range(4): ld()
        A("s_waitcnt lgkmcnt(0)\ns_barrier")
        self.red_read(A1)
        tx=[None]
        def st1():
            if L==0: tx[0]=self.xstore(RES,sRHI,LY.STX,A1)
            else: self.out_store(RES,sRHI)
        def h1(k):
            if L: return
            if k==self.P('de',16):
                A(f"s_mul_i32 s{sQ}, s{sSLOT}, 49152\ns_add_u32 s{sQ}, s{sQ}, s{sLW}\ns_add_u32 s{sQ}, s{sQ}, {LY.WQI}\ns_add_u32 m0, s{sLW}, {RW}")
                for j in range(4): A(f"buffer_load_dwordx4 v{vL16}, {WS}, s{sQ} offen offset:{j*1024} sc1 lds")
            if k==self.P('df',99): self.wqt()
            if k==self.P('dq',22): self.publish(F_N+F_X1,tx[0])
        mm(1,self.red_fin(0,A1,R2)+[st1]+grp(self.cap(lambda: r2(R2+1))),h1)
        self.stamp('dn.mm1')
        A("s_barrier")
        self.red_write(A2); A("s_waitcnt lgkmcnt(0)\ns_barrier")
        self.red_read(A2)
        if L==0: self.try_issue(WS,f"s{sTF}",PL,vPX)
        for x in self.red_fin(1,A2,R2+1): A(x)
        if L: self.out_store(RES+4,sRLO); return
        self.stamp('dn.fin')
        self.L=1
        A(f"s_add_u32 s{sHB}, s{sHB}, {LY.HALO_L}")
        self.try_check(WS,f"s{sTF}",PL,vPX,self.F(F_X1)); self.acquire()
        self.qa_prefetch(self.qlead())
        self.txlo=self.xstore(RES+4,sRLO,LY.STX,A2)
        A(f"s_barrier\ns_add_u32 s{sQ}, s{sQ}, s{sLW}\ns_add_u32 s{sQ}, s{sQ}, 16384\ns_lshl_b32 s{T0+6}, s{sW}, 13\ns_add_u32 m0, s{T0+6}, {SCR}")
        for j in range(8):
            if j==4: A(f"s_add_u32 s{sQ}, s{sQ}, 4096\ns_add_u32 m0, s{T0+6}, {SCR+4096}")
            self.tlate=A(f"buffer_load_dwordx4 v{vL16}, {WS}, s{sQ} offen offset:{(j%4)*1024} sc1 lds")
    def out_store(self,rs,rec):
        self.A(f"""s_lshl_b32 s{T0+2}, s{sTEAM}, 3
        s_{'add' if rec==sRLO else 'sub'}_u32 s{T0+2}, s{T0+2}, s{sTQ}
        s_add_u32 s{T0+2}, s{T0+2}, {0 if rec==sRLO else 7}
        s_lshl_b32 s{T0+2}, s{T0+2}, 15
        s_lshl_b32 s{T0+3}, s{sCW}, 7
        s_add_u32 s{T0+2}, s{T0+2}, s{T0+3}
        buffer_store_dwordx4 {v(rs,4)}, v{vROW}, {srd(SOUT)}, s{T0+2} offen{' sc1' if self.P('osc',0) else ''}""")
    def build(self):
        A=self.A; self.L=0
        self.mkbg()
        self.prologue()
        seq=[(n,f,l) for l in range(2) for n,f in (('qa',self.qa),('att',self.att),('wo',self.wo),('gu',self.gu),('dn',self.down))]
        for n,f,l in seq:
            if self.P('bench',0): break
            if n=='qa': self.stamp('qa.in')
            f()
            if self.stop==f"{n}{l}": break
        A("s_waitcnt vmcnt(0)" if self.stop else "s_nop 0")
        self.end()
        A.label('L_exit'); A("s_endpgm")
        for t in self.tail: A.raw(t)
        A.label('L_end')
        hdr=f"""; generated by gen/gen4.py
; @launch grid=(256,1,1) block=(256,1,1) lds=163840
.amdgcn_target "amdgcn-amd-amdhsa--gfx950"
.text
.globl {NAME}_kernel
.p2align 8
.type {NAME}_kernel,@function
{NAME}_kernel:
"""
        kd=f""".section .rodata,"a"
.p2align 6
.amdhsa_kernel {NAME}_kernel
  .amdhsa_next_free_vgpr 512
  .amdhsa_next_free_sgpr 102
  .amdhsa_accum_offset 256
  .amdhsa_group_segment_fixed_size 0
  .amdhsa_kernarg_size 80
  .amdhsa_user_sgpr_count 2
  .amdhsa_user_sgpr_kernarg_segment_ptr 1
  .amdhsa_system_sgpr_workgroup_id_x 1
.end_amdhsa_kernel
"""
        ex='; STAMPS '+','.join(self.stn[:-1])+'\n' if self.stamps else ''
        return hdr+A.text()+kd+ex
if __name__=='__main__':
    o=dict(x.split('=') for x in sys.argv[2:])
    g=G(o)
    t=g.build(); open(sys.argv[1],'w').write(t)
    print('lines',t.count('\n'),'auto nops',g.A.nops,'stamps',len(g.stn))
```

```python
import sys,re
sys.path.insert(0,'gen')
from asm2 import *
import layout4 as LY
NAME='interleave_layers__sliding_block__glu_gated_reglu__prompt'
MF='v_mfma_f32_32x32x16_bf16'; MS='v_mfma_f32_16x16x32_bf16'
SX,SWQ,SWS,SOUT,SDBG,SWO,SWG,SWU,SWD=8,12,16,20,24,28,32,36,40
sTEAM,sSLOT,sW,sTQ,sCW,sE,sMODE,sQ,sMYF,sTF,sTO,sONE,sXCC,sHS,sSTI,sHI,sLO,sRHI,sRLO,sSLOW=range(44,64)
sXN,sHB,sGB,sDB,sOB,sLW,sBT,sHF,sW1K=range(64,73)
sDQ,sOQ,sHW,sOF,sGG,sGL,sRT=73,74,75,76,80,81,82
T0=84
sST=100
vL,vL16,RES,vW1,vW2,vWV,vRRD,vRW0,vRW1,vXST,vROW,vSST,vSLD,vDSL,vPX,vPA,vSTMP=0,1,2,10,11,12,13,14,15,16,17,18,19,20,21,22,23
CSG,CSQ,CSV,vG0,vG1,WOV=24,28,29,30,31,32
vGA,vGW=24,25
vP1,vT0,vT1,vD=252,253,254,255
RW=114688; AK=RW; AV=AK+16384; AO=AV+16384; SCR=131072
F_X1,F_X2,F_ATB,F_ATA,F_WO1,F_WO2,F_GU1,F_GU2,F_N=1,2,3,4,5,6,7,8,8
def srd(i): return s(i,4)
WS=srd(SWS)
def woreg(q,n=4): return v(WOV+4*q,n) if q<8 else a(224+4*(q-8),n)

class G:
    def __init__(self,o):
        self.o=o; self.stop=o.get('stop'); self.stamps=int(o.get('stamps',0)); self.force_mixed=int(o.get('mixed',0))
        self.A=Asm(); self.tail=[]; self.tm="s_memtime" if self.stamps==2 else "s_memrealtime"; self.stn=[]
        self.nt=' nt' if int(o.get('nt',0)) else ''
    def P(self,k,d): return int(self.o.get(k,d))
    def S(self,k,d):
        r={}
        for part in self.o.get(k,d).split('+'):
            if not part: continue
            n=1; st=1
            if '*' in part: part,n=part.split('*')
            if '/' in part: part,st=part.split('/')
            a_,b_=(part.split('-')+[part])[:2]
            for i in range(int(a_),int(b_)+1,int(st)): r[i]=r.get(i,0)+int(n)
        return r
    def stamp(self,name):
        if not self.stamps: return
        if self.o.get('fs','x0')[-1]=='1' and self.L==0 and name not in ('qa.in','dn.fin'): return
        if self.o.get('fs') in ('gu0','dn0') and (self.L and name!='qa.9' or name[:2] in ('p.','qa','at') and name!='qa.9'): return
        A=self.A
        A(f"s_waitcnt lgkmcnt(0)\ns_mov_b32 m0, s{sSTI}\nv_writelane_b32 v{vSTMP}, s{sST}, m0\ns_add_u32 s{sSTI}, s{sSTI}, 1\n{self.tm} {s(sST,2)}")
        self.stn.append(name)
    def fine(self,ph,i,every=4):
        if self.o.get('fs')==f"{ph}{self.L}" and i%every==0: self.stamp(f"{ph}:{i}")
    def end(self):
        A=self.A
        if self.stamps:
            self.stamp('end-')
            A(f"""s_lshl_b32 s{T0}, s2, 2
            s_add_u32 s{T0}, s{T0}, s{sW}
            s_lshl_b32 s{T0}, s{T0}, 8
            s_add_u32 s{T0}, s{T0}, {LY.STAMPS}
            v_lshlrev_b32 v{vT0}, 2, v{vL}
            buffer_store_dword v{vSTMP}, v{vT0}, {WS}, s{T0} offen""")
        A("s_endpgm")
    def acquire(self):
        A=self.A; b=A.newlabel('L_acq'); r=A.newlabel('L_acr')
        A(f"s_cmp_lg_u32 s{sMODE}, 0\ns_cbranch_scc1 {b}"); A.label(r)
        self.tail.append(f"{b}:\n    buffer_inv sc1\n    s_waitcnt vmcnt(0)\n    s_branch {r}")
    def publish(self,val,tag):
        A=self.A; b=A.newlabel('L_pub'); r=A.newlabel('L_pur')
        assert tag
        A(f"v_mov_b32 v{vP1}, {val}")
        A.wait_vm(tag)
        A(f"s_mov_b64 exec, 1\ns_cmp_lg_u32 s{sMODE}, 0\ns_cbranch_scc1 {b}")
        A(f"buffer_store_dword v{vP1}, off, {WS}, s{sMYF}"); A.label(r)
        A("s_mov_b64 exec, -1")
        self.tail.append(f"{b}:\n    buffer_wbl2 sc1\n    s_waitcnt vmcnt(0)\n    buffer_store_dword v{vP1}, off, {WS}, s{sMYF} sc1\n    s_branch {r}")
    def hpublish(self,val,tag):
        A=self.A
        assert tag
        A(f"v_mov_b32 v{vP1}, {2*self.L+val}\ns_add_u32 s{T0+15}, s{sMYF}, {LY.HFLAGS}")
        A.wait_vm(tag)
        A(f"s_mov_b64 exec, 1\nbuffer_store_dword v{vP1}, off, {WS}, s{T0+15} sc1\ns_mov_b64 exec, -1")
    def F(self,f): return f+self.L*F_N
    def cap(self,fn):
        class Cap:
            def __init__(s_): s_.L=[]
            def __call__(s_,x): s_.L+= [y.strip() for y in x.split('\n') if y.strip() and not y.strip().startswith(';')]
        A=self.A; c=Cap(); self.A=c
        try: fn()
        finally: self.A=A
        return c.L
    def pop(self,q,n=1):
        for _ in range(n):
            if not q: return
            g=q.pop(0)
            if callable(g): g()
            elif isinstance(g,(list,tuple)):
                for x in g: self.A(x)
            else: self.A(g)
    def mix(self,L,F,every,first=1):
        F=list(F); r=None
        for _ in range(first):
            if F: F.pop(0)()
        for n,x in enumerate(L):
            r=self.A(x)
            if (n+1)%every==0 and F and n+1<len(L): F.pop(0)()
        for f in F: f()
        return r
    def cond(self,test,fn):
        A=self.A; l=A.newlabel('L_c')
        A(f"{test}\ns_cbranch_scc1 {l}")
        A.cond_begin(); fn(); A.cond_end(); A.label(l)
    def bg(self,n):
        r=None
        for _ in range(n):
            if self.L or not self.bgq: break
            k,i,g=self.bgq[0]
            if k=='D' and not self.ldsfree: break
            if k=='W' and i>=32: break
            self.bgq.pop(0)
            if k=='D' and i in (0,24) and self.tcv: self.A.wait_lg(self.tcv)
            for x in g: r=self.A(x)
            if k=='D': self.tgu=r
        return r
    def try_issue(self,srd_,soff,dst,off):
        self.A(f"buffer_load_dword v{dst}, v{off}, {srd_}, {soff} offen sc1")
    def try_check(self,srd_,soff,dst,off,target,mask=False):
        A=self.A; l=A.newlabel('L_poll'); d=A.newlabel('L_ok')
        def test():
            if mask: return f"v_and_b32 v{vT1}, {target}, v{dst}\nv_cmp_ne_u32 vcc, {target}, v{vT1}"
            return f"v_cmp_gt_u32 vcc, {target}, v{dst}"
        A(test()); A(f"s_cbranch_vccnz {l}"); A.label(d)
        body=f"""{l}:
    s_nop 4
    buffer_load_dword v{dst}, v{off}, {srd_}, {soff} offen sc1
    s_waitcnt vmcnt(0)
"""+"".join("    "+x+"\n" for x in test().split("\n"))+f"""    s_nop 1
    s_cbranch_vccz {d}
    s_sub_u32 s{sTO}, s{sTO}, 1
    s_cbranch_scc0 {l}
    s_endpgm"""
        self.tail.append(body)
    def ln_scalars(self,vs,vq,vm,vr,t):
        A=self.A
        A(f"""v_mul_f32 v{vs}, 0x3b000000, v{vs}
        v_mul_f32 v{vq}, 0x3b000000, v{vq}
        v_fma_f32 v{vq}, -v{vs}, v{vs}, v{vq}
        v_max_f32 v{vq}, 0, v{vq}""")
        if vm is not None: A(f"v_cvt_pk_bf16_f32 v{vm}, -v{vs}, -v{vs}")
        if vr is not None:
            A(f"""v_cvt_pk_bf16_f32 v{t}, v{vq}, v{vq}
            v_and_b32 v{t}, 0xffff0000, v{t}
            v_add_f32 v{t}, 0x3727c5ac, v{t}
            v_cvt_pk_bf16_f32 v{t}, v{t}, v{t}
            v_and_b32 v{t}, 0xffff0000, v{t}
            v_sqrt_f32 v{t}, v{t}
            v_cvt_pk_bf16_f32 v{t}, v{t}, v{t}
            v_and_b32 v{t}, 0xffff0000, v{t}
            v_rcp_f32 v{vr}, v{t}""")
    def sum8(self,b):
        self.A(f"""v_add_f32 v{b}, v{b}, v{b+1}
        v_add_f32 v{b+2}, v{b+2}, v{b+3}
        v_add_f32 v{b+4}, v{b+4}, v{b+5}
        v_add_f32 v{b+6}, v{b+6}, v{b+7}
        v_add_f32 v{b}, v{b}, v{b+2}
        v_add_f32 v{b+4}, v{b+4}, v{b+6}
        v_add_f32 v{b}, v{b}, v{b+4}""")
    def cs_pack(self,r,t):
        self.A(f"""v_cvt_pk_bf16_f32 v{t}, v{r}, v{r}
        v_and_b32 v{t}, 0xffff0000, v{t}
        v_sub_f32 v{t}, v{r}, v{t}
        v_cvt_pk_bf16_f32 v{r}, v{r}, v{t}""")
    def selector(self,r):
        self.A(f"""v_bfe_u32 v{r}, v0, 4, 1
        v_lshlrev_b32 v{r}, 2, v{r}
        v_and_b32 v{r+1}, 15, v0
        v_cmp_eq_u32 vcc, v{r}, v{r+1}
        v_mov_b32 v{r+1}, s{sONE}
        v_cndmask_b32 v{r}, 0, v{r+1}, vcc
        v_mov_b32 v{r+1}, v{r}
        v_mov_b32 v{r+2}, v{r}
        v_mov_b32 v{r+3}, v{r}""")
    def mark(self,bits):
        A=self.A
        def f():
            A(f"""s_or_b32 s{T0+14}, s{sXCC}, {bits}
            v_mov_b32 v{vT0}, s{T0+14}
            s_lshl_b32 s{T0+14}, s{sTEAM}, 5
            s_add_u32 s{T0+14}, s{T0+14}, s{sSLOT}
            s_mov_b64 exec, 1
            buffer_store_byte v{vT0}, off, {srd(SDBG)}, s{T0+14} sc1
            s_mov_b64 exec, -1""")
        return f
    def rq(self,dst,Q,scale,base):
        if not self.P('kr',2): return [f"s_add_u32 s{dst}, s{base}, {Q*scale}"]
        return [f"s_add_u32 s{dst}, s{sRT}, {Q}",f"s_and_b32 s{dst}, s{dst}, 3",f"s_mul_i32 s{dst}, s{dst}, {scale}",f"s_add_u32 s{dst}, s{dst}, s{base}"]
    def q_wo(self):
        return [(self.rq(sOQ,q//4,32768,sOB) if q%4==0 else [])+
                [f"s_add_u32 s{sBT}, s{sOQ}, {(q%4)*8192}",f"buffer_load_dwordx4 {woreg(q)}, v{vD}, {srd(SWO)}, s{sBT} offen{self.nt}"] for q in range(16)]
    def q_wd(self):
        return [(self.rq(sDQ,q//14,114688,sDB) if q%14==0 else [])+
                [f"s_add_u32 s{sBT}, s{sDQ}, {(q%14)*8192}",f"buffer_load_dwordx4 {a(4*q,4)}, v{vD}, {srd(SWD)}, s{sBT} offen{self.nt}"] for q in range(56)]
    def q_wgd(self,n):
        gu,rh=(n>>1)&1,n&1
        L=[] if n&3 or not n else [f"s_add_u32 s{sGL}, s{sGL}, 16384",f"s_add_u32 s{sGG}, s{sGG}, {64*3584}",f"s_cmp_ge_u32 s{sGL}, {7*16384}",
            f"s_cselect_b32 s{sBT}, {7*16384}, 0",f"s_sub_u32 s{sGL}, s{sGL}, s{sBT}",f"s_mul_i32 s{sBT}, s{sBT}, 14",f"s_sub_u32 s{sGG}, s{sGG}, s{sBT}"]
        return L+[f"s_add_u32 s{sBT}, s{sGG}, {rh*8*3584}",f"s_add_u32 m0, s{sGL}, {gu*2048+rh*1024}",
                  f"buffer_load_dwordx4 v{vG0+gu}, {srd(SWU if gu else SWG)}, s{sBT} offen lds"]
    def hld(self,k,rec,dst):
        A=self.A; r=k%7
        if r==0:
            for x in self.rq(sXN,k//7,7168,sHW): A(x)
            A(f"s_add_u32 s{sXN}, s{sXN}, s{rec}")
        elif r==4: A(f"s_add_u32 s{sXN}, s{sXN}, 4096")
        A(f"buffer_load_dwordx4 {dst}, v{vL16}, {WS}, s{sXN} offen offset:{(r%4)*1024} sc1")
    def q_wgu(self,j):
        L=[]
        for gu in range(2):
            for rh in range(2):
                L.append([f"s_add_u32 s{sBT}, s{sGB}, {j*64*3584+rh*8*3584}",f"s_add_u32 m0, s{sLW}, {j*16384+gu*2048+rh*1024}",
                          f"buffer_load_dwordx4 v{vG0+gu}, {srd(SWU if gu else SWG)}, s{sBT} offen{self.nt} lds"])
        return L
    def q_wgr(self,n,k):
        return [f"s_add_u32 s{sBT}, s{sGB}, {(n>>2)*64*3584+(n&1)*8*3584}",
                f"buffer_load_dwordx4 {a(128+4*k,4)}, v{vGA}, {srd(SWU if n&2 else SWG)}, s{sBT} offen"]
    def mkbg(self):
        bo=self.o.get('bo','AOAOAOAO'); na=bo.count('A'); assert na>=4 or na==0
        self.al=[28,29,30,31]+list(range(na-4)) if na else []
        Q={'A':[('A',n,self.q_wgr(n,k)) for k,n in enumerate(self.al)],
           'D':[('D',n,self.q_wgd(n) if na<=4 else self.q_wgu(n>>2)[n&3]) for n in range(max(na-4,0),28)],
           'O':[('O',i,g) for i,g in enumerate(self.q_wo())],
           'W':[('W',i,g) for i,g in enumerate(self.q_wd())]}
        q=[Q[c].pop(0) for c in bo]
        self.bgq=q+Q['O']+Q['D']+Q['W']; self.wn=4; self.ldsfree=False; self.tgu=None
        self.cvq=[('O',u) for u in range(8)]+[('W',u) for u in range(16)]; self.tcv=None; self.tn=0
    def wout(self,k,last=False):
        def w(k_,n): self.A(f"ds_write_b128 v{vGW+((n>>1)&1)}, {a(128+4*k_,4)} offset:{((n>>2)&3)*16384+(n&3)*1024}")
        for _ in range(k):
            if self.L or self.wn>=len(self.al): break
            assert not any(x[0]=='A' for x in self.bgq)
            w(self.wn,self.al[self.wn]); self.wn+=1
        if last and self.al:
            self.A(f"v_add_u32 v{vGW}, 0x10000, v{vGW}\nv_add_u32 v{vGW+1}, 0x10000, v{vGW+1}")
            for k_ in range(4): w(k_,28+k_)
        elif last:
            for g in self.q_wgu(7):
                for x in g: self.tgu=self.A(x)
    CR=125
    def cv(self,n,r=None):
        for _ in range(n):
            if self.L or not self.cvq: return
            k,u=self.cvq[0]
            if any(x[0]==k and x[1]//2==u for x in self.bgq): return
            assert r or any(x[0]=='D' and x[1]==(0 if self.P('gr',1) else 24) for x in self.bgq)
            self.cvq.pop(0)
            U=self.conv_unit(a,8*u,r or self.CR) if k=='W' else self.conv_unit(v if u<4 else a,(WOV if u<4 else 224-32)+8*u,r or self.CR)
            for x in U: self.tcv=self.A(x)
    def tgw(self,n):
        for _ in range(n):
            k=self.tn
            if self.L or k>=8: return
            self.tn+=1
            self.A(f"""s_lshl_b32 s{sBT}, s{sSLOT}, 2
            s_add_u32 s{sBT}, s{sBT}, s{sW}
            s_mul_i32 s{sBT}, s{sBT}, 3584
            s_add_u32 s{sBT}, s{sBT}, {(k>>1)*128*3584}
            v_lshlrev_b32 v{vT0}, 7, v0
            s_mov_b64 exec, 0xfffffff
            buffer_load_dword v124, v{vT0}, {srd(SWU if k&1 else SWG)}, s{sBT} offen
            s_mov_b64 exec, -1""")
    def conv_setup(self,r):
        self.A(f"""v_lshrrev_b32 v{r}, 5, v{vL}
        v_bfe_u32 v{r+1}, v{vL}, 2, 2
        v_lshl_add_u32 v{r+1}, v{r}, 2, v{r+1}
        v_lshlrev_b32 v{r+1}, 7, v{r+1}
        v_bfe_u32 v{r}, v{vL}, 4, 1
        v_lshl_add_u32 v{r+1}, v{r}, 5, v{r+1}
        v_lshlrev_b32 v{r}, 6, v{r}
        v_and_b32 v{r+2}, 3, v{vL}
        v_lshl_add_u32 v{r+1}, v{r+2}, 3, v{r+1}
        v_bfe_u32 v{r+2}, v{vL}, 3, 1
        v_lshl_add_u32 v{r+1}, v{r+2}, 6, v{r+1}
        v_sub_u32 v{r+2}, v{vRW0}, v{vL16}
        v_add_u32 v{r+1}, v{r+1}, v{r+2}
        v_xor_b32 v{r+2}, 64, v{r+1}
        v_xor_b32 v{r}, v{r}, v{vRW0}""")
    def conv_unit(self,reg,b,r):
        L=[f"ds_write_b128 v{r}, {reg(b,4)}",f"ds_write_b128 v{r}, {reg(b+4,4)} offset:1024"]
        for cb in range(2):
            L+= [f"ds_read_b64_tr_b16 {reg(b+4*cb,2)}, v{r+1+cb}",f"ds_read_b64_tr_b16 {reg(b+4*cb+2,2)}, v{r+1+cb} offset:1024"]
        return L
    def xstore(self,rs,srec,so,R,woff=0):
        A=self.A
        A(f"""s_lshl_b32 s{T0+3}, s{sCW}, 12
        s_add_u32 s{T0+2}, s{srec}, s{T0+3}
        buffer_store_dwordx4 {v(rs,4)}, v{vXST}, {WS}, s{T0+2} offen{' sc1' if (self.L==0 and so==LY.ST1 and self.P('x1s',1)) or self.P('x1s',1)==2 else ''}
        v_mov_b32 v{R}, 0
        v_mov_b32 v{R+1}, 0""")
        for n in range(4): A(f"v_dot2c_f32_bf16 v{R}, s{sONE}, v{rs+n}\nv_dot2c_f32_bf16 v{R+1}, v{rs+n}, v{rs+n}")
        A(f"""s_lshl_b32 s{T0+3}, s{sCW}, 2
        s_add_u32 s{T0+2}, s{srec}, s{T0+3}
        s_add_u32 s{T0+2}, s{T0+2}, {so}
        v_add_f32_dpp v{R}, v{R}, v{R} row_ror:8 row_mask:0xf bank_mask:0xf
        v_add_f32_dpp v{R+1}, v{R+1}, v{R+1} row_ror:8 row_mask:0xf bank_mask:0xf
        v_permlane16_swap_b32 v{R}, v{R+1}
        v_add_f32 v{R}, v{R}, v{R+1}
        v_mov_b32 v{R+1}, v{R}
        v_permlane32_swap_b32 v{R}, v{R+1}
        v_add_f32 v{R}, v{R}, v{R+1}""")
        return A(f"buffer_store_dword v{R}, v{vSST}, {WS}, s{T0+2} offen offset:{woff*512}")
    WR,WG_,NR,STA=65536,12672,7,154624
    XF,AW,XA,XD,PD,WA,WD,TN=64,80,88,92,98,100,104,106
    CQ,CV,SEL=176,180,184
    sWS,sWL,sWK=(T0+10,T0+11,T0+12),(3,6,7),T0+13
    sCK,sCV=sHS,sQ
    def wgrp(self,q=None):
        A=self.A; G_=self.wg; self.wg+=1
        def piece(i):
            if G_ and not i: A(f"s_add_u32 s{self.sWK}, s{self.sWK}, 98304\ns_cmp_eq_u32 s{self.sWK}, {16*98304}\ns_cselect_b32 s{self.sWK}, 0, s{self.sWK}")
            self.wtag[G_]=A(f"""s_add_u32 m0, s{self.sWL[i]}, {(G_%self.NR)*self.WG_}
            s_add_u32 s{sBT}, s{self.sWK}, s{self.sWS[i]}
            buffer_load_dwordx4 v{self.WD+(i>0)}, {srd(SWQ)}, s{sBT} offen lds""")
        for i in range(3):
            if q is None: piece(i)
            else: q.append(lambda i=i: piece(i))
    def prologue(self):
        A=self.A; XD,WD=self.XD,self.WD; sWS,sWL,sWK=self.sWS,self.sWL,self.sWK
        A(f"""s_cmp_ge_u32 s2, 256
        s_cbranch_scc1 L_exit
        s_load_dwordx16 s[64:79], s[0:1], 0
        s_load_dwordx4 s[80:83], s[0:1], 64""")
        A("s_getpc_b64 s[4:5]"); A.label("L_pc")
        if self.stamps: A(f"{self.tm} {s(sST,2)}\ns_mov_b32 s{sSTI}, 0\nv_mov_b32 v{vSTMP}, 0"); self.stn.append('start')
        R=self.P('rot',4); MX=self.P('mx',3); sCK,sCV=self.sCK,self.sCV
        A(f"""v_lshrrev_b32 v2, 6, v0
        v_and_b32 v0, 63, v0
        v_readfirstlane_b32 s{sW}, v2
        v_lshlrev_b32 v{vL16}, 4, v0
        s_and_b32 s{sTEAM}, s2, 7
        s_lshr_b32 s{sSLOT}, s2, 3
        {f's_xor_b32 s{sSLOT}, s{sSLOT}, '+str(self.P('sx',0)) if self.P('sx',0) else ''}
        s_and_b32 s{sTQ}, s{sSLOT}, 3
        s_lshr_b32 s{sCW}, s{sSLOT}, 2
        s_lshl_b32 s{T0}, s{sSLOT}, 2
        s_add_u32 s{T0}, s{T0}, s{sW}
        s_lshl_b32 s{T0}, s{T0}, 10
        v_and_b32 v4, 7, v0
        v_lshlrev_b32 v3, 7, v4
        v_add_u32 v3, s{T0}, v3
        v_min_u32 v3, L_end-L_pc-4, v3
        {'global_load_dword v251, v3, s[4:5]' if self.P('ct',1) else ''}
        v_lshrrev_b32 v9, 3, v0
        v_xor_b32 v5, v4, v9
        v_lshlrev_b32 v{XD}, 10, v9
        v_lshl_add_u32 v{XD}, v5, 4, v{XD}
        v_xor_b32 v{XD+1}, 0x410, v{XD}
        v_lshrrev_b32 v5, 4, v0
        v_mul_u32_u24 v5, {4*3072}, v5
        v_lshl_add_u32 v5, v4, 4, v5
        v_and_b32 v6, 1, v9
        s_add_u32 s{sCK}, s{sCW}, {MX}
        s_and_b32 s{sCK}, s{sCK}, 7
        s_add_u32 s{sCV}, s{sCW}, {2*MX}
        s_and_b32 s{sCV}, s{sCV}, 7
        s_sub_u32 s{T0+1}, s{sCK}, s{sCW}
        s_lshl_b32 s{T0+1}, s{T0+1}, 7
        s_add_u32 s{T0+1}, s{T0+1}, 1024
        v_mul_u32_u24 v{WD}, s{T0+1}, v6
        s_lshl_b32 s{T0+1}, s{sCW}, 7
        v_add3_u32 v{WD}, v{WD}, v5, s{T0+1}
        v_mul_u32_u24 v6, 3072, v6
        s_lshl_b32 s{T0+1}, s{sCV}, 7
        v_add3_u32 v6, v6, v5, s{T0+1}
        s_bitcmp1_b32 s{sW}, 0
        s_cselect_b64 vcc, -1, 0
        s_cselect_b32 s{sWS[0]}, {3*3072}, 0
        s_mov_b32 s{sWS[1]}, 3072
        s_mov_b32 s{sWS[2]}, 6144
        s_mov_b32 s{sWL[1]}, 1056
        s_mov_b32 s{sWL[2]}, 2112
        s_cselect_b32 s{sWS[1]}, 2048, s{sWS[1]}
        s_cselect_b32 s{sWS[2]}, {2048+6144}, s{sWS[2]}
        s_cselect_b32 s{sWL[0]}, {3*1056}, 0
        s_cselect_b32 s{sWL[1]}, 4224, s{sWL[1]}
        s_cselect_b32 s{sWL[2]}, 5312, s{sWL[2]}
        v_cndmask_b32 v{WD+1}, v{WD}, v6, vcc
        s_lshr_b32 s{T0+1}, s{sW}, 1
        s_mul_i32 s{T0+2}, s{T0+1}, 49152
        s_mul_i32 s{T0+3}, s{T0+1}, 6336
        s_add_u32 s{T0+3}, s{T0+3}, {self.WR}""")
        for i in range(3): A(f"s_add_u32 s{sWS[i]}, s{sWS[i]}, s{T0+2}\ns_add_u32 s{sWL[i]}, s{sWL[i]}, s{T0+3}")
        A(f"""s_mul_i32 s{T0+2}, s{sTQ}, {R}
        s_and_b32 s{T0+2}, s{T0+2}, 15
        s_mul_i32 s{sWK}, s{T0+2}, 98304
        s_lshl_b32 s{T0+6}, s{T0+2}, 6
        s_lshl_b32 s{T0+7}, s{sTEAM}, 4
        s_lshl_b32 s{T0+2}, s{sTQ}, 2
        s_add_u32 s{T0+7}, s{T0+7}, s{T0+2}
        s_add_u32 s{T0+7}, s{T0+7}, s{sW}
        s_lshl_b32 s{T0+7}, s{T0+7}, 14
        s_lshl_b32 s{T0+9}, s{T0+1}, 15
        s_and_b32 s{T0+2}, s{sW}, 1
        s_lshl_b32 s{T0+2}, s{T0+2}, 11
        s_add_u32 s{T0+9}, s{T0+9}, s{T0+2}
        s_lshl_b32 s{sTF}, s{sTEAM}, 9
        s_lshl_b32 s{T0+8}, s{sSLOT}, 4
        s_add_u32 s{T0+8}, s{T0+8}, s{sTF}
        v_mov_b32 v112, 0
        v_mov_b32 v113, 0
        v_mov_b32 v114, 0
        v_mov_b32 v115, 0
        s_waitcnt lgkmcnt(0)""")
        self.stamp('p.ka')
        def mk(sr,p,sz): A(f"s_mov_b32 s{sr}, s{p}\ns_mov_b32 s{sr+1}, s{p+1}\ns_mov_b32 s{sr+2}, {sz}\ns_mov_b32 s{sr+3}, 0x20000")
        mk(SWS,82,LY.WS_USED)
        tf=[None]
        def fz():
            A(f"""s_mov_b64 exec, 1
            buffer_store_dwordx4 v[112:115], off, {WS}, s{T0+8} sc1
            s_add_u32 s{T0+8}, s{T0+8}, {LY.HFLAGS}""")
            tf[0]=A(f"buffer_store_dwordx4 v[112:115], off, {WS}, s{T0+8} sc1")
            A("s_mov_b64 exec, -1")
        self.cond(f"s_cmp_lg_u32 s{sW}, 0",fz)
        mk(SX,64,2097152); mk(SWQ,66,1572864)
        self.wg=0; self.wtag={}
        xn=[0]; tx=[None]; sXS,sXD,sXR,sXL=T0+6,T0+14,T0+7,T0+9
        A(f"""s_mul_i32 s{sXD}, s{sCW}, {self.P('xro',1)*4096}
        s_lshr_b32 s{T0+2}, s{sXD}, 5
        s_add_u32 s{sXS}, s{sXS}, s{T0+2}
        s_and_b32 s{sXS}, s{sXS}, 1023""")
        def px(n):
            for _ in range(n):
                g,q=divmod(xn[0],2); xn[0]+=1
                if g and not q: A(f"s_add_u32 s{sXS}, s{sXS}, 128\ns_and_b32 s{sXS}, s{sXS}, 1023\ns_add_u32 s{sXD}, s{sXD}, 4096\ns_and_b32 s{sXD}, s{sXD}, 0x7fff")
                tx[0]=A(f"""s_add_u32 s{sBT}, s{sXS}, s{sXR}
                {f's_add_u32 s{sBT}, s{sBT}, 8192' if q else ''}
                s_add_u32 m0, s{sXL}, s{sXD}
                {'s_add_u32 m0, m0, 1024' if q else ''}
                buffer_load_dwordx4 v{XD+q}, {srd(SX)}, s{sBT} offen lds""")
        def seq(k,d):
            for x in self.o.get(k,d).split('.'):
                if x[0]=='x': px(int(x[1:]))
                elif x[0]=='w':
                    for _ in range(int(x[1:])): self.wgrp()
                elif x[0]=='c': self.tcl=self.clear(112)
        self.tcl=None; seq('p1','x8.w1')
        A(f"s_mov_b32 s{sSLOW}, s{sXS}\ns_mov_b32 s5, s{sXR}\ns_mov_b32 s4, s{sXL}")
        sXS,sXR,sXL=sSLOW,5,4
        self.stamp('p.x')
        for sr,p_,sz in ((SDBG,80,256),(SOUT,78,2097152),(SWO,68,524288),(SWG,72,1835008),(SWU,74,1835008),(SWD,76,1835008)): mk(sr,p_,sz)
        A(f"""s_and_b32 s{sE}, s{sSLOT}, 1
        s_lshr_b32 s{T0+1}, s{sSLOT}, 1
        s_mul_i32 s{T0+1}, s{T0+1}, 224
        s_mul_i32 s{T0+2}, s{sE}, 96
        s_add_u32 s{T0+1}, s{T0+1}, s{T0+2}
        s_mul_i32 s{sGB}, s{sW}, {16*3584}
        s_add_u32 s{sGB}, s{sGB}, s{T0+1}
        v_mul_u32_u24 v{vGA}, 3584, v9
        v_lshl_add_u32 v{vGA}, v4, 4, v{vGA}
        s_lshl_b32 s{T0}, s{sTEAM}, 3
        s_add_u32 s{T0+1}, s{T0}, s{sW}
        s_sub_u32 s{T0+2}, s{T0}, s{sW}
        s_add_u32 s{T0+2}, s{T0+2}, 7
        s_mul_i32 s{sHI}, s{T0+2}, {LY.RS}
        s_mul_i32 s{sLO}, s{T0+1}, {LY.RS}
        s_add_u32 s{sHI}, s{sHI}, {LY.REC}
        s_add_u32 s{sLO}, s{sLO}, {LY.REC}
        s_mov_b32 s{sONE}, 0x3f803f80""")
        A(f"""s_getreg_b32 s{sXCC}, hwreg(HW_REG_XCC_ID)
        s_and_b32 s{sXCC}, s{sXCC}, 15
        s_add_u32 s{T0+1}, s{T0}, s{sTQ}
        s_sub_u32 s{T0+2}, s{T0}, s{sTQ}
        s_add_u32 s{T0+2}, s{T0+2}, 7
        v_bfe_u32 v5, v0, 3, 1
        v_lshrrev_b32 v6, 4, v0
        s_lshl_b32 s{T0+3}, s{sW}, 3
        v_add_u32 v4, s{T0+3}, v4
        v_lshlrev_b32 v{vROW}, 10, v4
        v_lshl_add_u32 v{vROW}, v6, 5, v{vROW}
        v_lshl_add_u32 v{vROW}, v5, 4, v{vROW}
        s_lshl_b32 s{T0+3}, s{sCW}, 7
        s_lshl_b32 s{T0+4}, s{T0+2}, 15
        s_add_u32 s{T0+4}, s{T0+4}, s{T0+3}
        s_lshl_b32 s{T0+5}, s{T0+1}, 15
        s_add_u32 s{T0+5}, s{T0+5}, s{T0+3}""")
        A(f"""s_mov_b32 s{sTO}, 200000
        s_lshl_b32 s{T0+6}, s{sSLOT}, 4
        s_add_u32 s{T0+7}, s{sTF}, s{T0+6}
        s_lshl_b32 s{T0+8}, s{sW}, 2
        s_add_u32 s{sMYF}, s{T0+7}, s{T0+8}
        s_max_i32 s{sHF}, s{sTF}, 512
        s_add_u32 s{sHF}, s{sHF}, s{T0+6}
        s_add_u32 s{sHF}, s{sHF}, {LY.HFLAGS-512}
        s_mul_i32 s{sRHI}, s{T0+2}, {LY.RS}
        s_add_u32 s{sRHI}, s{sRHI}, {LY.REC}
        s_mul_i32 s{sRLO}, s{T0+1}, {LY.RS}
        s_add_u32 s{sRLO}, s{sRLO}, {LY.REC}
        s_lshl_b32 s{sHB}, s{sTEAM}, 19
        s_lshl_b32 s{T0+6}, s{sSLOT}, 14
        s_add_u32 s{sHB}, s{sHB}, s{T0+6}
        s_add_u32 s{sHB}, s{sHB}, {LY.HALO}
        s_lshl_b32 s{sW1K}, s{sW}, 10
        s_lshl_b32 s{sLW}, s{sW}, 12
        s_lshl_b32 s{sOB}, s{sW}, 17
        s_add_u32 s{sOB}, s{sOB}, s{T0+3}
        s_mul_i32 s{sDB}, s{sW}, {448*1024}
        s_add_u32 s{sDB}, s{sDB}, s{T0+3}
        s_add_u32 s{sRT}, s{sTQ}, {f's{sCW}' if self.P('kr',2)==2 else 0}
        s_mul_i32 s{sHW}, s{sW}, {28*1024}
        s_add_u32 s{sHW}, s{sHW}, {LY.HOFF}
        s_lshl_b32 s{T0+6}, s{sW}, 13
        s_add_u32 s{T0+6}, s{T0+6}, {LY.HOFF}
        s_mul_i32 s{sGL}, s{sTQ}, {self.P('gr',1)*16384}
        s_mul_i32 s{sGG}, s{sGL}, 14
        s_add_u32 s{sGL}, s{sGL}, s{sLW}
        s_add_u32 s{sGG}, s{sGG}, s{sGB}""")
        for P_ in range(4):
            for x in self.rq(sOF+P_,P_,2048,T0+6): A(x)
        A(f"""v_lshrrev_b32 v2, 5, v0
        v_bfe_u32 v3, v0, 4, 1
        v_bfe_u32 v8, v0, 2, 2
        v_lshl_add_u32 v9, v2, 3, v8
        v_lshlrev_b32 v9, 5, v9
        v_and_b32 v7, 3, v0
        v_lshl_add_u32 v9, v7, 3, v9
        v_add_u32 v{vWV}, {RW+2048}, v9
        v_mul_u32_u24 v{vW1}, 1152, v3
        v_add3_u32 v{vW1}, v{vW1}, v9, v9
        v_sub_u32 v{vW1}, v{vW1}, v9
        v_add_u32 v{vW1}, {RW}, v{vW1}
        v_xor_b32 v{vW2}, 0x80, v{vW1}
        v_and_b32 v9, 31, v0
        v_lshlrev_b32 v{vSLD}, 6, v9
        v_lshl_add_u32 v{vSLD}, v2, 5, v{vSLD}
        v_lshlrev_b32 v9, 3, v5
        v_xor_b32 v9, v9, v4
        v_lshlrev_b32 v{vRRD}, 4, v9
        v_lshl_add_u32 v{vRRD}, v2, 12, v{vRRD}
        v_lshl_add_u32 v9, v3, 1, v5
        v_lshl_add_u32 v{vRRD}, v9, 10, v{vRRD}
        v_add_u32 v{vRRD}, {SCR}, v{vRRD}
        s_lshl_b32 s{T0+6}, s{sW}, 13
        s_add_u32 s{T0+6}, s{T0+6}, {SCR}
        v_add_u32 v{vRW0}, s{T0+6}, v{vL16}
        v_xor_b32 v{vRW1}, 0x80, v{vRW0}
        v_lshlrev_b32 v{vXST}, 4, v4
        v_lshl_add_u32 v{vXST}, v5, 9, v{vXST}
        v_lshl_add_u32 v{vXST}, v6, 10, v{vXST}
        v_lshlrev_b32 v{vSST}, 6, v4
        v_lshl_add_u32 v{vDSL}, v5, 5, v{vSST}
        v_lshl_add_u32 v{vSST}, v3, 5, v{vSST}
        v_bfe_u32 v9, v0, 2, 3
        v_lshlrev_b32 v{vPX}, 6, v9
        v_lshl_add_u32 v{vPX}, v7, 2, v{vPX}
        s_lshl_b32 s{T0+6}, s{sW}, 4
        v_add_u32 v{vPX}, s{T0+6}, v{vPX}
        v_and_b32 v9, 7, v0
        v_lshlrev_b32 v{vPA}, 4, v9
        s_lshl_b32 s{T0+6}, s{sW}, 7
        s_lshl_b32 s{T0+8}, s{sTQ}, 2
        s_add_u32 s{T0+6}, s{T0+6}, s{T0+8}
        v_add_u32 v{vPA}, s{T0+6}, v{vPA}
        v_lshrrev_b32 v8, 3, v0
        v_lshlrev_b32 v{vD}, 10, v8
        v_lshl_add_u32 v{vD}, v9, 4, v{vD}""")
        for gu in range(2):
            A(f"""v_bfe_u32 v9, v0, 1, 2
            v_and_b32 v7, 3, v8
            v_xor_b32 v9, v9, v7
            v_xor_b32 v9, {gu}, v9
            v_and_b32 v7, 1, v0
            v_lshlrev_b32 v7, 4, v7
            v_lshl_add_u32 v9, v9, 5, v7
            v_mul_u32_u24 v{vG0+gu}, 3584, v8
            v_add_u32 v{vG0+gu}, v{vG0+gu}, v9
            v_lshl_add_u32 v{vGW+gu}, v8, 7, v9
            v_add_u32 v{vGW+gu}, s{sLW}, v{vGW+gu}""")
        XA,WA=self.XA,self.WA
        A(f"""v_and_b32 v9, 7, v0
        v_bfe_u32 v7, v0, 3, 2
        v_lshlrev_b32 v{XA}, 10, v7
        v_and_b32 v7, 1, v7
        v_xor_b32 v7, v7, v9
        v_lshl_add_u32 v{XA}, v7, 7, v{XA}
        v_xor_b32 v7, v2, v9
        v_lshl_add_u32 v{XA}, v7, 4, v{XA}
        s_and_b32 s{T0+6}, s{sW}, 1
        s_lshl_b32 s{T0+6}, s{T0+6}, 15
        v_add_u32 v{XA}, s{T0+6}, v{XA}""")
        for k in (1,2,3): A(f"v_xor_b32 v{XA+k}, {k*32}, v{XA}")
        for k in range(4): A(f"v_xor_b32 v{XA+6+k}, 0x8000, v{XA+k}")
        A(f"""v_and_b32 v7, 3, v0
        v_lshlrev_b32 v7, 3, v7
        v_lshl_add_u32 v7, v2, 9, v7
        v_bfe_u32 v8, v0, 2, 2
        v_mul_u32_u24 v{WA}, 1056, v8
        v_lshl_add_u32 v{WA}, v3, 7, v{WA}
        s_lshl_b32 s{T0+6}, s{sW}, 5
        s_add_u32 s{T0+6}, s{T0+6}, {self.WR}
        v_add3_u32 v{WA}, v{WA}, v7, s{T0+6}
        v_mul_u32_u24 v{WA+1}, 1088, v5
        v_and_b32 v8, 1, v8
        v_lshl_add_u32 v{WA+1}, v8, 7, v{WA+1}
        v_lshl_add_u32 v{WA+1}, v3, 5, v{WA+1}
        s_lshr_b32 s{T0+6}, s{sW}, 1
        s_lshl_b32 s{T0+6}, s{T0+6}, 6
        s_add_u32 s{T0+6}, s{T0+6}, {self.WR+4224}
        v_add3_u32 v{WA+1}, v{WA+1}, v7, s{T0+6}
        v_add_u32 v{WA+2}, {8*6336}, v{WA}
        v_add_u32 v{WA+3}, {8*6336}, v{WA+1}""")
        PD=self.PD
        A(f"""s_sub_u32 s{T0+6}, s{sTEAM}, 1
        s_max_i32 s{T0+6}, s{T0+6}, 0
        s_lshl_b32 s{T0+6}, s{T0+6}, 5
        s_lshl_b32 s{T0+8}, s{sTEAM}, 5
        v_and_b32 v{PD}, 7, v0
        v_lshlrev_b32 v{PD}, 2, v{PD}
        v_mov_b32 v{vT0}, s{T0+8}
        v_mov_b32 v{vT1}, s{T0+6}
        v_cmp_gt_u32 vcc, 32, v0
        v_cndmask_b32 v{vT0}, v{vT1}, v{vT0}, vcc
        v_add_u32 v{PD}, v{PD}, v{vT0}""")
        self.selector(self.SEL)
        self.stamp('p.iss')
        seq('p2','x8.w3'); assert xn[0]==16
        self.stamp('p.wi')
        self.cond(f"s_cmp_lg_u32 s{sW}, 0",lambda: (A.wait_vm(tf[0]),self.mark(0xc0)()))
        TN=self.TN; S_=120; ON=116
        A(f"""v_bfe_u32 v7, v0, 3, 1
        v_and_b32 v8, 7, v0
        v_xor_b32 v9, v7, v8
        v_lshlrev_b32 v9, 7, v9
        v_lshl_add_u32 v9, v7, 10, v9
        v_lshrrev_b32 v7, 4, v0
        v_xor_b32 v7, v7, v8
        v_lshl_add_u32 v9, v7, 4, v9
        v_add_u32 v{TN}, s4, v9
        v_xor_b32 v{TN+1}, 64, v{TN}""")
        for r in range(4): A(f"v_mov_b32 v{ON+r}, s{sONE}")
        A.wait_vm(tx[0])
        self.stamp('p.xw')
        def rd(n): A(f"ds_read_b128 {v(128+(n%12)*4,4)}, v{TN+(n&1)} offset:{(n>>1)*4096}")
        for n in range(8): rd(n)
        for n in range(16):
            if n+8<16: rd(n+8)
            x=v(128+(n%12)*4,4)
            A(f"{MS} {v(S_,4)}, {v(ON,4)}, {x}, {v(S_,4) if n else '0'}\n{MS} {v(S_+4,4)}, {x}, {x}, {v(S_+4,4) if n else '0'}")
            if n%6==5 and self.wg<self.P('w1',6): self.wgrp()
        A(f"""v_and_b32 v{TN}, 15, v0
        v_lshlrev_b32 v{TN}, 3, v{TN}
        s_lshl_b32 s{T0+6}, s{sW}, 7
        s_add_u32 s{T0+6}, s{T0+6}, {self.STA}
        v_add_u32 v{TN}, s{T0+6}, v{TN}
        s_mov_b32 vcc_lo, 0xaaaaaaaa
        s_mov_b32 vcc_hi, 0xaaaaaaaa
        v_cndmask_b32 v{S_+4}, v{S_+4}, v{S_+5}, vcc
        v_cndmask_b32 v{S_+6}, v{S_+6}, v{S_+7}, vcc
        s_mov_b32 vcc_lo, 0xcccccccc
        s_mov_b32 vcc_hi, 0xcccccccc
        v_cndmask_b32 v{S_+1}, v{S_+4}, v{S_+6}, vcc
        s_mov_b32 exec_lo, 0x00f0000f
        s_mov_b32 exec_hi, 0xf0000f00
        ds_write_b64 v{TN}, {v(S_,2)}
        s_mov_b64 exec, -1""")
        self.stamp('p.st')
    def share(self,part):
        self.A(f"""s_lshl_b32 s{T0+3}, s{sTEAM}, 3
        s_add_u32 s{T0+3}, s{T0+3}, s{sCW}
        s_mul_i32 s{T0+3}, s{T0+3}, {LY.RS}
        s_lshl_b32 s{T0+15}, s{sTQ}, 2
        s_add_u32 s{T0+15}, s{T0+15}, s{sW}
        s_mul_i32 s{T0+15}, s{T0+15}, {1280 if part else 8192}
        s_add_u32 s{T0+3}, s{T0+3}, s{T0+15}
        s_add_u32 s{T0+3}, s{T0+3}, {LY.REC+(131072 if part else 0)}""")
    def clear(self,Z):
        A=self.A
        self.share(0)
        for j in range(8):
            if j==4: A(f"s_add_u32 s{T0+3}, s{T0+3}, 4096")
            A(f"buffer_store_dwordx4 {v(Z,4)}, v{vL16}, {WS}, s{T0+3} offen offset:{(j%4)*1024} sc1")
        self.share(1)
        A(f"buffer_store_dwordx4 {v(Z,4)}, v{vL16}, {WS}, s{T0+3} offen sc1\ns_mov_b64 exec, 0xffff")
        t=A(f"buffer_store_dwordx4 {v(Z,4)}, v{vL16}, {WS}, s{T0+3} offen offset:1024 sc1")
        A("s_mov_b64 exec, -1")
        return t
    def touch(self,part):
        A=self.A
        A(f"s_mov_b32 s{T0+14}, s{T0+15}")
        self.share(part)
        A(f"s_mov_b32 s{T0+15}, s{T0+14}\nv_lshlrev_b32 v{vT0}, 7, v0")
        if part: A("s_mov_b64 exec, 0x3ff")
        A(f"buffer_load_dword v250, v{vT0}, {WS}, s{T0+3} offen")
        if part: A("s_mov_b64 exec, -1")
    def touch2(self):
        A=self.A; n=self.P('tl',2)
        if not n: return
        A(f"""s_lshl_b32 s{T0+8}, s{sTEAM}, 3
        s_add_u32 s{T0+8}, s{T0+8}, s{sCW}
        s_mul_i32 s{T0+8}, s{T0+8}, {LY.RS}
        s_lshl_b32 s{T0+9}, s{sTQ}, 2
        s_add_u32 s{T0+9}, s{T0+9}, s{sW}
        s_mul_i32 s{T0+9}, s{T0+9}, {n*128}
        s_add_u32 s{T0+8}, s{T0+8}, s{T0+9}
        s_add_u32 s{T0+8}, s{T0+8}, {LY.REC+LY.RS-n*2048}
        v_lshlrev_b32 v{vT0}, 7, v0
        s_mov_b64 exec, {(1<<n)-1}
        buffer_load_dword v124, v{vT0}, {WS}, s{T0+8} offen
        s_sub_u32 s{T0+8}, s{T0+8}, {LY.RS-n*2048-LY.HOFF-32768}
        {f'buffer_load_dword v124, v{vT0}, {WS}, s{T0+8} offen' if self.P('hs',1) else ''}
        s_mov_b64 exec, -1""")
    def ctouch(self,dst,sp=T0+8):
        A=self.A; l=A.newlabel('L_ct')
        A(f"s_getpc_b64 {s(sp,2)}"); A.label(l)
        A(f"""s_lshl_b32 s{sBT}, s{sSLOT}, 2
        s_add_u32 s{sBT}, s{sBT}, s{sW}
        s_lshl_b32 s{sBT}, s{sBT}, 9
        v_and_b32 v{vT0}, 3, v0
        v_lshlrev_b32 v{vT0}, 7, v{vT0}
        v_add_u32 v{vT0}, s{sBT}, v{vT0}
        v_min_u32 v{vT0}, L_end-{l}-4, v{vT0}
        global_load_dword v{dst}, v{vT0}, {s(sp,2)}""")
    def mode(self):
        A=self.A; PD=self.PD
        A(f"s_mov_b32 s{T0+9}, 0x40404040")
        self.try_check(srd(SDBG),'0',PD+1,PD,f"s{T0+9}",mask=True)
        A(f"""s_mul_i32 s{T0+9}, s{sXCC}, 0x01010101
        v_and_b32 v{vT0}, 0x0f0f0f0f, v{PD+1}
        v_cmp_ne_u32 vcc, s{T0+9}, v{vT0}
        s_cmp_lg_u32 vcc_lo, 0
        s_cselect_b32 s{sMODE}, 1, 0""")
        if self.force_mixed: A(f"s_mov_b32 s{sMODE}, 1")
    XR,SL,WF,AH,AL,RR,TM,MD,MT=64,104,112,128,160,192,208,220,236
    def qlead(self): return self.P('ql',8)
    def xs(self,i): return v(self.XR+(i%10)*4,4)
    def qa_prefetch(self,n):
        A=self.A
        def st(): A(f"""s_add_u32 s{T0+8}, s{sHI}, {LY.STX}
        buffer_load_dwordx4 {v(self.RR,4)}, v{vSLD}, {WS}, s{T0+8} offen sc1
        buffer_load_dwordx4 {v(self.RR+4,4)}, v{vSLD}, {WS}, s{T0+8} offen offset:16 sc1""")
        return [lambda: self.xl(0),st]+[(lambda i=i: self.xl(i)) for i in range(1,n)]
    def xl(self,i):
        A=self.A
        if i%32==0: A(f"s_mov_b32 s{sXN}, s{sLO if i else sHI}")
        elif i%4==0: A(f"s_add_u32 s{sXN}, s{sXN}, 4096")
        A(f"buffer_load_dwordx4 {self.xs(i)}, v{vL16}, {WS}, s{sXN} offen offset:{(i%4)*1024} sc1")
    def hstore(self,AC,hi):
        A=self.A
        A(f"s_sub_u32 s{T0+2}, s{sHB}, s{sW1K}\ns_add_u32 s{T0+2}, s{T0+2}, 7168" if hi else f"s_add_u32 s{T0+2}, s{sHB}, s{sW1K}")
        A(f"s_add_u32 s{T0+3}, s{T0+2}, 8192")
        A(f"buffer_store_dwordx4 {v(AC+4,4)}, v{vL16}, {WS}, s{T0+2} offen sc1")
        return A(f"buffer_store_dwordx4 {v(AC+16,4)}, v{vL16}, {WS}, s{T0+3} offen sc1")
    def scal(self,src,tb):
        TM,RR=self.TM,self.RR
        self.A(f"v_mov_b32 v{tb}, v{src}\nv_mov_b32 v{tb+1}, v{src}\nv_permlane32_swap_b32 v{tb}, v{tb+1}")
        self.ln_scalars(tb,tb+1,TM,TM+4,tb+2)
        self.A(f"""v_mov_b32 v{TM+1}, v{TM}
        v_mov_b32 v{TM+2}, v{TM}
        v_mov_b32 v{TM+3}, v{TM}
        v_mul_f32 v{TM+5}, 0x3eb8aa3b, v{TM+4}
        v_lshrrev_b32 v{tb+3}, 5, v{vL}
        v_lshlrev_b32 v{tb+3}, 4, v{tb+3}""")
        for q in range(16): self.A(f"ds_bpermute_b32 v{RR+q}, v{tb+3}, v{TM+4} offset:{((q>>2)*8+(q&3))*4}")
    def masks(self):
        TM,MD,MT=self.TM,self.MD,self.MT
        def f():
            self.A(f"""v_and_b32 v{vT0}, 31, v0
            v_lshrrev_b32 v{vT1}, 5, v0
            v_lshlrev_b32 v{TM+10}, 2, v{vT1}
            v_sub_u32 v{TM+10}, v{vT0}, v{TM+10}
            v_mov_b32 v{TM+11}, 0xf149f2ca""")
            for r in range(16):
                self.A(f"v_cmp_le_i32 vcc, {(r//4)*8+r%4}, v{TM+10}\nv_cndmask_b32_e64 v{MD+r}, v{TM+11}, 0, vcc\nv_cndmask_b32_e64 v{MT+r}, 0, v{TM+11}, vcc")
        m3=self.cap(f)
        return [m3[:5]]+[m3[5+3*r:8+3*r] for r in range(16)]
    def epi(self,AC):
        TM,RR=self.TM,self.RR
        for b in range(2):
            for r in range(8): self.A(f"v_mul_f32 v{AC+b*8+r}, v{AC+b*8+r}, v{TM+5-b}")
            for r in range(4): self.A(f"v_cvt_pk_bf16_f32 v{AC+b*4+r}, v{AC+b*8+2*r}, v{AC+b*8+2*r+1}")
        for r in range(16): self.A(f"v_mul_f32 v{AC+16+r}, v{AC+16+r}, v{RR+r}")
        for r in range(8): self.A(f"v_cvt_pk_bf16_f32 v{AC+16+r}, v{AC+16+2*r}, v{AC+16+2*r+1}")
        for r in range(4): self.A(f"v_permlane16_swap_b32 v{AC+16+r}, v{AC+20+r}")
    def wrd(self,ks,r):
        o=(ks>>1)*3072+(ks&1)*512
        return [f"ds_read_b64_tr_b16 {v(r,2)}, v{vW1} offset:{o}",f"ds_read_b64_tr_b16 {v(r+2,2)}, v{vW2} offset:{o}",
                f"ds_read_b64_tr_b16 {v(r+4,2)}, v{vWV} offset:{o}",f"ds_read_b64_tr_b16 {v(r+6,2)}, v{vWV} offset:{o+128}"]
    def augw(self,r): return [f"v_mov_b32 v{r}, v{CSQ}",f"v_mov_b32 v{r+4}, v{CSV}"]+[f"v_mov_b32 v{r+j}, 0" for j in (1,2,3,5,6,7)]
    def qmm(self,AC,b,wr,x,first):
        acc=v(AC+b*16,16); c='0' if first else acc
        return f"{MF} {acc}, {v(wr,4)}, {x}, {c}" if b==0 else f"{MF} {acc}, {x}, {v(wr+4,4)}, {c}"
    def qa0(self):
        A=self.A; WF,TM,RR,XF,AW,XA,WA,TN=self.WF,self.TM,self.RR,self.XF,self.AW,self.XA,self.WA,self.TN
        CQ,CV,SEL=self.CQ,self.CV,self.SEL; Q0,VV,Q1=128,144,160; T2=188; TB=108
        def rds(i):
            n=((i>>1)%self.NR)*2+(i&1); r=WF+(i&1)*8; b=WA+2*(n>=8); o=(n%8)*6336; x=XF+(i&1)*8
            return [f"ds_read_b64_tr_b16 {v(r,2)}, v{b} offset:{o}",f"ds_read_b64_tr_b16 {v(r+2,2)}, v{b} offset:{o+256}",
                    f"ds_read_b128 {v(x,4)}, v{XA+i%4} offset:{(i>>2)*4096}",f"ds_read_b128 {v(x+4,4)}, v{XA+6+i%4} offset:{(i>>2)*4096}",
                    f"ds_read_b64_tr_b16 {v(r+4,2)}, v{b+1} offset:{o}",f"ds_read_b64_tr_b16 {v(r+6,2)}, v{b+1} offset:{o+256}"]
        def sync(G_): A.wait_vm(self.wtag[G_]); A("s_barrier")
        def st():
            self.A(f"""v_and_b32 v{TB}, 31, v0
            v_lshlrev_b32 v{TB}, 3, v{TB}
            s_and_b32 s{T0+6}, s{sW}, 1
            s_lshl_b32 s{T0+6}, s{T0+6}, 8
            s_add_u32 s{T0+6}, s{T0+6}, {self.STA}
            v_add_u32 v{TB}, s{T0+6}, v{TB}
            v_xor_b32 v{TB+1}, 0x100, v{TB}
            ds_read_b64 {v(RR,2)}, v{TB}
            ds_read_b64 {v(RR+2,2)}, v{TB+1}""")
            self.ln_scalars(RR,RR+1,TM,TM+4,TB); self.ln_scalars(RR+2,RR+3,T2,TB+2,TB+1)
            for r in (1,2,3): self.A(f"v_mov_b32 v{TM+r}, v{TM}\nv_mov_b32 v{T2+r}, v{T2}")
            self.A(f"""v_mul_f32 v{TM+5}, 0x3eb8aa3b, v{TM+4}
            v_mul_f32 v{TB+3}, 0x3eb8aa3b, v{TB+2}
            s_lshl_b32 s{T0+6}, s{sW}, 8
            s_add_u32 s{T0+6}, s{T0+6}, {self.STA+512}
            v_lshlrev_b32 v{TB}, 2, v0
            v_add_u32 v{TB}, s{T0+6}, v{TB}
            ds_write_b32 v{TB}, v{TM+4}
            v_lshrrev_b32 v{TB+1}, 5, v{vL}
            v_lshlrev_b32 v{TB+1}, 4, v{TB+1}
            v_add_u32 v{TB+1}, s{T0+6}, v{TB+1}""")
            for q in range(4): self.A(f"ds_read_b128 {v(RR+4*q,4)}, v{TB+1} offset:{q*32}")
        A("s_waitcnt lgkmcnt(0)")
        sync(0)
        for x in rds(0): A(x)
        fill=self.cap(st)+[f"v_mov_b32 v{AW+j}, 0" for j in (1,2,3,5,6,7)]; wq=[]
        bs=self.S('qs','20-27+28-31*3'); fr=self.P('qf0',1)
        sK,sV,sR0,sR1=T0+6,T0+7,T0+1,T0+15
        fill+=self.cap(lambda: self.A(f"""s_lshl_b32 s{T0+8}, s{sSLOT}, 14
        s_sub_u32 s{T0+2}, s{sHB}, s{T0+8}
        s_lshl_b32 s{T0+8}, s{sTQ}, 11
        s_add_u32 s{sV}, s{T0+2}, s{T0+8}
        s_and_b32 s{T0+8}, s{sW}, 1
        s_lshl_b32 s{T0+8}, s{T0+8}, 10
        s_add_u32 s{sV}, s{sV}, s{T0+8}
        s_lshl_b32 s{T0+8}, s{sW}, 14
        s_add_u32 s{sK}, s{sV}, s{T0+8}
        s_and_b32 s{T0+8}, s{T0+8}, 0x8000
        s_add_u32 s{sV}, s{sV}, s{T0+8}
        s_lshl_b32 s{T0+8}, s{self.sCV}, 16
        s_add_u32 s{sV}, s{sV}, s{T0+8}
        s_add_u32 s{sV}, s{sV}, 8192
        s_lshl_b32 s{T0+8}, s{self.sCK}, 16
        s_add_u32 s{sK}, s{sK}, s{T0+8}
        s_lshl_b32 s{T0+2}, s{sTEAM}, 2
        s_add_u32 s{T0+2}, s{T0+2}, s{sTQ}
        s_lshl_b32 s{T0+2}, s{T0+2}, 1
        s_and_b32 s{T0+8}, s{sW}, 1
        s_add_u32 s{T0+2}, s{T0+2}, s{T0+8}
        s_mul_i32 s{sR0}, s{T0+2}, {LY.RS}
        s_xor_b32 s{T0+2}, s{T0+2}, 1
        s_mul_i32 s{sR1}, s{T0+2}, {LY.RS}
        s_add_u32 s{T0+8}, s{sW1K}, {LY.REC}
        s_add_u32 s{sR0}, s{sR0}, s{T0+8}
        s_add_u32 s{sR1}, s{sR1}, s{T0+8}
        v_mov_b32 v{TN}, s{sCW}
        v_mov_b32 v{TN+1}, s{self.sCK}
        v_bfe_u32 v{TB}, v0, 4, 2
        v_cmp_eq_u32 vcc, 1, v{TB}
        v_cndmask_b32 v{TN}, v{TN}, v{TN+1}, vcc
        v_lshlrev_b32 v{TN}, 11, v{TN}
        v_lshl_add_u32 v{TN}, v0, 2, v{TN}
        v_lshlrev_b32 v{TN+1}, 2, v0
        s_mul_i32 s{T0+2}, s{sTEAM}, {8*LY.RS}
        s_lshl_b32 s{T0+8}, s{sW}, 9
        s_add_u32 s{T0+2}, s{T0+2}, s{T0+8}
        s_add_u32 s{T0+2}, s{T0+2}, {LY.REC+LY.CSOFF}
        s_lshl_b32 s{T0+8}, s{self.sCV}, 11
        s_add_u32 s{T0+8}, s{T0+8}, s{T0+2}"""))
        fl=[]
        for x in fill: fl+= x if isinstance(x,list) else [x]
        fill=fl
        for i in range(32):
            self.fine('qa',i,2)
            r=WF+(i&1)*8; x=XF+(i&1)*8; c=lambda acc,n: v(acc,n) if i else '0'
            big=[f"{MF} {v(Q0,16)}, {v(r,4)}, {v(x,4)}, {c(Q0,16)}",f"{MF} {v(Q1,16)}, {v(r,4)}, {v(x+4,4)}, {c(Q1,16)}",f"{MF} {v(VV,16)}, {v(x,4)}, {v(r+4,4)}, {c(VV,16)}"]
            small=[f"{MS} {v(CQ,4)}, {v(SEL,4)}, {v(r,4)}, {c(CQ,4)}",f"{MS} {v(CV,4)}, {v(SEL,4)}, {v(r+4,4)}, {c(CV,4)}"]
            if i==31:
                assert not fill
                for y in small+big[:1]: A(y)
                self.bg(bs.get(i,0))
                self.cs_pack(CQ,CQ+1); A(f"v_mov_b32 v{AW}, v{CQ}"); A(big[1])
                self.cs_pack(CV,CV+1); A(f"v_mov_b32 v{AW+4}, v{CV}"); A(big[2])
                break
            nx=rds(i+1)
            A(big[0])
            if i&1:
                assert not any(g<=(i+1)>>1 for g in range(self.wg) if g not in self.wtag)
                sync((i+1)>>1)
                if self.wg<16 and self.wg<=(i>>1)+self.NR-1: self.wgrp(wq)
            self.pop(nx,4)
            if i>=1: self.pop(fill,fr)
            A(big[1]); self.pop(nx,2)
            if not i&1: self.pop(wq)
            if i>=1: self.pop(fill,fr)
            A(big[2])
            self.pop(wq)
            if i==self.P('qr',18):
                A(f"""buffer_load_dwordx4 {v(RES,4)}, v{vROW}, {srd(SX)}, s{T0+4} offen
                buffer_load_dwordx4 {v(RES+4,4)}, v{vROW}, {srd(SX)}, s{T0+5} offen""")
            if i==self.P('qm',19): self.try_issue(srd(SDBG),'0',self.PD+1,self.PD)
            if i==self.P('pt',99): self.touch(0)
            if i==self.P('pt2',99): self.touch(1)
            self.bg(bs.get(i,0))
            if i>=1: self.pop(fill,fr)
            A(small[0])
            if i>=1: self.pop(fill,1)
            A(small[1])
        assert self.wg==16
        A(f"{MF} {v(Q0,16)}, {v(AW,4)}, {v(TM,4)}, {v(Q0,16)}")
        A(f"{MF} {v(Q1,16)}, {v(AW,4)}, {v(T2,4)}, {v(Q1,16)}")
        A(f"{MF} {v(VV,16)}, {v(TM,4)}, {v(AW+4,4)}, {v(VV,16)}")
        self.stamp('qa.mm')
        self.mode()
        self.stamp('qa.md')
        def stq(reg,so,fl=''): return A(f"buffer_store_dwordx4 {v(reg,4)}, v{vL16}, {WS}, s{so} offen{fl}")
        cf=' sc1' if self.P('csc',1) else ''
        A(f"""buffer_store_dword v{CQ}, v{TN}, {WS}, s{T0+2} offen{cf}
        buffer_store_dword v{CV}, v{TN+1}, {WS}, s{T0+8} offen offset:256{cf}
        s_xor_b32 s{T0+9}, s{sK}, 1024
        s_add_u32 s{T0+12}, s{sV}, 16384
        s_lshl_b32 s{T0+10}, s{self.sCK}, 12
        s_lshl_b32 s{T0+11}, s{sCW}, 12
        s_add_u32 s{T0+11}, s{T0+11}, {LY.HOFF}""")
        xv=self.P('xv',3); xf=' '+self.o.get('xf','sc1').replace('_',' ') if xv in (2,3) else ''
        for AC,sc,rec in ((Q0,TM+4,sR0),(Q1,TB+2,sR1)):
            for b in (1,0):
                for r in range(8): A(f"v_mul_f32 v{AC+b*8+r}, v{AC+b*8+r}, v{sc+1-b}")
                for r in range(4): A(f"v_cvt_pk_bf16_f32 v{AC+b*8+r}, v{AC+b*8+2*r}, v{AC+b*8+2*r+1}")
                A(f"s_add_u32 s{T0+13}, s{rec}, s{T0+11-b}")
                if b and xv==3: stq(AC+8,sK if AC==Q0 else T0+9,' sc1')
                else: stq(AC+b*8,T0+13,xf)
        for r in range(16): A(f"v_mul_f32 v{VV+r}, v{VV+r}, v{RR+r}")
        for r in range(8): A(f"v_cvt_pk_bf16_f32 v{VV+r}, v{VV+2*r}, v{VV+2*r+1}")
        for r in range(4): A(f"v_permlane16_swap_b32 v{VV+r}, v{VV+4+r}")
        A(f"""s_and_b32 s{T0+10}, s{sW1K}, 1024
        s_sub_u32 s{T0+13}, s{sR0}, s{T0+10}
        s_lshl_b32 s{T0+10}, s{self.sCV}, 12
        s_add_u32 s{T0+13}, s{T0+13}, s{T0+10}
        s_add_u32 s{T0+13}, s{T0+13}, {LY.VOFF}""")
        if xv==3: stq(VV,sV,' sc1'); tp=stq(VV+4,T0+12,' sc1')
        else: stq(VV,T0+13,xf); tp=stq(VV+4,T0+13,' offset:1024'+xf)
        self.th0=tp
        def dup():
            for reg,so in ((Q0+8,sK),(Q1+8,T0+9),(VV,sV),(VV+4,T0+12)): self.th0=stq(reg,so,' sc1')
        if xv in (1,2): dup()
        self.tq0=tp
        self.bg(self.P('b1',0)); self.tgw(self.P('t1',0))
        self.stamp('qa.st')
        self.conv_setup(self.CR)
        A(f"s_add_u32 s{T0+13}, s{sLW}, 32768")
        for r in range(3): A(f"v_subrev_u32 v{self.CR+r}, s{T0+13}, v{self.CR+r}")
        self.cv(self.P('c0',0))
        self.pop(self.masks(),99); self.att_addr()
    def qa(self):
        if self.L==0: return self.qa0()
        A=self.A; SL,WF,RR,TM=self.SL,self.WF,self.RR,self.TM
        LEAD=self.qlead()
        def scal(src): self.sum8(src); self.scal(src,TM+6)
        def rd(i): return self.augw(WF+(i&1)*8) if i%33==32 else self.wrd(i%33,WF+(i&1)*8)
        mh=self.masks()
        fill=self.cap(lambda: scal(RR))
        for x in rd(0): A(x)
        ht=[None]; PX=SL+7
        KT=32-LEAD-self.P('qp',6); fr=self.P('qf',2)
        for i in range(66):
            p,ks=divmod(i,33); AC=self.AL if p else self.AH; wr=WF+(i&1)*8
            xi=p*32+ks
            self.fine('qa',i)
            x=self.xs(xi) if ks<32 else v(TM,4)
            nx=rd(i+1) if i<65 else []
            if i==9:
                self.stamp('qa.9')
                A.wait_vm(self.tlate); A("s_barrier")
                self.stamp('qa.9b')
            if i==33:
                assert not fill and not mh
                self.stamp('qa.h')
                fill=self.cap(lambda: self.epi(self.AH))+[lambda: ht.__setitem__(0,self.hstore(self.AH,True))]+self.cap(lambda: scal(SL))
                fill+=self.cap(self.att_addr)+[self.halo_try]
            if i==46: self.stamp('qa.46')
            for b in range(2):
                A(self.qmm(AC,b,wr,x,ks==0))
                self.pop(nx,len(nx)//(2-b) if len(nx)<8 else 4)
                if b==0 and ks<32 and xi+LEAD<64:
                    if xi+LEAD==32:
                        self.try_check(WS,f"s{sTF}",PX,vPX,self.F(F_X2)); self.acquire()
                    self.xl(xi+LEAD)
                    if xi+LEAD==32:
                        A(f"""s_add_u32 s{T0+8}, s{sLO}, {LY.STX}
                        buffer_load_dwordx4 {v(SL,4)}, v{vSLD}, {WS}, s{T0+8} offen sc1
                        buffer_load_dwordx4 {v(SL+4,4)}, v{vSLD}, {WS}, s{T0+8} offen offset:16 sc1""")
                if i>=2 and not (i==33 and b==0): self.pop(fill,fr if p else 2)
                if p==0 and not fill: self.pop(mh)
            if i==10: self.publish(self.F(F_X2),self.txlo)
            if i==KT: self.try_issue(WS,f"s{sTF}",PX,vPX)
            if i==self.P('qh',58): self.hpublish(1,ht[0])
        self.pop(fill,99)
        self.stamp('qa.mm')
        self.epi(self.AL)
    S0,P0,KFR,AD,VFR,OB,OA,HPA,HPD,PLA=64,96,112,216,144,176,192,214,215,120
    OF=[132,136,140,164,168,172,208,212]
    def att_addr(self):
        AD=self.AD
        self.A(f"""s_sub_u32 s{T0+3}, 7168, s{sW1K}
        v_add_u32 v{AD}, {AK}, v{vL16}
        v_add_u32 v{AD+1}, s{T0+3}, v{AD}
        v_add_u32 v{AD}, s{sW1K}, v{AD}
        v_and_b32 v{AD+2}, 15, v0
        v_lshlrev_b32 v{AD+2}, 4, v{AD+2}
        v_lshrrev_b32 v{vT0}, 5, v0
        v_lshl_add_u32 v{AD+2}, v{vT0}, 9, v{AD+2}
        v_bfe_u32 v{vT0}, v0, 4, 1
        v_lshl_add_u32 v{AD+2}, v{vT0}, 14, v{AD+2}
        v_add_u32 v{AD+2}, {AV}, v{AD+2}
        v_add_u32 v{AD+3}, s{T0+3}, v{AD+2}
        v_add_u32 v{AD+2}, s{sW1K}, v{AD+2}
        v_and_b32 v{self.HPA}, 3, v0
        v_lshlrev_b32 v{self.HPA}, 2, v{self.HPA}""")
    def halo_try(self): self.try_issue(WS,f"s{sHF}",self.HPD,self.HPA)
    def halo_get(self,hi):
        A=self.A; r=[None]
        def f():
            self.try_check(WS,f"s{sHF}",self.HPD,self.HPA,2*self.L+(1 if hi else 2)); self.acquire()
            o=4096 if hi else 0
            r[0]=A(f"""s_add_u32 s{T0+5}, s{sHB}, s{sW1K}
            s_sub_u32 s{T0+5}, s{T0+5}, {524288-o}
            s_add_u32 s{T0+6}, s{T0+5}, 8192
            s_add_u32 m0, s{sW1K}, {AK+o}
            buffer_load_dwordx4 v{vL16}, {WS}, s{T0+5} offen sc1 lds
            s_add_u32 m0, s{sW1K}, {AV+o}
            buffer_load_dwordx4 v{vL16}, {WS}, s{T0+6} offen sc1 lds""")
        self.cond(f"s_cmp_eq_u32 s{sTEAM}, 0",f)
        return r[0]
    def halo_all(self):
        A=self.A; r=[None]
        def f():
            self.try_check(WS,f"s{T0+13}",self.HPD,self.HPA,2); self.acquire()
            A(f"s_add_u32 s{T0+5}, s{sHB}, s{sW1K}")
            for o,d in ((4096,AK+4096),(8192+4096,AV+4096),(0,AK),(8192,AV)):
                r[0]=A(f"s_sub_u32 s{T0+6}, s{T0+5}, {524288-o}\ns_add_u32 m0, s{sW1K}, {d}\nbuffer_load_dwordx4 v{vL16}, {WS}, s{T0+6} offen sc1 lds")
        self.cond(f"s_cmp_eq_u32 s{sTEAM}, 0",f)
        return r[0]
    def dump(self,stage):
        A=self.A; D=216; T=121; v=a
        A(f"""s_lshl_b32 s{T0+8}, s{sTEAM}, 1
        s_lshr_b32 s{T0+9}, s{sW}, 1
        s_add_u32 s{T0+8}, s{T0+8}, s{T0+9}
        s_and_b32 s{T0+9}, s{sW}, 1""")
        if stage==0:
            A(f"""s_mul_i32 s{T0+8}, s{T0+8}, 98304
            s_lshl_b32 s{T0+10}, s{sSLOT}, 5
            s_add_u32 s{T0+8}, s{T0+8}, s{T0+10}
            s_lshl_b32 s{T0+10}, s{T0+9}, 11
            s_add_u32 s{T0+10}, s{T0+10}, s{T0+8}
            s_mul_i32 s{T0+9}, s{T0+9}, 49152
            s_add_u32 s{T0+9}, s{T0+9}, s{T0+8}
            v_lshrrev_b32 v{T}, 1, v0
            v_xor_b32 v{T+1}, 4, v{T}
            v_mul_u32_u24 v{T}, 3072, v{T}
            v_mul_u32_u24 v{T+1}, 3072, v{T+1}
            v_and_b32 v{T+2}, 1, v0
            v_lshl_add_u32 v{T}, v{T+2}, 4, v{T}
            v_lshl_add_u32 v{T+1}, v{T+2}, 4, v{T+1}
            buffer_load_dwordx4 {v(D,4)}, v{T}, {srd(SWQ)}, s{T0+10} offen
            s_mov_b64 exec, 0xffffffff
            buffer_load_dwordx4 {v(D+4,4)}, v{T+1}, {srd(SWQ)}, s{T0+9} offen offset:1024
            s_mov_b64 exec, -1""")
        else:
            A(f"""s_mul_i32 s{T0+8}, s{T0+8}, 3072
            s_mul_i32 s{T0+10}, s{sSLOT}, 49152
            s_add_u32 s{T0+8}, s{T0+8}, s{T0+10}
            s_add_u32 s{T0+8}, s{T0+8}, {LY.WQI}
            s_lshl_b32 s{T0+10}, s{T0+9}, 11
            s_add_u32 s{T0+10}, s{T0+10}, s{T0+8}
            s_lshl_b32 s{T0+9}, s{T0+9}, 9
            s_add_u32 s{T0+9}, s{T0+9}, s{T0+8}
            buffer_store_dwordx4 {v(D,4)}, v{vL16}, {WS}, s{T0+10} offen sc1
            s_mov_b64 exec, 0xffffffff""")
            self.tdump=A(f"buffer_store_dwordx4 {v(D+4,4)}, v{vL16}, {WS}, s{T0+9} offen offset:1024 sc1")
            A("s_mov_b64 exec, -1")
    def wo_fetch(self,B,rec,regs_):
        for k in range(8):
            if k%2==0: B(f"s_add_u32 s{T0+8}, s{rec}, s{sOF+k//2}")
            B(f"buffer_load_dwordx4 {v(regs_[k],4)}, v{vL16}, {WS}, s{T0+8} offen offset:{(k%2)*1024} sc1")
    def att(self):
        A=self.A; L=self.L
        S0,P0,KFR,AD,VFR,OB,OA,MD,MT=self.S0,self.P0,self.KFR,self.AD,self.VFR,self.OB,self.OA,self.MD,self.MT
        QB,QA=self.AH,self.AL
        A(f"""s_cmp_eq_u32 s{sTEAM}, 0
        s_cselect_b32 s{T0+3}, 0, s{sONE}
        s_lshl_b32 s{T0+2}, s{sW}, 11
        s_add_u32 s{T0+2}, s{T0+2}, {AO}
        v_add_u32 v{S0+8}, s{T0+2}, v{vL16}
        s_mov_b32 s{sSLOW}, 0""")
        for r in range(4): A(f"v_mov_b32 v{S0+r}, s{sONE}\nv_mov_b32 v{S0+4+r}, s{T0+3}")
        A("s_barrier"); self.ldsfree=True
        self.bg(self.P('b15',0))
        if L: hg=self.halo_get(True)
        if L: A(f"""ds_write_b128 v{AD+1}, {v(QB+4,4)} offset:8192
        ds_write_b128 v{AD+1}, {v(QB+16,4)} offset:{8192+16384}""")
        A(f"""ds_write_b128 v{S0+8}, {v(S0,4)} offset:8192
        ds_write_b128 v{S0+8}, {v(S0,4)} offset:9216""")
        if L: A(f"""ds_write_b128 v{AD}, {v(QA+4,4)} offset:8192
        ds_write_b128 v{AD}, {v(QA+16,4)} offset:{8192+16384}""")
        A(f"""ds_write_b128 v{S0+8}, {v(S0+4,4)}
        ds_write_b128 v{S0+8}, {v(S0+4,4)} offset:1024""")
        def z():
            A(f"v_subrev_u32 v{S0+8}, {AO-AK}, v{S0+8}")
            for j in range(2):
                A(f"ds_write_b128 v{S0+8}, {v(S0+4,4)} offset:{j*1024}\nds_write_b128 v{S0+8}, {v(S0+4,4)} offset:{16384+j*1024}")
        self.cond(f"s_cmp_lg_u32 s{sTEAM}, 0",z)
        if L: hl=self.hstore(self.AL,False)
        else:
            HPA,HPD=self.HPA,self.HPD
            A(f"""v_and_b32 v{S0+9}, 15, v0
            v_lshlrev_b32 v{S0+9}, 2, v{S0+9}
            v_lshrrev_b32 v{HPA}, 4, v0
            v_min_u32 v{HPA}, 2, v{HPA}
            v_mul_u32_u24 v{HPA}, {8-self.P('mx',3)}, v{HPA}
            v_add_u32 v{HPA}, s{sCW}, v{HPA}
            v_and_b32 v{HPA}, 7, v{HPA}
            v_lshl_add_u32 v{HPA}, v{HPA}, 6, v{S0+9}
            s_lshl_b32 s{T0+9}, s{sSLOT}, 4
            s_sub_u32 s{T0+13}, s{sHF}, s{T0+9}
            s_lshl_b32 s{T0+9}, s{sE}, 6
            v_add_u32 v{S0+9}, s{T0+9}, v{S0+9}
            v_lshlrev_b32 v{S0+10}, 2, v0
            v_cmp_gt_u32 vcc, 32, v0
            v_cndmask_b32 v{S0+9}, v{S0+10}, v{S0+9}, vcc
            s_lshl_b32 s{T0+4}, s{sSLOT}, 10
            s_add_u32 s{T0+5}, s{T0+4}, s{sLO}
            s_add_u32 s{T0+6}, s{T0+5}, {4*LY.RS}
            s_add_u32 s{T0+9}, s{T0+5}, {LY.VOFF}
            s_add_u32 s{T0+10}, s{T0+6}, {LY.VOFF}
            s_add_u32 s{T0+11}, s{T0+5}, {LY.HOFF}""")
            if self.P('xv',3)==3: A(f"""s_add_u32 s{T0+5}, s{sHB}, s{sW1K}
            s_add_u32 s{T0+6}, s{T0+5}, 4096
            s_add_u32 s{T0+9}, s{T0+5}, 8192
            s_add_u32 s{T0+10}, s{T0+5}, {8192+4096}""")
            A(f"""s_add_u32 s{T0+12}, s{T0+4}, s{sHI}
            s_add_u32 s{T0+12}, s{T0+12}, {LY.HOFF}
            s_mul_i32 s{T0+8}, s{sTEAM}, {8*LY.RS}
            s_lshr_b32 s{T0+4}, s{T0+4}, 1
            s_add_u32 s{T0+8}, s{T0+8}, s{T0+4}
            s_add_u32 s{T0+8}, s{T0+8}, {LY.REC+LY.CSOFF}""")
            self.publish(self.F(F_X1),self.tq0)
            self.hpublish(2,self.th0)
            self.stamp('att.p')
            self.try_issue(WS,f"s{sTF}",HPD,HPA)
            self.tgw(self.P('t2',0)); self.cv(self.P('c1',8))
            self.try_check(WS,f"s{sTF}",HPD,HPA,self.F(F_X1)); self.acquire()
            self.stamp('att.c')
            A(f"buffer_load_dwordx4 {v(QB,4)}, v{vL16}, {WS}, s{T0+12} offen sc1")
            for so,o in ((T0+6,AK+8192+4096),(T0+10,AV+8192+4096),(T0+5,AK+8192),(T0+9,AV+8192)):
                tk=A(f"s_add_u32 m0, s{sW1K}, {o}\nbuffer_load_dwordx4 v{vL16}, {WS}, s{so} offen sc1 lds")
            A(f"buffer_load_dwordx4 {v(QA,4)}, v{vL16}, {WS}, s{T0+11} offen sc1")
            def csl():
                A(f"""buffer_load_dword v{CSQ}, v{CSQ}, {WS}, s{sQ} offen sc1
                buffer_load_dword v{CSV}, v{CSV}, {WS}, s{sQ} offen offset:256 sc1""")
            A(f"v_mov_b32 v{CSQ}, v{S0+10}\nv_mov_b32 v{CSV}, v{S0+9}\ns_mov_b32 s{sQ}, s{T0+8}")
            self.try_issue(WS,f"s{T0+13}",HPD,HPA)
            self.bg(self.P('b2',0)); self.cv(self.P('c2',0))
            if self.P('ag0',-1)<0: hg=self.halo_all()
            if self.P('acs',-1)<0: csl()
            if self.P('ad0',-1)<0: self.dump(0)
            if self.P('at0',-1)<0: self.touch2()
            if self.P('ct1',0): self.ctouch(124,T0+8)
            if self.P('bw',0):
                A("s_waitcnt vmcnt(0)\ns_barrier"); self.stamp('bw.0')
                self.tgw(self.P('bw',0)-1); self.stamp('bw.ti'); A("s_waitcnt vmcnt(0)"); self.stamp('bw.t')
                for _ in range(self.P('bwd',0)): A("s_nop 15\n"*16)
                self.stamp('bw.d')
                self.bg(self.P('bwn',28)); self.stamp('bw.i'); A("s_waitcnt vmcnt(0)"); self.stamp('bw.w')
            self.bg(self.P('b3',6)); self.tgw(self.P('t3',0)); self.cv(self.P('c3',0))
            self.stamp('att.h')
            A.wait_vm(tk)
            self.stamp('att.w')
        A(f"""s_lshl_b32 s{T0+4}, s{sSLOT}, 10
        s_add_u32 s{T0+4}, s{T0+4}, {LY.HOFF}
        s_add_u32 s{T0+2}, s{T0+4}, s{sHI}
        s_add_u32 s{T0+3}, s{T0+4}, s{sLO}""")
        sOBa,sOAa=T0+2,T0+3
        A("s_waitcnt lgkmcnt(0)\ns_barrier")
        self.stamp('att.kv')
        order=[('b',d) for d in range(9)]+[('a',d) for d in range(9)]
        N=len(order); seen=set(); HW=(4,13) if L else (4,)
        def rk(n):
            q,d=order[n]; A(f"ds_read_b128 {v(KFR+(n&1)*4,4)}, v{AD+(q=='b')} offset:{(8-d)*1024}")
        def rv(n,f):
            q,d=order[n]
            A(f"ds_read_b128 {v(VFR+(n&1)*8+f*4,4)}, v{AD+2+(q=='b')} offset:{(8-d)*1024+f*256}")
        def sm(n):
            q,d=order[n]; c=v(MD,16) if d==0 else (v(MT,16) if d==8 else '0')
            A(f"{MF} {v(S0+(n&1)*16,16)}, {v(KFR+(n&1)*4,4)}, {v(QB if q=='b' else QA,4)}, {c}")
        def pv(n,f):
            q,d=order[n]; O=OB if q=='b' else OA
            c=v(O,16) if (q in seen) else '0'; seen.add(q)
            A(f"{MF} {v(O,16)}, {v(VFR+(n&1)*8+f*4,4)}, {v(P0+(n&1)*8+f*4,4)}, {c}")
        def fin(O,so):
            A(f"v_rcp_f32 v{O+9}, v{O+8}")
            for r in range(8): A(f"v_mul_f32 v{O+r}, v{O+r}, v{O+9}")
            for r in range(4): A(f"v_cvt_pk_bf16_f32 v{O+12+r}, v{O+2*r}, v{O+2*r+1}")
            tg=A(f"buffer_store_dwordx4 {v(O+12,4)}, v{vL16}, {WS}, s{so} offen")
            A(f"v_mov_b32 v{O+10}, 0")
            for r in range(4): A(f"v_dot2c_f32_bf16 v{O+10}, s{sONE}, v{O+12+r}")
            A(f"v_fma_f32 v{O+10}, v{O+10}, 0, v{O+8}\nv_subrev_u32 v{O+10}, 0x30800000, v{O+10}\nv_cmp_le_u32 vcc, 0x28000000, v{O+10}")
            A(f"s_cmp_lg_u64 vcc, 0\ns_cselect_b32 s{sSLOW}, 1, s{sSLOW}")
            if self.P('fb',0): A(f"s_mov_b32 s{sSLOW}, 1")
            return tg
        bs=self.S('as','0-8'); os_=self.S('ao','6-9'); ts=self.S('ts',''); cs_=self.S('ac',''); tb=None
        def bgn(n,k):
            c=bs.get(n,0); self.bg((c+2-k)//3)
            c=os_.get(n,0); self.wout((c+2-k)//3)
            if k==0: self.tgw(ts.get(n,0))
            if k==1: self.cv(cs_.get(n,0))
        rk(0); rk(1); rv(0,0); rv(0,1); sm(0)
        for n in range(N):
            S=S0+(n&1)*16; P=P0+(n&1)*8
            self.fine('att',n,1)
            ex=lambda a_,b_: [A(f"v_exp_f32 v{S+r}, v{S+r}") for r in range(a_,b_)]
            cv=lambda a_,b_: [A(f"v_cvt_pk_bf16_f32 v{P+r}, v{S+2*r}, v{S+2*r+1}") for r in range(a_,b_)]
            if n in HW:
                A.wait_vm(hg); A("s_barrier"); rk(n+1)
                self.stamp('att.hw')
            elif n+1<N: sm(n+1)
            if n+2<N and n+1 not in HW: rk(n+2)
            if n+1<N: rv(n+1,0)
            ex(0,4)
            if n>0: pv(n-1,1)
            if n+1<N: rv(n+1,1)
            ex(4,8)
            if n in HW: sm(n+1)
            bgn(n,0)
            cv(0,4); ex(8,12); pv(n,0)
            bgn(n,1)
            ex(12,16)
            bgn(n,2)
            cv(4,8)
            if L:
                if n==self.P('ap',5): self.hpublish(2,hl)
                if n==self.P('ah',8): self.halo_try()
                if n==self.P('ag',10): hg=self.halo_get(False)
            else:
                if n==self.P('ag0',-1): hg=self.halo_all()
                if n==self.P('acs',-1): csl()
                if n==self.P('at0',-1): self.touch2()
                if n==self.P('ad0',-1): self.dump(0)
                if n==self.P('ad1',8): self.dump(1)
            if n==9: tb=fin(OB,sOBa)
            if n==self.P('aq',13): self.cond(f"s_cmp_lg_u32 s{sSLOW}, 0",lambda: self.publish(self.F(F_ATB),tb))
            if n==self.P('aw',15): self.try_issue(WS,f"s{sTF}",self.PLA,vPA)
        def wf():
            self.try_check(WS,f"s{sTF}",self.PLA,vPA,self.F(F_ATB)); self.acquire()
            self.wo_fetch(A,sRHI,self.OF)
        A(f"s_mov_b32 s{T0+7}, s{sSLOW}")
        self.cond(f"s_cmp_lg_u32 s{sSLOW}, 0",wf)
        pv(N-1,1)
        self.stamp('att.mm')
        self.ta=fin(OA,sOAa)
        self.bg(self.P('be',5))
        A(f"s_cmp_lg_u32 s{sSLOW}, 0\ns_cbranch_scc1 L_fb{L}")
        A.label(f'L_fbr{L}')
        self.att_exact()
    def att_exact(self):
        S,P,KFR,AD,VFR,O,MD,MT=self.S0,self.P0,self.KFR,self.AD,self.VFR,self.OA,self.MD,self.MT; L=self.L
        B=Asm(); B._n=90000+1000*L; sD,sM=T0+5,T0+6; M=S+16; vK=S+17; vV=S+18; T=S+19
        B.label(f'L_fb{L}'); B("s_nop 7\ns_nop 7")
        def scores(Q):
            l0=B.newlabel('L_f0'); l8=B.newlabel('L_f8'); le=B.newlabel('L_fe')
            B(f"s_waitcnt lgkmcnt(0)\ns_cmp_eq_u32 s{sD}, 0\ns_cbranch_scc1 {l0}\ns_cmp_eq_u32 s{sD}, 8\ns_cbranch_scc1 {l8}")
            B(f"{MF} {v(S,16)}, {v(KFR,4)}, {v(Q,4)}, 0\ns_branch {le}")
            B.label(l0); B(f"{MF} {v(S,16)}, {v(KFR,4)}, {v(Q,4)}, {v(MD,16)}\ns_branch {le}")
            B.label(l8); B(f"{MF} {v(S,16)}, {v(KFR,4)}, {v(Q,4)}, {v(MT,16)}")
            B.label(le); B("s_nop 7\ns_nop 7")
        for q,Q,so in ((1,self.AH,T0+2),(0,self.AL,T0+3)):
            B(f"s_sub_u32 s{sM}, 7, s{sW}" if q else f"s_mov_b32 s{sM}, s{sW}")
            B(f"s_cmp_eq_u32 s{sTEAM}, 0\ns_cselect_b32 s{sM}, s{sM}, 8")
            B(f"s_mov_b32 s{sD}, 0\nv_mov_b32 v{M}, 0xff800000\nv_add_u32 v{vK}, 8192, v{AD+q}")
            l=B.newlabel('L_fa'); B.flush_hz(); B.label(l)
            B(f"ds_read_b128 {v(KFR,4)}, v{vK}")
            scores(Q)
            for r in range(8): B(f"v_max3_f32 v{M}, v{S+2*r}, v{S+2*r+1}, v{M}")
            B(f"v_subrev_u32 v{vK}, 1024, v{vK}\ns_add_u32 s{sD}, s{sD}, 1\ns_cmp_le_u32 s{sD}, s{sM}")
            B.flush_hz(); B(f"s_cbranch_scc1 {l}")
            B(f"v_mov_b32 v{T}, v{M}\nv_permlane32_swap_b32 v{M}, v{T}\nv_max_f32 v{M}, v{M}, v{T}")
            B(f"s_mov_b32 s{sD}, 0\nv_add_u32 v{vK}, 8192, v{AD+q}\nv_add_u32 v{vV}, 8192, v{AD+2+q}")
            for r in range(16): B(f"v_mov_b32 v{O+r}, 0")
            l=B.newlabel('L_fc'); B.flush_hz(); B.label(l)
            B(f"ds_read_b128 {v(KFR,4)}, v{vK}\nds_read_b128 {v(VFR,4)}, v{vV}\nds_read_b128 {v(VFR+4,4)}, v{vV} offset:256")
            scores(Q)
            for r in range(16): B(f"v_sub_f32 v{S+r}, v{S+r}, v{M}")
            for r in range(16): B(f"v_exp_f32 v{S+r}, v{S+r}")
            for r in range(8): B(f"v_cvt_pk_bf16_f32 v{P+r}, v{S+2*r}, v{S+2*r+1}")
            for f in range(2): B(f"{MF} {v(O,16)}, {v(VFR+f*4,4)}, {v(P+f*4,4)}, {v(O,16)}")
            B(f"v_subrev_u32 v{vK}, 1024, v{vK}\nv_subrev_u32 v{vV}, 1024, v{vV}\ns_add_u32 s{sD}, s{sD}, 1\ns_cmp_le_u32 s{sD}, s{sM}")
            B.flush_hz(); B(f"s_cbranch_scc1 {l}")
            B(f"v_rcp_f32 v{O+9}, v{O+8}")
            for r in range(8): B(f"v_mul_f32 v{O+r}, v{O+r}, v{O+9}")
            for r in range(4): B(f"v_cvt_pk_bf16_f32 v{O+12+r}, v{O+2*r}, v{O+2*r+1}")
            B("s_waitcnt vmcnt(0)")
            B(f"buffer_store_dwordx4 {v(O+12,4)}, v{vL16}, {WS}, s{so} offen\ns_waitcnt vmcnt(0)")
        p1,p2,p3,p4=[B.newlabel('L_fp') for _ in range(4)]
        B(f"""v_mov_b32 v{vP1}, {self.F(F_ATA)}
        buffer_wbl2 sc1
        s_waitcnt vmcnt(0)
        s_mov_b64 exec, 1
        s_cmp_lg_u32 s{sMODE}, 0
        s_cbranch_scc1 {p1}
        buffer_store_dword v{vP1}, off, {WS}, s{sMYF}
        s_branch {p2}""")
        B.label(p1); B(f"buffer_store_dword v{vP1}, off, {WS}, s{sMYF} sc1")
        B.label(p2); B(f"s_mov_b64 exec, -1\ns_cmp_eq_u32 s{T0+7}, 0\ns_cbranch_scc1 L_fbr{L}")
        B.label(p3)
        B(f"""buffer_load_dword v{self.PLA}, v{vPA}, {WS}, s{sTF} offen sc1
        s_waitcnt vmcnt(0)
        v_cmp_gt_u32 vcc, {self.F(F_ATB)}, v{self.PLA}
        s_nop 1
        s_cbranch_vccz {p4}
        s_sub_u32 s{sTO}, s{sTO}, 1
        s_cbranch_scc0 {p3}
        s_endpgm""")
        B.label(p4); B("buffer_inv sc1\ns_waitcnt vmcnt(0)")
        self.wo_fetch(B,sRHI,self.OF)
        B(f"s_waitcnt vmcnt(0)\ns_branch L_fbr{L}")
        self.tail.append(B.text().rstrip("\n"))
    def red_w(self,acc,cb): return [f"ds_write_b128 v{vRW1 if rq&1 else vRW0}, {v(acc+cb*16+rq*4,4)} offset:{cb*4096+rq*1024}" for rq in range(4)]
    def red_r(self,R): return [f"ds_read_b128 {v(R+(p*2+e)*4,4)}, v{vRRD} offset:{p*8192+e*512}" for p in range(4) for e in range(2)]
    def red_read(self,R):
        for x in self.red_r(R): self.A(x)
    def red_fin(self,rnd,R,scale):
        rs=RES+rnd*4; L=[]; P=lambda r: v(r,2)
        for n in range(0,8,2): L.append(f"v_pk_add_f32 {P(R+n)}, {P(R+n)}, {P(R+8+n)}")
        for n in range(0,8,2): L.append(f"v_pk_add_f32 {P(R+16+n)}, {P(R+16+n)}, {P(R+24+n)}")
        for n in range(4): L.append(f"v_lshlrev_b32 v{R+8+2*n}, 16, v{rs+n}"); L.append(f"v_and_b32 v{R+9+2*n}, 0xffff0000, v{rs+n}")
        for n in range(0,8,2): L.append(f"v_pk_add_f32 {P(R+n)}, {P(R+n)}, {P(R+16+n)}")
        for n in range(0,8,2):
            L.append(f"v_pk_add_f32 {P(R+n)}, {P(R+n)}, {P(R+8+n)}" if scale is None else
                     f"v_pk_fma_f32 {P(R+n)}, {P(R+n)}, {P(scale&~1)}, {P(R+8+n)} op_sel:[0,{scale&1},0] op_sel_hi:[1,{scale&1},1]")
        for n in range(4): L.append(f"v_cvt_pk_bf16_f32 v{rs+n}, v{R+2*n}, v{R+2*n+1}")
        return L
    GA,GW,GAD,GZ,GM,GT,GX=64,128,160,164,180,184,188
    def wo(self):
        A=self.A; A1,A2,F2=64,96,[144+4*k for k in range(4)]+[176+4*k for k in range(3)]+[220]
        PL=128; L=self.L
        if L==0: A.wait_vm(self.tdump)
        A("s_barrier")
        if L==0:
            self.cond(f"s_cmp_lg_u32 s{sW}, 0",self.mark(0xe0))
            assert not any(g[0] in 'AO' for g in self.bgq)
            self.wout(32,True)
            k=sum(1 for x in self.cvq if x[0]=='O')
            if k: self.conv_setup(96); self.cv(k,96)
        self.stamp('wo.cv')
        def mm(acc0,F,hook):
            wq=self.red_w(acc0,0)
            for n in range(16):
                cb,k=divmod(n,8)
                hook(n)
                acc=v(acc0+cb*16,16)
                A(f"{MF} {acc}, {woreg(k*2+cb)}, {v(F[k],4)}, {acc if k else '0'}")
                if n>=9 and n&1: self.pop(wq)
            hook(16)
            assert not wq
            for x in self.red_w(acc0,1): A(x)
        def h1(n):
            if n==self.P('wp1',0): self.publish(self.F(F_ATA),self.ta); self.bg(self.P('wa',4))
            if n==self.P('wt1',16): self.try_issue(WS,f"s{sTF}",PL,vPA)
        mm(A1,self.OF,h1)
        A("s_waitcnt lgkmcnt(0)\ns_barrier")
        self.red_read(A1)
        self.stamp('wo.1')
        self.try_check(WS,f"s{sTF}",PL,vPA,self.F(F_ATA)); self.acquire()
        fq=self.cap(lambda: self.wo_fetch(self.A,sRLO,F2)); fq=[(lambda g=fq[3*j:3*j+2+h][2*h:]: [A(y) for y in g]) for j in range(4) for h in range(2)]
        t1=self.mix(self.red_fin(0,A1,None)+self.cap(lambda: self.xstore(RES,sRHI,LY.ST1,A1)),fq,self.P('wm1',5),2)
        self.bg(self.P('wb',4))
        self.gu_addr()
        self.stamp('wo.f2')
        def h2(n):
            if n==self.P(f'wp2{L}',14): self.publish(self.F(F_WO1),t1)
            if n==8: A("s_barrier")
        mm(A2,F2,h2)
        self.try_issue(WS,f"s{sTF}",PL,vPX)
        if L==0:
            assert not any(g[0]!='W' for g in self.bgq)
            A.wait_vm(self.tgu)
        A("s_waitcnt lgkmcnt(0)\ns_barrier")
        self.red_read(A2)
        self.stamp('wo.2')
        self.try_check(WS,f"s{sTF}",PL,vPX,self.F(F_WO1)); self.acquire()
        self.stamp('wo.c')
        self.plan=self.gu_plan()
        self.gn=min(self.gpre,self.P('wg1',12))
        fq=[lambda: self.gx(0),lambda: self.gstat(sHI)]+[(lambda i=i: self.gx(i)) for i in range(1,self.gn)]
        self.tx2=self.mix(self.red_fin(1,A2,None)+self.cap(lambda: self.xstore(RES+4,sRLO,LY.ST1,A2)),fq,self.P('wm2',5),2)
    def gu_addr(self):
        A=self.A; g=self.GAD
        A(f"""v_lshrrev_b32 v{vT0}, 5, v0
        v_lshlrev_b32 v{g+3}, 10, v{vT0}
        v_bfe_u32 v{vT0}, v0, 4, 1
        v_lshl_add_u32 v{g+3}, v{vT0}, 11, v{g+3}
        v_bfe_u32 v{vT1}, v0, 2, 2
        v_lshl_add_u32 v{g+3}, v{vT1}, 7, v{g+3}
        v_xor_b32 v{vT0}, v{vT0}, v{vT1}
        v_lshl_add_u32 v{g+3}, v{vT0}, 5, v{g+3}
        v_and_b32 v{vT0}, 3, v0
        v_lshl_add_u32 v{g}, v{vT0}, 3, v{g+3}""")
        for j in (1,2,3): A(f"v_xor_b32 v{g+j}, {j*32}, v{g}")
    def gs(self,i):
        V=lambda k: v(self.GX+4*k,4); X=lambda k: a(128+4*k,4)
        if self.L or i>=64: return V(i%16)
        if i<24: return X(i)
        if i<32: return V(i-24)
        if i<40: return V(i-24)
        if i<48: return X(i-24)
        return V(i-48)
    def gx(self,i):
        A=self.A
        if i>=64: return self.hld(i-64,sRHI,self.gs(i))
        if i==0: A(f"s_mov_b32 s{sXN}, s{sHI}")
        elif i==32: A(f"s_mov_b32 s{sXN}, s{sLO}")
        elif i%4==0: A(f"s_add_u32 s{sXN}, s{sXN}, 4096")
        A(f"buffer_load_dwordx4 {self.gs(i)}, v{vL16}, {WS}, s{sXN} offen offset:{(i%4)*1024} sc1")
    def gstat(self,rec):
        self.A(f"""s_add_u32 s{T0+4}, s{rec}, {LY.ST1}
        buffer_load_dwordx4 {v(self.GZ,4)}, v{vSLD}, {WS}, s{T0+4} offen sc1
        buffer_load_dwordx4 {v(self.GZ+4,4)}, v{vSLD}, {WS}, s{T0+4} offen offset:16 sc1""")
    def grd(self,ks,js):
        L=[]
        for b,j in enumerate(js):
            r=self.GW+(ks&1)*16+b*4; o=(ks%16)*4096
            L+= [f"ds_read_b64_tr_b16 {v(r,2)}, v{self.GAD+j} offset:{o}",f"ds_read_b64_tr_b16 {v(r+2,2)}, v{self.GAD+j} offset:{o+512}"]
        return L
    def gu_plan(self):
        L=self.L; X={}; W={}; C={}
        def put(D,t,x): D.setdefault(t,[]).append(x)
        if L:
            LEAD=self.P('gl',12); self.gpre=self.P('gl0',6); self.hpre=LEAD
            for i in range(self.gpre,64+LEAD):
                j=max(i-LEAD,(i-self.gpre)//2); put(X,j+j//32,i)
            self.gchk=(32-LEAD,33+32-LEAD)
            for n,g in enumerate(self.q_wgu(7)): put(W,self.P('g7',8)+n,(7,g))
        else:
            self.gpre=32; self.hpre=8; c=self.P('gc',16); self.gchk=(c,33+24)
            for i in range(32,64+8):
                j=i-32
                put(X,c+j if j<8 else (16+j if j<16 else (33+j-16 if j<32 else 33+24+j-32)),i)
            assert c<=16
            wd=[g[2] for g in self.bgq]; self.bgq=[]
            t=self.P('wd0',0); done=56-len(wd); r=self.P('wdr',1); n=0; tl={}
            for k,g in enumerate(wd):
                u=(done+k)//2
                lo=0 if u<16 else (2*(u-16)+2 if u<24 else 33+8+2*(u-24)+2)
                if n==r: t+=1; n=0
                if t%33==32: t+=1
                if t<lo: t=lo; n=0
                put(W,t,(None,g)); n+=1; tl[u]=t
            t=self.P('cv0',20); lag=self.P('cvl',16); ng=self.P('cvn',4)
            for u in range(16-len(self.cvq),28):
                t=max(t,tl.get(u,0)+lag)
                if t%33==32: t+=1
                put(C,t if u<ng else 99,u); t+=self.P('cvr',1)
        return X,W,C
    def wqt(self,first=False,dst=107):
        self.A(f"""s_mul_i32 s{T0+6}, s{sSLOT}, 49152
        s_lshl_b32 s{T0+7}, s{sW}, {12 if first else 13}
        s_add_u32 s{T0+6}, s{T0+6}, s{T0+7}
        s_add_u32 s{T0+6}, s{T0+6}, {LY.WQI+(0 if first else 16384)}
        v_lshlrev_b32 v{vT0}, 7, v0
        {'s_mov_b64 exec, 0xffffffff' if first else ''}
        buffer_load_dword v{dst}, v{vT0}, {WS}, s{T0+6} offen{' sc1' if self.P('wqs',1) else ''}
        {'s_mov_b64 exec, -1' if first else ''}""")
    def wqp(self,stage,r=90):
        A=self.A
        if stage==0:
            A(f"v_and_b32 v{r}, 7, v0\nv_lshlrev_b32 v{r}, 5, v{r}\ns_and_b32 s{sQ}, s{sSLOT}, 28")
            self.try_issue(srd(SDBG),f"s{sQ}",r+1,r)
        else:
            A(f"s_and_b32 s{T0+7}, s{sSLOT}, 3\ns_lshl_b32 s{T0+7}, s{T0+7}, 3\ns_lshl_b32 s{T0+7}, 0x20, s{T0+7}")
            self.try_check(srd(SDBG),f"s{sQ}",r+1,r,f"s{T0+7}",mask=True); self.acquire()
    def conv(self,u):
        for x in self.conv_unit(a,8*u,self.GT+1): self.A(x)
    def gu_pass(self,js,p,plan,jn=None):
        nb=len(js)
        A=self.A; GA,GW,GAD,GZ,GM,GT=self.GA,self.GW,self.GAD,self.GZ,self.GM,self.GT; L=self.L
        X,W,C=plan
        def sc():
            self.sum8(GZ)
            self.A(f"v_mov_b32 v{GZ+1}, v{GZ}\nv_permlane32_swap_b32 v{GZ}, v{GZ+1}\nv_mul_f32 v{GZ}, 0x3b000000, v{GZ}\nv_cvt_pk_bf16_f32 v{GM}, -v{GZ}, -v{GZ}")
            for r in (1,2,3): self.A(f"v_mov_b32 v{GM+r}, v{GM}")
        fill=self.cap(sc)
        aug=[f"v_mov_b32 v{GZ+r}, 0" for r in range(nb*4) if r%4]
        fs=self.P('gf',3) if L else self.P('gf0',14)
        poll=(vPA,self.F(F_GU1)) if p else (vPX,self.F(F_WO2))
        for ks in range(33):
            t=33*p+ks
            self.fine('gu',ks)
            x=self.gs(32*p+ks) if ks<32 else v(GM,4)
            if ks==15: nx=[f"v_add_u32 v{GAD+j}, 0x10000, v{GAD+j}" for j in range(4)]+self.grd(16,js)
            elif ks==31: nx=[] if p else [f"v_subrev_u32 v{GAD+j}, 0x10000, v{GAD+j}" for j in range(4)]+self.grd(0,jn)
            elif ks<31: nx=self.grd(ks+1,js)
            else: nx=[]
            if p==0 and ks%4==3:
                assert not any(j is not None and j<=(ks+1)//4 for tt in W if tt>=t for j,g in W[tt])
            if p==0 and ks%4==3 and (ks+1)//4 in self.gtag:
                A.wait_vm(self.gtag[(ks+1)//4]); A("s_barrier")
            if p==0 and L==0 and ks==self.P('gb',8): A("s_barrier"); self.gbar=True; self.gu_csx(0)
            if p==0 and L==0 and ks==self.P('gb',8)+8: self.gu_csx(1)
            if ks==32:
                for b,j in enumerate(js): A(f"v_mov_b32 v{GZ+4*b}, v{CSG+j}")
            per=-(-len(nx)//nb)
            for b in range(nb):
                acc=v(GA+b*16,16); w=v(GW+(ks&1)*16+b*4,4) if ks<32 else v(GZ+4*b,4)
                A(f"{MF} {acc}, {w}, {x}, {acc if ks else '0'}")
                self.pop(nx,per)
                if b==0:
                    if t==self.gchk[p]:
                        self.try_check(WS,f"s{sTF}",GT,poll[0],poll[1]); self.acquire()
                    for i in X.get(t,[]): self.gx(i)
                if b==1 and fs<=ks: self.pop(fill,2)
                if b==1 and ks>=24: self.pop(aug,2)
                if b==2:
                    for j,g in W.get(t,[]):
                        for y in g: r=A(y)
                        if j is not None: self.gtag[j]=r
                    for u in C.get(t,[]):
                        assert self.gbar
                        self.conv(u)
            if L==0 and t==self.P('gq',99): self.wqt(dst=GT)
            if L==0 and t==self.P('gq1',99): self.wqt(True,dst=GT)
            if L and t==self.P('gw',4): self.publish(self.F(F_WO2),self.tx2)
            if p and ks==self.P('gp',8): self.publish(self.F(F_GU1),self.th)
            if t==self.gchk[p]-self.P('gt',4 if self.L else 10): self.try_issue(WS,f"s{sTF}",GT,poll[0])
        assert not fill and not aug
        self.stamp('gu.mm')
        if p==0: self.gstat(sLO)
        A(f"s_add_u32 s{T0+3}, s{sHS}, s{sLO if p else sHI}")
        for b in range(nb):
            g=GA+b*16; d=GW+16+b*4
            for r in range(8): A(f"v_max_f32 v{g+r}, 0, v{g+r}")
            for r in range(8): A(f"v_mul_f32 v{g+r}, v{g+r}, v{g+8+r}")
            for r in range(4): A(f"v_cvt_pk_bf16_f32 v{d+r}, v{g+2*r}, v{g+2*r+1}")
            if L>=self.P('hs',1): self.th=A(f"buffer_store_dwordx4 {v(d,4)}, v{vL16}, {WS}, s{T0+3} offen offset:{js[b]*1024}")
        if L<self.P('hs',1):
            def st(fl):
                for b in range(nb): self.th=A(f"buffer_store_dwordx4 {v(GW+16+b*4,4)}, v{vL16}, {WS}, s{T0+3} offen offset:{js[b]*1024}{fl}")
            self.cond(f"s_cmp_ge_u32 s{sSLOT}, 10",lambda: st(''))
            self.cond(f"s_cmp_lt_u32 s{sSLOT}, 10",lambda: st(' sc1'))
        self.stamp('gu.st')
    def gu_colsum(self):
        A=self.A; T,c,sel=64,80,84
        self.selector(sel)
        A(f"s_lshl_b32 s{T0+2}, s{sW}, 5\nv_xor_b32 v{vT0}, s{T0+2}, v{self.GAD}")
        def rdk(k): return f"ds_read_b64_tr_b16 {v(T+(k%4)*4,2)}, v{vT0} offset:{(k%16)*4096}\nds_read_b64_tr_b16 {v(T+(k%4)*4+2,2)}, v{vT0} offset:{(k%16)*4096+512}"
        for k in range(3): A(rdk(k))
        for k in range(32):
            if k+3==16: A(f"v_add_u32 v{vT0}, 0x10000, v{vT0}")
            A(f"{MS} {v(c,4)}, {v(sel,4)}, {v(T+(k%4)*4,4)}, {v(c,4) if k else '0'}")
            if k+3<32: A(rdk(k+3))
        A(f"v_mov_b32 v{CSG+3}, v{c}")
        self.cs_pack(CSG+3,c+1)
    def gu_csx(self,stage):
        A=self.A
        A(f"v_lshlrev_b32 v{vT0}, 2, v0\nv_add_u32 v{vT0}, {SCR+4096}, v{vT0}")
        if stage==0: A(f"s_lshl_b32 s{T0+2}, s{sW}, 13\nv_add_u32 v{vT0}, s{T0+2}, v{vT0}\nds_write_b32 v{vT0}, v{CSG+3}")
        else:
            A("s_waitcnt lgkmcnt(0)\ns_barrier")
            for j in range(4): A(f"ds_read_b32 v{CSG+j}, v{vT0} offset:{j*8192}")
    def gu(self):
        A=self.A; L=self.L
        plan=self.plan; X,W,C=plan
        for i in range(self.gn,self.gpre): self.gx(i)
        tags={}
        for j,g in W.get(-1,[]):
            for y in g: tags[j]=A(y)
        A(f"s_lshr_b32 s{sHS}, s{sSLOT}, 1\ns_mul_i32 s{sHS}, s{sHS}, 7168\ns_add_u32 s{sHS}, s{sHS}, {LY.HOFF}\ns_mul_i32 s{T0+2}, s{sE}, 3072\ns_add_u32 s{sHS}, s{sHS}, s{T0+2}")
        if L==0: self.conv_setup(self.GT+1)
        if L==0: self.wqp(0); self.stamp('gu.p'); self.gu_colsum(); self.wqp(1)
        if L==0: self.publish(self.F(F_WO2),self.tx2)
        self.stamp('gu.in')
        A(f"s_cmp_lg_u32 s{sE}, 0\ns_cbranch_scc1 L_ge{L}")
        st=A.snap(); n=len(self.stn); Q=[]
        for e in range(2):
            if e: A.restore(st); A.label(f'L_ge{L}'); del self.stn[n:]
            self.gtag=dict(tags); self.gbar=False
            J=([0,1,2,3],[0,1,2]) if e==0 else ([1,2,3],[0,1,2,3])
            for x in self.grd(0,J[0]): A(x)
            self.gu_pass(J[0],0,plan,J[1]); self.gu_pass(J[1],1,plan)
            A("s_waitcnt lgkmcnt(0)"); A.flush_hz()
            if e==0: A(f"s_branch L_dn{L}")
            Q.append(A.snap()[0])
        A.label(f'L_dn{L}')
        A.merge(Q[1],Q[0])
        self.cleft=[u for t in sorted(C) if t>=66 for u in C[t]]
        assert not any(t>=66 for t in W)
    def down(self):
        A=self.A; A1,A2,ST,R2=64,152,96,188-4; L=self.L
        R2=104
        SLOT=[self.GX+4*i for i in range(16)]+[112+4*i for i in range(10)]
        PL=106; tpend=self.th
        self.stamp('dn.in')
        def stats(rec):
            A(f"""s_add_u32 s{T0+2}, s{rec}, {LY.ST1}
            buffer_load_dwordx4 {v(ST,4)}, v{vDSL}, {WS}, s{T0+2} offen sc1
            buffer_load_dwordx4 {v(ST+4,4)}, v{vDSL}, {WS}, s{T0+2} offen offset:16 sc1""")
        def r2(dst):
            self.sum8(ST)
            self.A(f"""v_and_b32 v{ST+4}, 8, v0
            v_mov_b32_dpp v{ST+1}, v{ST} row_ror:8 row_mask:0xf bank_mask:0xf""")
            self.A(f"v_cmp_ne_u32 vcc, 0, v{ST+4}\nv_cndmask_b32 v{ST+2}, v{ST}, v{ST+1}, vcc\nv_cndmask_b32 v{ST+3}, v{ST+1}, v{ST}, vcc")
            self.ln_scalars(ST+2,ST+3,None,dst,ST+4)
            self.A(f"v_mul_f32 v{dst}, v{dst}, v{dst}")
        def grp(Q):
            out=[];i=0
            while i<len(Q):
                if Q[i].startswith('v_cmp'): out.append(Q[i:i+3]); i+=3
                else: out.append(Q[i]); i+=1
            return out
        def ld():
            i=ln[0]; k=i%28; ln[0]+=1
            self.hld(k,sRLO if i>=28 else sRHI,v(SLOT[i%26],4))
        ln=[self.hpre]
        for _ in range(self.P('dl',12)-self.hpre): ld()
        stats(sRHI)
        if L==0 and self.P('ct2',0): self.ctouch(107,T0+8)
        cl=list(self.cleft); tx=[None]; lim=[28]; P=self.P
        def st1():
            if L==0: tx[0]=self.xstore(RES,sRHI,LY.STX,A1)
            else: self.out_store(RES,sRHI)
        TL=P('dtl',8); G0=56-TL
        seq=[(g,cb) for g in range(G0) for cb in range(2)]+[(g,cb) for cb in range(2) for g in range(G0,56)]
        fill=grp(self.cap(lambda: r2(R2))); lq=[]; dk=P('dk',16); dw=P('dw',29); db=P('db',37)
        def hook(k):
            if k==P('dp',8): self.publish(self.F(F_GU2),tpend)
            if k==dk-P('dt',6): self.try_issue(WS,f"s{sTF}",PL,vPA)
            if L==0 and k==P('dg',5): self.wqt()
            if cl:
                assert k+3<=cl[0],(k,cl)
                self.conv(cl.pop(0))
            if k==dk:
                assert not fill
                self.stamp('dn.k')
                self.try_check(WS,f"s{sTF}",PL,vPA,self.F(F_GU2)); self.acquire()
                self.stamp('dn.c2')
                stats(sRLO); lim[0]=56
            if k==27: self.stamp('dn.mm0')
            if k==dw-1: lq.extend(self.red_w(A1,0)+self.red_w(A1,1)); fill.extend(grp(self.cap(lambda: r2(R2+1))))
            if k==db:
                assert not lq and not cl
                A("s_waitcnt lgkmcnt(0)\ns_barrier"); lq.extend(self.red_r(A1))
            if k==db+3:
                xs=self.cap(st1)
                fill.extend(self.red_fin(0,A1,R2)+xs[:-1]+[lambda: tx.__setitem__(0,A(xs[-1]))])
            if k==G0-1: A("s_barrier")
            if L and k==P('wk',40):
                assert ln[0]==56
                b=A.newlabel('L_wb'); r=A.newlabel('L_wr')
                A(f"s_lshl_b32 s{T0+6}, s{sSLOT}, 2\ns_add_u32 s{T0+6}, s{T0+6}, s{sW}\ns_and_b32 s{T0+6}, s{T0+6}, 127\ns_cbranch_scc0 {b}")
                A(f"buffer_load_dword v{PL+1}, off, {WS}, s{sMYF}"); A.label(r)
                self.tail.append(f"{b}:\n    buffer_wbl2 sc1\n    s_branch {r}")
            if L==0 and k==P('de',44):
                A(f"s_mul_i32 s{sQ}, s{sSLOT}, 49152\ns_add_u32 s{sQ}, s{sQ}, s{sLW}\ns_add_u32 s{sQ}, s{sQ}, {LY.WQI}\ns_add_u32 m0, s{sLW}, {RW}")
                for j in range(4): A(f"buffer_load_dwordx4 v{vL16}, {WS}, s{sQ} offen offset:{j*1024} sc1 lds")
            if L==0 and k==P('dq',54): self.publish(F_N+F_X1,tx[0])
        for _ in range(P('dc0',3)):
            if cl: self.conv(cl.pop(0))
        for n,(g,cb) in enumerate(seq):
            k=g%28; st=n//2
            if n%2==0: self.fine('dn',st,2)
            acc=v((A2 if g>=28 else A1)+cb*16,16)
            A(f"{MF} {acc}, {a((k*2+cb)*4,4)}, {v(SLOT[g%26],4)}, {acc if k else '0'}")
            if n==2*G0+TL: lq.extend(self.red_w(A2,0))
            if n%2 or st>db: self.pop(lq)
            if st>=2: self.pop(fill,P('dfr',3) if st>db else 2)
            if n%2==0:
                for _ in range(2):
                    if ln[0]<lim[0] and ln[0]<min(st,G0)+26: ld()
            else: hook(st)
        assert not fill and not lq and ln[0]==56
        self.stamp('dn.mm1')
        for x in self.red_w(A2,1): A(x)
        if L==0: self.try_issue(WS,f"s{sTF}",PL,vPX)
        A("s_waitcnt lgkmcnt(0)\ns_barrier")
        self.red_read(A2)
        if L:
            for x in self.red_fin(1,A2,R2+1): A(x)
            self.out_store(RES+4,sRLO); return
        self.stamp('dn.fin')
        self.L=1
        A(f"s_add_u32 s{sHB}, s{sHB}, {LY.HALO_L}")
        self.try_check(WS,f"s{sTF}",PL,vPX,self.F(F_X1)); self.acquire()
        self.stamp('dn.c3')
        self.mix(self.red_fin(1,A2,R2+1),self.qa_prefetch(self.qlead()),P('dm1',3),2)
        A(f"s_barrier\ns_add_u32 s{sQ}, s{sQ}, s{sLW}\ns_add_u32 s{sQ}, s{sQ}, 16384\ns_lshl_b32 s{T0+6}, s{sW}, 13\ns_add_u32 m0, s{T0+6}, {SCR}")
        def late(j):
            if j==4: A(f"s_add_u32 s{sQ}, s{sQ}, 4096\ns_add_u32 m0, s{T0+6}, {SCR+4096}")
            self.tlate=A(f"buffer_load_dwordx4 v{vL16}, {WS}, s{sQ} offen offset:{(j%4)*1024} sc1 lds")
        self.txlo=self.mix(self.cap(lambda: self.xstore(RES+4,sRLO,LY.STX,A2)),[(lambda j=j: late(j)) for j in range(8)],3,0)
    def out_store(self,rs,rec):
        self.A(f"""s_lshl_b32 s{T0+2}, s{sTEAM}, 3
        s_{'add' if rec==sRLO else 'sub'}_u32 s{T0+2}, s{T0+2}, s{sTQ}
        s_add_u32 s{T0+2}, s{T0+2}, {0 if rec==sRLO else 7}
        s_lshl_b32 s{T0+2}, s{T0+2}, 15
        s_lshl_b32 s{T0+3}, s{sCW}, 7
        s_add_u32 s{T0+2}, s{T0+2}, s{T0+3}
        buffer_store_dwordx4 {v(rs,4)}, v{vROW}, {srd(SOUT)}, s{T0+2} offen{' sc1' if self.P('osc',1) else ''}""")
    def build(self):
        A=self.A; self.L=0
        self.mkbg()
        self.prologue()
        seq=[(n,f,l) for l in range(2) for n,f in (('qa',self.qa),('att',self.att),('wo',self.wo),('gu',self.gu),('dn',self.down))]
        for n,f,l in seq:
            if self.P('bench',0): break
            if n=='qa': self.stamp('qa.in')
            f()
            if self.stop==f"{n}{l}": break
        A("s_waitcnt vmcnt(0)" if self.stop else "s_nop 0")
        self.end()
        A.label('L_exit'); A("s_endpgm")
        for t in self.tail: A.raw(t)
        A.label('L_end')
        hdr=f"""; generated by gen/gen4.py
; @launch grid=(256,1,1) block=(256,1,1) lds=163840
.amdgcn_target "amdgcn-amd-amdhsa--gfx950"
.text
.globl {NAME}_kernel
.p2align 8
.type {NAME}_kernel,@function
{NAME}_kernel:
"""
        kd=f""".section .rodata,"a"
.p2align 6
.amdhsa_kernel {NAME}_kernel
  .amdhsa_next_free_vgpr 512
  .amdhsa_next_free_sgpr 102
  .amdhsa_accum_offset 256
  .amdhsa_group_segment_fixed_size 0
  .amdhsa_kernarg_size 80
  .amdhsa_user_sgpr_count 2
  .amdhsa_user_sgpr_kernarg_segment_ptr 1
  .amdhsa_system_sgpr_workgroup_id_x 1
.end_amdhsa_kernel
"""
        ex='; STAMPS '+','.join(self.stn[:-1])+'\n' if self.stamps else ''
        return hdr+A.text()+kd+ex
if __name__=='__main__':
    o=dict(x.split('=') for x in sys.argv[2:])
    g=G(o)
    t=g.build(); open(sys.argv[1],'w').write(t)
    print('lines',t.count('\n'),'auto nops',g.A.nops,'stamps',len(g.stn))
```
